```python
import torch

def _softmax(x, axis=-1):
    return torch.softmax(x, dim=axis)
def _gelu(x):
    return torch.nn.functional.gelu(x, approximate="tanh")
def _silu(x):
    return torch.nn.functional.silu(x)
def _sigmoid(x):
    return torch.sigmoid(x)
def _layernorm(x, axis=-1, eps=1e-5):
    m = x.mean(dim=axis, keepdim=True)
    v = x.var(dim=axis, keepdim=True, unbiased=False)
    return (x - m) / torch.sqrt(v + eps)
def _scatter_add(tgt, idx, src, axis=0):
    return tgt.clone().index_add_(axis, idx, src)
def _segment_sum(src, seg, n):
    out = torch.zeros((n,) + src.shape[1:], dtype=src.dtype)
    return out.index_add_(0, seg, src)
def _pad(x, pw):
    flat = tuple(v for pair in reversed(pw) for v in pair)
    return torch.nn.functional.pad(x, flat)

kernel_name = 'gated_mix__ssm_conv_s5__glu_gated_geglu__prompt'

def setup_inputs():

    _w = (lambda a: (lambda t: t.to(torch.bfloat16) if t.is_floating_point() else t)(torch.as_tensor(a)))
    def _A_setup():
        B, S, D = 1, 2048, 512
        P = D
        Lambda_re = -0.5 * (lambda _x: torch.exp(torch.as_tensor(_x)))((lambda *s: torch.randn(*s, dtype=torch.bfloat16) * 0.2)(P))
        Lambda_im = (lambda *s: torch.randn(*s, dtype=torch.bfloat16) * 0.4)(P) * 1.0
        B_re = (lambda *s: torch.randn(*s, dtype=torch.bfloat16) * 0.2)(P, D) * (D ** -0.5)
        B_im = (lambda *s: torch.randn(*s, dtype=torch.bfloat16) * 0.2)(P, D) * (D ** -0.5)
        C_re = (lambda *s: torch.randn(*s, dtype=torch.bfloat16) * 0.2)(D, P) * (P ** -0.5)
        C_im = (lambda *s: torch.randn(*s, dtype=torch.bfloat16) * 0.2)(D, P) * (P ** -0.5)
        log_dt = (lambda *s: torch.randn(*s, dtype=torch.bfloat16) * 0.2)(P) * 0.3 - 2.0
        Dskip = (lambda *s: torch.randn(*s, dtype=torch.bfloat16) * 0.05)(D)
        return {
            "x": _w((lambda *s: torch.randn(*s, dtype=torch.bfloat16) * 0.05)(B, S, D)),
            "Lambda_re": _w(Lambda_re),
            "Lambda_im": _w(Lambda_im),
            "B_re": _w(B_re),
            "B_im": _w(B_im),
            "C_re": _w(C_re),
            "C_im": _w(C_im),
            "log_dt": _w(log_dt),
            "Dskip": _w(Dskip),
        }
    _A_in = _A_setup()

    def _B_setup():
        B, S, Dm, Df = 1, 2048, 512, 1792
        return {
            "x": _w((lambda *s: torch.randn(*s, dtype=torch.bfloat16) * 0.05)(B, S, Dm)),
            "w_gate": _w((lambda *s: torch.randn(*s, dtype=torch.bfloat16) * 1.6)(Dm, Df) * (Dm ** -0.5)),
            "w_up": _w((lambda *s: torch.randn(*s, dtype=torch.bfloat16) * 1.6)(Dm, Df) * (Dm ** -0.5)),
            "w_down": _w((lambda *s: torch.randn(*s, dtype=torch.bfloat16) * 1.6)(Df, Dm) * (Df ** -0.5)),
        }
    _B_in = _B_setup()

    return {
        "A_x": _A_in["x"],
        "A_Lambda_re": _A_in["Lambda_re"],
        "A_Lambda_im": _A_in["Lambda_im"],
        "A_B_re": _A_in["B_re"],
        "A_B_im": _A_in["B_im"],
        "A_C_re": _A_in["C_re"],
        "A_C_im": _A_in["C_im"],
        "A_log_dt": _A_in["log_dt"],
        "A_Dskip": _A_in["Dskip"],
        "B_x": _B_in["x"],
        "B_w_gate": _B_in["w_gate"],
        "B_w_up": _B_in["w_up"],
        "B_w_down": _B_in["w_down"],
        "gate_w": _w((lambda *s: torch.randn(*s, dtype=torch.bfloat16) * 0.05)(512) * 16.0),
    }

def reference(A_x, A_Lambda_re, A_Lambda_im, A_B_re, A_B_im, A_C_re, A_C_im, A_log_dt, A_Dskip, B_x, B_w_gate, B_w_up, B_w_down, gate_w):
    def _A_ref(x, Lambda_re, Lambda_im, B_re, B_im, C_re, C_im, log_dt, Dskip):
        Bsz, L, H = x.shape
        Lam = Lambda_re + 1j * Lambda_im
        Bmat = B_re + 1j * B_im
        Cmat = C_re + 1j * C_im
        dt = torch.exp(log_dt)
        Lam_bar = torch.exp(dt * Lam)
        B_bar = ((Lam_bar - 1.0) / Lam)[:, None] * Bmat
        Bu = torch.einsum("bld,pd->blp", x + 0j, B_bar)
        h = torch.zeros_like(Bu[:, 0, :])
        hs = []
        for t in range(L):
            h = Lam_bar[None, :] * h + Bu[:, t, :]
            hs.append(h)
        hseq = torch.stack(hs, 1)
        y = 2.0 * torch.einsum("blp,dp->bld", hseq, Cmat).real + x * Dskip[None, None, :]
        return y

    def _B_ref(x, w_gate, w_up, w_down):
        g = torch.einsum("bsd,df->bsf", x, w_gate)
        u = torch.einsum("bsd,df->bsf", x, w_up)
        h = _gelu(g) * u
        return torch.einsum("bsf,fd->bsd", h, w_down)

    x = A_x
    g = _sigmoid((x * gate_w).sum(-1, keepdims=True))
    a = _A_ref(x, A_Lambda_re, A_Lambda_im, A_B_re, A_B_im, A_C_re, A_C_im, A_log_dt, A_Dskip)
    b = _B_ref(x, B_w_gate, B_w_up, B_w_down)
    return g * a + (1 - g) * b
```

```python
import re

TRANS = ("v_exp_f32","v_log_f32","v_rcp_f32","v_rsq_f32","v_sqrt_f32","v_sin_f32","v_cos_f32","v_rcp_iflag_f32")

def _regs(tok):
    tok = tok.strip()
    neg = tok.lstrip("-")
    if neg.startswith("abs(") or neg.startswith("|"):
        neg = neg.replace("abs(","").replace(")","").replace("|","")
    tok = neg
    m = re.fullmatch(r"([vas])(\d+)", tok)
    if m: return [(m.group(1), int(m.group(2)))]
    m = re.fullmatch(r"([vas])\[(\d+):(\d+)\]", tok)
    if m: return [(m.group(1), i) for i in range(int(m.group(2)), int(m.group(3))+1)]
    if tok == "vcc": return [("s","vcc_lo"),("s","vcc_hi")]
    if tok in ("vcc_lo","vcc_hi","m0"): return [("s",tok)]
    if tok == "exec": return [("s","exec_lo"),("s","exec_hi")]
    if tok in ("exec_lo","exec_hi"): return [("s",tok)]
    return []

def _split_ops(s):
    out=[]; depth=0; cur=""
    for ch in s:
        if ch in "[(": depth+=1
        if ch in "])": depth-=1
        if ch=="," and depth==0: out.append(cur.strip()); cur=""
        else: cur+=ch
    if cur.strip(): out.append(cur.strip())
    return out

class Inst:
    __slots__=("text","op","kind","rd","wr","tok","waits","meta","ws","srcC","data")
    def __init__(self, text, kind=None, **meta):
        self.text=text; self.meta=meta; self.tok=None; self.waits=None; self.srcC=[]; self.data=[]
        self.rd=[]; self.wr=[]
        t=text.split(";")[0].strip()
        if t.endswith(":") or t=="" :
            self.op="label"; self.kind="label"; self.ws=0; return
        parts=t.split(None,1); op=parts[0]; self.op=op
        rest=parts[1] if len(parts)>1 else ""
        ops=_split_ops(rest)
        mods=""
        if ops:
            last=ops[-1].split()
            ops[-1]=last[0]; mods=" ".join(last[1:])
        self.ws=1
        R=lambda i: _regs(ops[i]) if i<len(ops) else []
        if op=="s_nop":
            self.kind="nop"; self.ws=int(ops[0],0)+1
        elif op in("s_waitcnt",):
            self.kind="wait"
        elif op=="s_barrier": self.kind="barrier"
        elif op.startswith("s_cbranch") or op=="s_branch" or op=="s_endpgm" or op=="s_sleep" or op=="s_setprio":
            self.kind="ctrl"
        elif op.startswith("s_load") or op in("s_memtime","s_memrealtime"):
            self.kind="smem"; self.wr=R(0); self.rd=R(1) if op.startswith("s_load") else []
        elif op.startswith("s_cmp") or op.startswith("s_bitcmp"):
            self.kind="salu"
            for i in range(len(ops)): self.rd+=R(i)
        elif op.startswith("s_"):
            self.kind="salu"; self.wr=R(0)
            for i in range(1,len(ops)): self.rd+=R(i)
            if "saveexec" in op: self.wr+=_regs("exec"); self.rd+=_regs("exec")
            if op in("s_addk_i32","s_mulk_i32"): self.rd+=R(0)
        elif op.startswith("v_mfma"):
            self.kind="mfma"; self.wr=R(0); self.rd=R(1)+R(2); self.srcC=R(3)
        elif op.startswith("v_"):
            self.kind="valu"
            if op.startswith("v_cmp"):
                self.wr=R(0)
                for i in range(1,len(ops)): self.rd+=R(i)
                if op.startswith("v_cmpx"): self.wr+=_regs("exec")
            elif op.startswith("v_permlane"):
                self.wr=R(0)+R(1); self.rd=R(0)+R(1)
            elif "_co_" in op:
                self.wr=R(0)+R(1)
                for i in range(2,len(ops)): self.rd+=R(i)
            else:
                self.wr=R(0)
                for i in range(1,len(ops)): self.rd+=R(i)
                if op.startswith("v_fmac") or op.startswith("v_dot2c") or op.startswith("v_pk_fmac") or op=="v_writelane_b32": self.rd+=R(0)
                if op.startswith("v_cndmask") and len(ops)==3: self.rd+=_regs("vcc")
                if "dpp" in op or "row_" in mods or "quad_perm" in mods or "wave_" in mods:
                    self.meta["dpp"]=True
                    self.rd+=R(0)
        elif op.startswith("ds_"):
            self.kind="ds"
            if op.startswith("ds_read") or op.startswith("ds_bpermute") or op.startswith("ds_swizzle"):
                self.wr=R(0)
                for i in range(1,len(ops)): self.rd+=R(i)
            else:
                for i in range(len(ops)): self.rd+=R(i)
                self.data=R(1)
        elif op.startswith("buffer_") or op.startswith("global_"):
            self.kind="vmem"
            lds = ("lds" in mods.split()) or ("_lds_" in op)
            self.meta["lds"]=lds
            if op in("buffer_wbl2","buffer_inv"):
                pass
            elif "load" in op and not lds:
                self.wr=R(0)
                for i in range(1,len(ops)): self.rd+=R(i)
            elif "load" in op and lds:
                for i in range(len(ops)): self.rd+=R(i)
                self.rd+=[("s","m0")]
            elif "atomic" in op:
                for i in range(len(ops)): self.rd+=R(i)
                if "sc0" in mods.split():
                    self.wr=R(0)
            else:
                for i in range(len(ops)): self.rd+=R(i)
                self.data = R(0) if op.startswith("buffer_") else R(1)
        else:
            raise ValueError("unknown op "+text)

class Wait:
    def __init__(self, vm=None, lgkm=None, vm_all=False, lgkm_all=False):
        self.vm=vm; self.lgkm=lgkm; self.vm_all=vm_all; self.lgkm_all=lgkm_all

class Prog:
    def __init__(self):
        self.items=[]
    def I(self, text, **meta):
        out=None
        for line in text.strip().split("\n"):
            line=line.strip()
            if not line: continue
            out=Inst(line, **meta); self.items.append(out)
        return out
    def add(self, item):
        if isinstance(item,(list,tuple)):
            for x in item: self.add(x)
        elif isinstance(item,str): self.I(item)
        else: self.items.append(item)
        return item
    def wait(self, vm=None, lgkm=None, vm_all=False, lgkm_all=False):
        self.items.append(Wait(vm,lgkm,vm_all,lgkm_all))

def mk(text, **meta): return Inst(text, **meta)

def resolve_waits(items):
    out=[]; vmq=[]; lgq=[]; done=set()
    for it in items:
        if isinstance(it,Wait):
            parts=[]
            def need(x): return x if isinstance(x,(list,tuple)) else [x]
            if it.vm_all: n=0
            elif it.vm is not None:
                idx=[vmq.index(t) for t in need(it.vm) if t in vmq]
                for t in need(it.vm):
                    assert (t in vmq) or (id(t) in done), "wait on vm token not issued yet: "+t.text
                n = len(vmq)-1-max(idx) if idx else None
            else: n=None
            if n is not None:
                n=min(n,63); k=len(vmq)-n
                if k>0 or it.vm_all:
                    for t in vmq[:max(k,0)]: done.add(id(t))
                    vmq=vmq[max(k,0):]
                    parts.append(f"vmcnt({n})")
            if it.lgkm_all: m=0
            elif it.lgkm is not None:
                idx=[lgq.index(t) for t in need(it.lgkm) if t in lgq]
                for t in need(it.lgkm):
                    assert (t in lgq) or (id(t) in done), "wait on lgkm token not issued yet: "+t.text
                m = len(lgq)-1-max(idx) if idx else None
                if m is not None and any(x.kind=="smem" for x in lgq): m=0
            else: m=None
            if m is not None:
                m=min(m,15); k=len(lgq)-m
                if k>0 or it.lgkm_all:
                    for t in lgq[:max(k,0)]: done.add(id(t))
                    lgq=lgq[max(k,0):]
                    parts.append(f"lgkmcnt({m})")
            if parts:
                w=Inst("s_waitcnt "+" ".join(parts)); w.meta["auto"]=True; out.append(w)
            continue
        if it.kind=="wait":
            m=re.search(r"vmcnt\((\d+)\)",it.text)
            if m:
                n=int(m.group(1)); k=len(vmq)-n
                if k>0:
                    for t in vmq[:k]: done.add(id(t))
                    vmq=vmq[k:]
            m=re.search(r"lgkmcnt\((\d+)\)",it.text)
            if m:
                n=int(m.group(1)); k=len(lgq)-n
                if k>0:
                    for t in lgq[:k]: done.add(id(t))
                    lgq=lgq[k:]
        if it.kind=="vmem": vmq.append(it)
        if it.kind in("ds","smem"): lgq.append(it)
        out.append(it)
    return out

def check_pending(items):
    vmq=[]; lgq=[]; errs=[]
    def pend():
        d={}
        for t in vmq+lgq:
            for r in t.wr: d[r]=t
        return d
    for it in items:
        if it.kind=="wait":
            m=re.search(r"vmcnt\((\d+)\)",it.text)
            if m:
                n=int(m.group(1)); vmq=vmq[max(len(vmq)-n,0):] if n else []
            m=re.search(r"lgkmcnt\((\d+)\)",it.text)
            if m:
                n=int(m.group(1))
                if any(x.kind=="smem" for x in lgq) and n>0: pass
                else: lgq=lgq[max(len(lgq)-n,0):] if n else []
            continue
        if it.kind in("label","nop","barrier","ctrl"): continue
        p=pend()
        for r in list(it.rd)+list(it.srcC)+list(it.wr):
            if r in p and not it.meta.get("allow_pending"):
                errs.append(f"PENDING {r} from [{p[r].text}] touched by [{it.text}]")
        if it.kind=="vmem": vmq.append(it)
        if it.kind in("ds","smem"): lgq.append(it)
    return errs

def mfma_passes(op):
    if "32x32x16" in op: return 8
    if "16x16x32" in op: return 4
    raise ValueError(op)

def pad_hazards(items, verbose=False):
    out=[]
    hist=[]
    pos=0
    def isv(r): return r[0] in "va"
    npad=0
    for it in items:
        if it.kind=="label":
            out.append(it); continue
        need=0
        rds=set(it.rd)|set(it.srcC); wrs=set(it.wr)
        for (p,ppos) in reversed(hist):
            dist=pos-ppos-p.ws
            if dist>=20: break
            req=0
            pw=set(p.wr)
            if p.kind=="valu":
                vw={r for r in pw if isv(r)}; sw={r for r in pw if r[0]=="s"}
                if it.kind=="mfma" and vw & rds: req=max(req,2)
                if it.kind=="valu":
                    if p.op in TRANS and (vw & rds): req=max(req,1)
                    if it.meta.get("dpp") and (vw & rds): req=max(req,2)
                    if it.op.startswith("v_permlane") and (vw & rds): req=max(req,2)
                    if it.op.startswith("v_readfirstlane") or it.op.startswith("v_readlane"):
                        if vw & rds: req=max(req,1)
                        if sw & rds: req=max(req,4)
                    if sw & rds: req=max(req,2)
                    if p.meta.get("opsel") and (vw & (rds|wrs)): req=max(req,1)
                if it.kind=="vmem" and (sw & rds): req=max(req,5)
                if it.kind in("salu",) and (sw & rds): req=max(req,1)
                if it.kind=="mfma" and any(r[1] in("exec_lo","exec_hi") for r in sw): req=max(req,4)
            if p.kind=="mfma":
                np_=mfma_passes(p.op); big={8:12,4:8}[np_]; ov={8:10,4:6}[np_]; war={8:7,4:3}[np_]
                if it.kind=="mfma":
                    if pw & set(it.rd): req=max(req,big)
                    if pw & set(it.srcC):
                        if not (it.srcC==p.wr and mfma_passes(it.op)==np_): req=max(req,ov)
                    elif pw & wrs: req=max(req,big)
                elif it.kind in("valu","vmem","ds"):
                    if pw & (rds|wrs): req=max(req,big)
                    if it.kind=="valu" and (set(p.srcC) & wrs): req=max(req,war)
            if p.kind in("vmem",) and p.data and len(p.data)>=3:
                if set(p.data) & wrs:
                    req=max(req, 2 if it.kind=="valu" else 1)
            if p.kind=="ds" and p.data and len(p.data)>=3 and (set(p.data)&wrs) and it.kind=="valu":
                req=max(req,2)
            if p.kind=="salu" and ("s","m0") in pw and it.kind=="vmem" and it.meta.get("lds"): req=max(req,1)
            if req>dist: need=max(need,req-dist)
        while need>0:
            n=min(need,16); nop=Inst(f"s_nop {n-1}"); out.append(nop); hist.append((nop,pos)); pos+=nop.ws; need-=n; npad+=1
        out.append(it); hist.append((it,pos)); pos+=it.ws
        if len(hist)>64: hist=hist[-40:]
    return out,npad

def finalize(prog):
    items=resolve_waits(prog.items)
    items,npad=pad_hazards(items)
    errs=check_pending(items)
    return items,npad,errs

def emit(items):
    L=[]
    for it in items:
        L.append(it.text if it.kind=="label" else "    "+it.text)
    return "\n".join(L)+"\n"

def interleave(backbone, fillers, start=0, end=None, per=None):
    n=len(backbone); end=n if end is None else end
    slots=[[] for _ in range(n)]
    m=len(fillers); span=end-start
    for i,f in enumerate(fillers):
        k=start+(i*span)//max(m,1)
        slots[min(k,n-1)].append(f)
    out=[]
    for b,s in zip(backbone,slots):
        out.append(b); out+=s
    return out
```

```python
import sys
from asmb import *

KNAME="gated_mix__ssm_conv_s5__glu_gated_geglu__prompt_kernel"

WS_A=0; WS_E=0xB00000; WS_G=0xB10000; WS_DBG=0xB20000; WS_SIZE=0x4000000
OOB=0x7ff00000
WSLOT=28928; WUP=14464
L_W=0; L_B=86784; L_X=119552; L_EX=152320; L_GL=154368
P_X,P_LRE,P_LIM,P_BRE,P_BIM,P_CRE,P_CIM,P_LDT=4,6,8,10,12,14,16,18
P_DSK,P_BX,P_WG,P_WU,P_WD,P_GW,P_OUT,P_DBG=20,22,24,26,28,30,32,34
P_WS=36
S_C,S_J,S_W,S_C3,S_RH,S_CB=38,39,40,41,42,43
R_X,R_B,R_W,R_WS,R_DBG,R_T,R_T2=44,48,52,56,60,64,68
S_XO,S_BO,S_WO=72,73,74
S_XROW,S_BROW,S_WROW=75,76,77
S_XM,S_BM,S_WM=78,79,80
S_T0,S_T1,S_T2,S_T3=81,82,83,84
S_GT=85
S_M0=86
S_CNT=88
S_K0=89
S_AO=91
V_AO=22
S_RG,S_FO,S_CO=92,93,94
S_A0=96
S_R0,S_D0=98,99
REGION=40960
V_FD=232
V_CD=234
V_FR=238
V_CR=[240,241,242,243]
V_OO=23
A_P3=64
A_KS=48
V_TID,V_L=0,1
V_XG=2
V_BG=6
V_WG=8
V_WA,V_WB=15,16
V_BA=17
V_XA=21
V_T=25
V_ACC=32
V_SRE,V_SIM=144,160
V_WF=176
V_BF=232
V_U=248
A_X=0
A_BF=128
A_K=160

def srd(p, reg, ptr, size):
    p.I(f"s_mov_b32 s{reg}, s{ptr}\ns_mov_b32 s{reg+1}, s{ptr+1}\ns_mov_b32 s{reg+2}, {size}\ns_mov_b32 s{reg+3}, 0x20000")

def sr(r): return f"s[{r}:{r+3}]"
def vr(r,n): return f"v[{r}:{r+n-1}]" if n>1 else f"v{r}"
def ar(r,n): return f"a[{r}:{r+n-1}]" if n>1 else f"a{r}"

class Gen:
    def __init__(self, stop_after=None, opts=None):
        self.p=Prog(); self.stop=stop_after; self.o=opts or {}; self.slow=[]
    def prologue_a(self):
        p=self.p
        p.I("s_cmp_ge_u32 s2, 256\ns_cbranch_scc1 L_exit")
        p.I("s_load_dwordx16 s[4:19], s[0:1], 0"); p.I("s_load_dwordx16 s[20:35], s[0:1], 64"); p.I("s_load_dwordx2 s[36:37], s[0:1], 128")
        p.I(f"v_and_b32 v{V_L}, 63, v0\nv_lshrrev_b32 v{V_T}, 6, v0")
        p.I(f"s_lshr_b32 s{S_C}, s2, 4\ns_and_b32 s{S_J}, s2, 15")
        p.I(f"v_readfirstlane_b32 s{S_W}, v{V_T}")
        l=f"v{V_L}"; T=V_T
        p.I(f"v_lshrrev_b32 v{T}, 5, {l}\nv_lshlrev_b32 v{T}, 4, v{T}\nv_bfe_u32 v{T+1}, {l}, 3, 2\nv_add_u32 v{T}, v{T}, v{T+1}\nv_lshlrev_b32 v{T}, 10, v{T}")
        p.I(f"v_and_b32 v{T+1}, 7, {l}\nv_lshrrev_b32 v{T+2}, 4, {l}\nv_xor_b32 v{T+3}, v{T+1}, v{T+2}\nv_xor_b32 v{T+4}, 4, v{T+3}")
        p.I(f"v_lshlrev_b32 v{T+3}, 4, v{T+3}\nv_lshlrev_b32 v{T+4}, 4, v{T+4}")
        for q in range(4):
            p.I(f"v_add_u32 v{V_XG+q}, v{T}, v{T+3+(q&1)}")
            if q: p.I(f"v_add_u32 v{V_XG+q}, {3072*q}, v{V_XG+q}")
        p.I(f"v_lshrrev_b32 v{T}, 3, {l}\nv_lshlrev_b32 v{T}, 10, v{T}")
        p.I(f"v_add_u32 v{V_BG}, v{T}, v{T+3}\nv_add_u32 v{V_BG+1}, v{T}, v{T+4}\nv_add_u32 v{V_BG+1}, {7*1024}, v{V_BG+1}")
        p.I(f"s_lshl_b32 s{S_T0}, s{S_W}, 12\ns_add_u32 s{S_XM}, s{S_T0}, {L_X}")
        p.I(f"s_lshl_b32 s{S_T1}, s{S_C}, 2\ns_add_u32 s{S_T1}, s{S_T1}, s{S_W}\ns_lshl_b32 s{S_XROW}, s{S_T1}, 15")
        p.I(f"s_and_b32 s{S_T1}, s{S_W}, 1\ns_lshr_b32 s{S_T2}, s{S_W}, 1")
        p.I(f"s_lshl_b32 s{S_T3}, s{S_J}, 1\ns_add_u32 s{S_T3}, s{S_T3}, s{S_T1}\ns_lshl_b32 s{S_BROW}, s{S_T3}, 14")
        p.I(f"s_lshl_b32 s{S_BM}, s{S_T2}, 12\ns_lshl_b32 s{S_T3}, s{S_T1}, 11\ns_add_u32 s{S_BM}, s{S_BM}, s{S_T3}\ns_add_u32 s{S_BM}, s{S_BM}, {L_B}")
        p.I(f"s_mul_i32 s{S_WROW}, s{S_T1}, {32*3584}\ns_mul_i32 s{S_T3}, s{S_J}, 224\ns_add_u32 s{S_WROW}, s{S_WROW}, s{S_T3}")
        p.I(f"s_mul_i32 s{S_WM}, s{S_T2}, {WUP}\ns_mul_i32 s{S_T3}, s{S_T1}, 7168\ns_add_u32 s{S_WM}, s{S_WM}, s{S_T3}")
        p.wait(lgkm_all=True)
        srd(p,R_X,P_X,2048*1024)
        p.I(f"s_cmp_eq_u32 s{S_T2}, 0")
        p.I(f"s_cselect_b32 s{R_B}, s{P_BRE}, s{P_BIM}\ns_cselect_b32 s{R_B+1}, s{P_BRE+1}, s{P_BIM+1}\ns_mov_b32 s{R_B+2}, {512*1024}\ns_mov_b32 s{R_B+3}, 0x20000")
        p.I(f"s_cselect_b32 s{R_W}, s{P_WG}, s{P_WU}\ns_cselect_b32 s{R_W+1}, s{P_WG+1}, s{P_WU+1}\ns_mov_b32 s{R_W+2}, {512*3584}\ns_mov_b32 s{R_W+3}, 0x20000")
    def prologue_b(self):
        p=self.p; l=f"v{V_L}"; T=V_T
        p.I(f"s_mov_b32 s{S_T0}, 4682\ns_mov_b32 s{S_T1}, 3584")
        for i in range(7):
            p.I(f"v_add_u32 v{T}, {64*i}, {l}\nv_mul_lo_u32 v{T+1}, v{T}, s{S_T0}\nv_lshrrev_b32 v{T+1}, 16, v{T+1}")
            p.I(f"v_mul_u32_u24 v{T+2}, 14, v{T+1}\nv_sub_u32 v{T+2}, v{T}, v{T+2}\nv_lshlrev_b32 v{T+2}, 4, v{T+2}")
            p.I(f"v_mul_lo_u32 v{T+1}, v{T+1}, s{S_T1}\nv_add_u32 v{V_WG+i}, v{T+1}, v{T+2}")
            if i&3: p.I(f"v_subrev_u32 v{V_WG+i}, {1024*(i&3)}, v{V_WG+i}")
    def prologue_c(self):
        p=self.p; l=f"v{V_L}"; T=V_T
        p.I(f"v_lshrrev_b32 v{T}, 5, {l}\nv_lshlrev_b32 v{T}, 3, v{T}\nv_bfe_u32 v{T+1}, {l}, 2, 2\nv_add_u32 v{T}, v{T}, v{T+1}\nv_mul_u32_u24 v{T}, 224, v{T}")
        p.I(f"v_bfe_u32 v{T+1}, {l}, 1, 1\nv_mul_u32_u24 v{T+1}, {WUP}, v{T+1}\nv_add_u32 v{T}, v{T}, v{T+1}")
        p.I(f"v_bfe_u32 v{T+1}, {l}, 4, 1\nv_lshlrev_b32 v{T+1}, 4, v{T+1}\nv_add_u32 v{T}, v{T}, v{T+1}")
        p.I(f"v_and_b32 v{T+1}, 1, {l}\nv_lshlrev_b32 v{T+1}, 3, v{T+1}\nv_add_u32 v{V_WA}, v{T}, v{T+1}\nv_add_u32 v{V_WB}, {2*WSLOT}, v{V_WA}")
        p.I(f"v_and_b32 v{T}, 31, {l}\nv_lshlrev_b32 v{T+1}, 7, v{T}\nv_bfe_u32 v{T+2}, {l}, 1, 3\nv_lshrrev_b32 v{T+3}, 5, {l}\nv_xor_b32 v{T+2}, v{T+2}, v{T+3}")
        p.I(f"s_lshl_b32 s{S_T0}, s{S_W}, 12\ns_add_u32 s{S_T0}, s{S_T0}, {L_X}")
        for s in range(4):
            p.I(f"v_xor_b32 v{T+3}, {2*s}, v{T+2}\nv_lshlrev_b32 v{T+3}, 4, v{T+3}\nv_add_u32 v{T+3}, v{T+1}, v{T+3}\nv_add_u32 v{V_BA+s}, {L_B}, v{T+3}\nv_add_u32 v{V_XA+s}, s{S_T0}, v{T+3}")
        srd(p,R_WS,P_WS,WS_SIZE); srd(p,R_DBG,P_DBG,256)
        p.I(f"s_lshr_b32 s{S_T0}, s2, 6\ns_lshl_b32 s{S_T0}, s{S_T0}, 2\ns_bfe_u32 s{S_T1}, s2, 0x20001\ns_add_u32 s{S_C3}, s{S_T0}, s{S_T1}")
        p.I(f"s_and_b32 s{S_RH}, s2, 1\ns_bfe_u32 s{S_CB}, s2, 0x30003")

    def dma_x(self, ch):
        slot=ch&1
        L=[mk(f"s_add_u32 m0, s{S_XM}, {slot*16384}"), mk(f"s_add_u32 s{S_XO}, s{S_XROW}, {ch*128}")]
        toks=[mk(f"buffer_load_dwordx4 v{V_XG+q}, {sr(R_X)}, s{S_XO} offen offset:{1024*q} lds") for q in range(4)]
        return L+toks, toks
    def dma_b(self, ch):
        slot=(ch>>1)&1
        L=[mk(f"s_add_u32 m0, s{S_BM}, {slot*16384+(ch&1)*8192}"), mk(f"s_add_u32 s{S_BO}, s{S_BROW}, {ch*128}")]
        toks=[mk(f"buffer_load_dwordx4 v{V_BG+i}, {sr(R_B)}, s{S_BO} offen offset:{1024*i} lds") for i in range(2)]
        return L+toks, toks
    def dma_w(self, ch):
        slot=ch%3
        L=[mk(f"s_add_u32 m0, s{S_WM}, {slot*WSLOT}"), mk(f"s_add_u32 s{S_WO}, s{S_WROW}, {ch*64*3584}")]
        toks=[]
        for i in range(7):
            if i==4: L.append(mk(f"s_add_u32 m0, s{S_WM}, {slot*WSLOT+4096}"))
            t=mk(f"buffer_load_dwordx4 v{V_WG+i}, {sr(R_W)}, s{S_WO} offen offset:{1024*(i&3)} lds"); toks.append(t); L.append(t)
        return L,toks
    def rd_x(self, ch):
        return [mk(f"ds_read_b128 {ar(A_X+16*ch+4*s,4)}, v{V_XA+s} offset:{(ch&1)*16384}") for s in range(4)]
    def rd_b(self, ch, d, bset):
        base=((ch>>1)&1)*16384+(ch&1)*8192
        L=[]
        for e in range(2):
            for m in range(2):
                L.append(mk(f"ds_read_b128 {ar(A_BF+16*bset+8*e+4*m,4)}, v{V_BA+2*d+e} offset:{base+4096*m}"))
        return L
    def rd_w(self, ch, s, wset):
        slot=ch%3; va=V_WB if slot==2 else V_WA; base=0 if slot==2 else slot*WSLOT
        L=[]
        for i in range(7):
            for q in range(2):
                d=V_WF+28*wset+4*i+2*q
                L.append(mk(f"ds_read_b64_tr_b16 {vr(d,2)}, v{va} offset:{base+(16*s+4*q)*224+32*i}"))
        return L
    def mf_s(self, ch, d, bset):
        L=[]
        for e in range(2):
            s=2*d+e
            x=ar(A_X+16*ch+4*s,4)
            first=(ch==0 and s==0)
            for m,a in enumerate((V_SRE,V_SIM)):
                L.append(mk(f"v_mfma_f32_32x32x16_bf16 {vr(a,16)}, {x}, {ar(A_BF+16*bset+8*e+4*m,4)}, {'0' if first else vr(a,16)}"))
        return L
    def mf_f(self, ch, s, wset):
        x=ar(A_X+16*ch+4*s,4)
        first=(ch==0 and s==0)
        return [mk(f"v_mfma_f32_32x32x16_bf16 {vr(V_ACC+16*i,16)}, {vr(V_WF+28*wset+4*i,4)}, {x}, {'0' if first else vr(V_ACC+16*i,16)}") for i in range(7)]

    def phase1(self, extra):
        p=self.p
        X={};B={};W={}
        def issue(lst):
            for kind,ch in lst:
                L,t={"x":self.dma_x,"b":self.dma_b,"w":self.dma_w}[kind](ch); p.add(L); {"x":X,"b":B,"w":W}[kind][ch]=t
        issue([("x",0),("b",0),("x",1),("b",1)])
        self.prologue_b()
        issue([("w",0),("b",2),("b",3),("w",1)])
        self.prologue_c()
        f=extra.pop("after_first_dma",None)
        if f: f()
        steps=[]
        for g in range(4):
            for ch in (2*g,2*g+1):
                for d in range(2): steps.append(("S",ch,d))
            for s in range(4): steps.append(("F",g,s))
        for ch in range(4,8):
            for s in range(4): steps.append(("F",ch,s))
        setof={}; cnt={"S":0,"F":0}
        for st in steps:
            setof[st]=cnt[st[0]]&1; cnt[st[0]]+=1
        reads={}
        for st in steps:
            k,ch,s=st
            reads[st]=self.rd_b(ch,s,setof[st]) if k=="S" else self.rd_w(ch,s,setof[st])
        xr={ch:self.rd_x(ch) for ch in range(8)}
        rfill={st:[] for st in steps}
        fill={st:[] for st in steps}
        head={st:[] for st in steps}
        for i,st in enumerate(steps[:-1]):
            nx=steps[i+1]
            if st[0]=="S" and nx[0]=="F":
                rfill[steps[i-1]]+=reads[nx][:6]; rfill[st]+=reads[nx][6:]
            else: rfill[st]=reads[nx]+rfill[st]
        p.wait(vm=X[0]+B[0]); p.I("s_barrier")
        p.add(xr[0][0:2]); p.add(reads[steps[0]][:2]); p.add(xr[0][2:]); p.add(reads[steps[0]][2:])
        head[("S",0,1)]+=[Wait(vm=X[1]+B[1]), mk("s_barrier")]
        rfill[("S",0,1)]=xr[1][0:2]+rfill[("S",0,1)]+xr[1][2:]
        L,X[2]=self.dma_x(2); fill[("S",0,1)]+=[Wait(lgkm=xr[0])]+L
        L,X[3]=self.dma_x(3); fill[("S",1,1)]+=[Wait(lgkm=xr[1])]+L
        head[("S",1,0)]+=[Wait(vm=W[0]), mk("s_barrier")]
        L,W[2]=self.dma_w(2); fill[("F",0,0)]+=L
        for g in range(1,4):
            a,b=2*g,2*g+1
            rfill[("F",g-1,1)]+=[Wait(vm=X[a]+X[b])]+xr[a]+xr[b]
            last=("F",g-1,3)
            head[last]+=[Wait(vm=B[a]+B[b]+W[g], lgkm=reads[last]+xr[a]+xr[b]), mk("s_barrier")]
            if g<3:
                L,X[a+2]=self.dma_x(a+2); fill[last]+=L
                L,X[b+2]=self.dma_x(b+2); fill[("S",a,0)]+=L
                L,B[a+2]=self.dma_b(a+2); fill[("S",a,1)]+=L
                L,B[b+2]=self.dma_b(b+2); fill[("S",b,0)]+=L
            L,W[g+2]=self.dma_w(g+2); fill[("F",g,0)]+=L
        for ch in range(4,8):
            last=("F",ch-1,3)
            head[last]+=[Wait(vm=W[ch], lgkm=reads[last]), mk("s_barrier")]
            if ch+2<8:
                L,W[ch+2]=self.dma_w(ch+2); fill[last]+=L[:5]; fill[("F",ch,0)]+=L[5:]
        for k,v in getattr(self,"extra_head",{}).items(): head[k]=list(v)+head[k]
        if getattr(self,"end_barrier",False):
            last=("F",7,3); head[last]+=[Wait(lgkm=reads[last]), mk("s_barrier")]
        if hasattr(self,"g_store"): head[("F",0,3)]=[Wait(vm=self.g_store)]+head[("F",0,3)]
        self.steps=steps
        for k,v in extra.items():
            assert k in fill, k
            fill[k]+=v
        for st in steps:
            k,ch,s=st
            mf=self.mf_s(ch,s,setof[st]) if k=="S" else self.mf_f(ch,s,setof[st])
            p.add(head[st])
            r=reads[st]; n=len(mf)
            slots=[[] for _ in range(n)]
            rf=rfill[st]; per=max(3 if k=="F" else 2, -(-len(rf)//n))
            for t,it in enumerate(rf): slots[min(t//per,n-1)].append(it)
            f=fill[st]
            for t,it in enumerate(f): slots[min((t*n)//max(len(f),1),n-1)].append(it)
            for m,ins in enumerate(mf):
                if k=="S":
                    if m==0: p.wait(lgkm=r[0:2]+[xr[ch][2*s]])
                    if m==2: p.wait(lgkm=r[2:4]+[xr[ch][2*s+1]])
                else:
                    if m==0: p.wait(lgkm=r[0:6]+[xr[ch][s]])
                    if m==3: p.wait(lgkm=r[6:14])
                p.add(ins)
                p.add(slots[m])

    LOG2E=1.4426950408889634
    def fconst(self, sreg, val):
        import struct
        return f"s_mov_b32 s{sreg}, 0x{struct.unpack('<I',struct.pack('<f',val))[0]:08x}"

    def gate_and_consts(self):
        p=self.p; l=f"v{V_L}"
        t=V_ACC
        srd(p,R_T,P_GW,1024)
        p.I(f"v_lshlrev_b32 v{t}, 4, {l}")
        p.I(f"s_lshl_b32 s{S_T0}, s{S_C}, 7\ns_lshl_b32 s{S_T1}, s{S_J}, 3\ns_add_u32 s{S_T0}, s{S_T0}, s{S_T1}\ns_lshl_b32 s{S_T1}, s{S_W}, 1\ns_add_u32 s{S_GT}, s{S_T0}, s{S_T1}")
        p.I(f"s_lshl_b32 s{S_T0}, s{S_GT}, 10")
        X0,X1,GW=t+4,t+8,t+12
        l0=p.I(f"buffer_load_dwordx4 {vr(X0,4)}, v{t}, {sr(R_X)}, s{S_T0} offen")
        l1=p.I(f"buffer_load_dwordx4 {vr(X1,4)}, v{t}, {sr(R_X)}, s{S_T0} offen offset:1024")
        l2=p.I(f"buffer_load_dwordx4 {vr(GW,4)}, v{t}, {sr(R_T)}, 0 offen")
        p.I(f"v_and_b32 v{t+1}, 31, {l}\ns_lshl_b32 s{S_T1}, s{S_J}, 6\nv_lshlrev_b32 v{t+1}, 1, v{t+1}\nv_add_u32 v{t+1}, s{S_T1}, v{t+1}")
        K=t+40
        toks=[]
        for i,ptr in enumerate((P_LRE,P_LIM,P_LDT)):
            srd(p,R_T2,ptr,1024)
            toks.append(p.I(f"buffer_load_ushort v{K+i}, v{t+1}, {sr(R_T2)}, 0 offen"))
        p.wait(vm=[l0,l1,l2])
        GL,GH=t+16,t+20
        for i in range(4):
            p.I(f"v_lshlrev_b32 v{GL+i}, 16, v{GW+i}\nv_and_b32 v{GH+i}, 0xffff0000, v{GW+i}")
        A0,A1=t+24,t+25; u=t+26
        for row,(X,A) in enumerate(((X0,A0),(X1,A1))):
            for i in range(4):
                p.I(f"v_lshlrev_b32 v{u}, 16, v{X+i}\nv_and_b32 v{u+1}, 0xffff0000, v{X+i}\nv_mul_f32 v{u}, v{u}, v{GL+i}\nv_mul_f32 v{u+1}, v{u+1}, v{GH+i}")
                p.I(f"v_cvt_pk_bf16_f32 v{u+2}, v{u}, v{u+1}\nv_lshlrev_b32 v{u}, 16, v{u+2}\nv_and_b32 v{u+1}, 0xffff0000, v{u+2}")
                if i==0: p.I(f"v_add_f32 v{A}, v{u}, v{u+1}")
                else: p.I(f"v_add_f32 v{A}, v{A}, v{u}\nv_add_f32 v{A}, v{A}, v{u+1}")
        for sh in (8,4,2,1):
            for A in (A0,A1): p.I(f"v_add_f32_dpp v{A}, v{A}, v{A} row_ror:{sh} row_mask:0xf bank_mask:0xf")
        for r,A in enumerate((A0,A1)):
            for q in range(1,4): p.I(f"v_readlane_b32 s{S_T0+q}, v{A}, {16*q}")
            p.I(f"v_readlane_b32 s{S_T0}, v{A}, 0")
            p.I(f"v_mov_b32 v{A}, s{S_T0}\nv_add_f32 v{A}, s{S_T0+1}, v{A}\nv_add_f32 v{A}, s{S_T0+2}, v{A}\nv_add_f32 v{A}, s{S_T0+3}, v{A}")
        p.I(f"v_cmp_eq_u32 vcc, 1, {l}\nv_cndmask_b32 v{A0}, v{A0}, v{A1}, vcc")
        p.I(f"v_cvt_pk_bf16_f32 v{A0}, v{A0}, v{A0}\nv_lshlrev_b32 v{A0}, 16, v{A0}")
        p.I(self.fconst(S_T0,-self.LOG2E))
        p.I(f"v_mul_f32 v{A0}, s{S_T0}, v{A0}\nv_exp_f32 v{A0}, v{A0}\nv_add_f32 v{A0}, 1.0, v{A0}\nv_rcp_f32 v{A0}, v{A0}")
        p.I(f"v_cvt_pk_bf16_f32 v{A0}, v{A0}, v{A0}\nv_lshlrev_b32 v{A0}, 16, v{A0}")
        p.I(f"v_lshlrev_b32 v{u}, 2, {l}\ns_lshl_b32 s{S_T0}, s{S_GT}, 2\ns_add_u32 s{S_T0}, s{S_T0}, {WS_G}\nv_add_u32 v{u}, s{S_T0}, v{u}")
        p.I(f"v_mov_b32 v{u+1}, {OOB}\nv_cmp_gt_u32 vcc, 2, {l}\nv_cndmask_b32 v{u}, v{u+1}, v{u}, vcc")
        self.g_store=p.I(f"buffer_store_dword v{A0}, v{u}, {sr(R_WS)}, 0 offen sc1")
        p.wait(vm=toks)
        LR,LI,DT=K,K+1,K+2
        p.I(f"v_lshlrev_b32 v{LR}, 16, v{LR}\nv_lshlrev_b32 v{LI}, 16, v{LI}\nv_lshlrev_b32 v{DT}, 16, v{DT}")
        p.I(self.fconst(S_T0,self.LOG2E)); p.I(self.fconst(S_T1,0.15915494309189535))
        p.I(f"v_mul_f32 v{DT}, s{S_T0}, v{DT}\nv_exp_f32 v{DT}, v{DT}\ns_nop 0\nv_cvt_pk_bf16_f32 v{DT}, v{DT}, v{DT}\nv_lshlrev_b32 v{DT}, 16, v{DT}")
        AE,AN=K+3,K+4
        p.I(f"v_mul_f32 v{AE}, v{DT}, v{LR}\nv_mul_f32 v{AN}, v{DT}, v{LI}\nv_mul_f32 v{AE}, s{S_T0}, v{AE}\nv_mul_f32 v{AN}, s{S_T1}, v{AN}")
        SG=K+5
        p.I(f"v_lshrrev_b32 v{SG}, 5, {l}\ns_lshl_b32 s{S_T2}, s{S_W}, 1\nv_add_u32 v{SG}, s{S_T2}, v{SG}\nv_lshlrev_b32 v{SG}, 4, v{SG}\nv_cvt_f32_u32 v{SG}, v{SG}")
        R=K+8
        def cexp(dst, mul):
            m,a,c=K+6,K+7,dst
            if mul is None:
                p.I(f"v_mov_b32 v{m}, v{AE}\nv_mov_b32 v{a}, v{AN}")
            else:
                p.I(f"v_mul_f32 v{m}, {mul}, v{AE}\nv_mul_f32 v{a}, {mul}, v{AN}")
            p.I(f"v_exp_f32 v{m}, v{m}\nv_fract_f32 v{a}, v{a}\nv_cos_f32 v{dst}, v{a}\nv_sin_f32 v{dst+1}, v{a}\ns_nop 0\nv_mul_f32 v{dst}, v{m}, v{dst}\nv_mul_f32 v{dst+1}, v{m}, v{dst+1}")
        cexp(R,None)
        p.I(self.fconst(S_T2,16.0)); cexp(R+2,f"s{S_T2}")
        p.I(self.fconst(S_T2,128.0)); cexp(R+4,f"s{S_T2}")
        cexp(R+6,f"v{SG}")
        NR,DEN,u2=K+6,K+7,K+20
        p.I(f"v_add_f32 v{NR}, -1.0, v{R}\nv_mul_f32 v{DEN}, v{LR}, v{LR}\nv_fmac_f32 v{DEN}, v{LI}, v{LI}\nv_rcp_f32 v{DEN}, v{DEN}")
        p.I(f"v_mul_f32 v{u2}, v{NR}, v{LR}\nv_fmac_f32 v{u2}, v{R+1}, v{LI}\nv_mul_f32 v{u2+1}, v{R+1}, v{LR}\nv_fma_f32 v{u2+1}, -v{NR}, v{LI}, v{u2+1}")
        p.I(f"v_add_f32 v{DEN}, v{DEN}, v{DEN}\nv_mul_f32 v{R+8}, v{u2}, v{DEN}\nv_mul_f32 v{R+9}, v{u2+1}, v{DEN}")
        for i in range(10): p.I(f"v_accvgpr_write_b32 a{A_K+i}, v{R+i}")

    def flag_op(self, op, idx_sgpr_expr_items, valsrc):
        L=[mk(x) for x in idx_sgpr_expr_items]
        L+=[mk(f"s_cmp_eq_u32 s{S_W}, 0"), mk(f"s_cselect_b32 s{S_T0}, s{S_T0}, {OOB}"),
            mk(f"v_mov_b32 v{V_U+6}, {OOB}"), mk(f"v_mov_b32 v{V_U+7}, s{S_T0}"), mk(f"v_cmp_eq_u32 vcc, 0, v{V_L}"),
            mk(f"v_cndmask_b32 v{V_U+6}, v{V_U+6}, v{V_U+7}, vcc"), mk(f"v_mov_b32 v{V_U+7}, {valsrc}"),
            mk(f"buffer_atomic_{op} v{V_U+7}, v{V_U+6}, {sr(R_DBG)}, 0 offen sc1")]
        return L

    def pass1(self):
        lr,li=V_U,V_U+1; e=[(V_T,V_T+1),(V_T+2,V_T+3)]
        e=[(26,27),(28,29)]
        L=[mk(f"v_accvgpr_read_b32 v{lr}, a{A_K}"), mk(f"v_accvgpr_read_b32 v{li}, a{A_K+1}")]
        L+=[mk(f"v_lshrrev_b32 v{V_U+2}, 5, v{V_L}"), mk(f"s_lshl_b32 s{S_T0}, s{S_W}, 1"), mk(f"v_add_u32 v{V_U+2}, s{S_T0}, v{V_U+2}"), mk(f"v_lshlrev_b32 v{V_U+2}, 8, v{V_U+2}"),
            mk(f"v_and_b32 v{V_U+3}, 31, v{V_L}"), mk(f"v_lshlrev_b32 v{V_U+3}, 3, v{V_U+3}"), mk(f"v_add_u32 v{V_U+3}, {L_EX}, v{V_U+3}"), mk(f"v_add_u32 v{V_U+2}, v{V_U+2}, v{V_U+3}")]
        cr,ci=V_SRE,V_SIM
        for r in range(1,16):
            nr,ni=e[r&1]
            L+=[mk(f"v_fma_f32 v{nr}, v{lr}, v{cr}, v{V_SRE+r}"), mk(f"v_fma_f32 v{ni}, v{lr}, v{ci}, v{V_SIM+r}"),
                mk(f"v_fma_f32 v{nr}, -v{li}, v{ci}, v{nr}"), mk(f"v_fma_f32 v{ni}, v{li}, v{cr}, v{ni}")]
            cr,ci=nr,ni
        w=mk(f"ds_write_b64 v{V_U+2}, {vr(cr,2)}"); L.append(w)
        return L,w

    def exchange(self):
        ER=V_U+3
        l16r,l16i=V_U,V_U+1
        L=[mk(f"v_accvgpr_read_b32 v{l16r}, a{A_K+2}"), mk(f"v_accvgpr_read_b32 v{l16i}, a{A_K+3}")]
        rd=[mk(f"ds_read_b64 {ar(A_K+16+2*k,2)}, v{ER} offset:{256*k}") for k in range(8)]
        L+=rd
        Pr,Pi=26,27; Nr,Ni=28,29; Er,Ei=30,31; Sr,Si=V_U+4,V_U+5
        L+=[Wait(lgkm=rd[:2]), mk(f"v_accvgpr_read_b32 v{Pr}, a{A_K+16}"), mk(f"v_accvgpr_read_b32 v{Pi}, a{A_K+17}"),
            mk(f"v_mov_b32 v{Sr}, 0"), mk(f"v_mov_b32 v{Si}, 0"), mk(f"s_lshl_b32 s{S_T0}, s{S_W}, 1"), mk(f"s_add_u32 s{S_T1}, s{S_T0}, 1")]
        for k in range(1,8):
            L+=[mk(f"s_cmp_eq_u32 s{S_T0}, {k}"), mk(f"s_cselect_b32 s{S_M0}, -1, 0"), mk(f"s_cmp_eq_u32 s{S_T1}, {k}"), mk(f"s_cselect_b32 s{S_M0+1}, -1, 0"),
                Wait(lgkm=rd[k]), mk(f"v_accvgpr_read_b32 v{Er}, a{A_K+16+2*k}"), mk(f"v_accvgpr_read_b32 v{Ei}, a{A_K+17+2*k}"),
                mk(f"v_cndmask_b32 v{Sr}, v{Sr}, v{Pr}, s[{S_M0}:{S_M0+1}]"), mk(f"v_cndmask_b32 v{Si}, v{Si}, v{Pi}, s[{S_M0}:{S_M0+1}]"),
                mk(f"v_fma_f32 v{Nr}, v{l16r}, v{Pr}, v{Er}"), mk(f"v_fma_f32 v{Ni}, v{l16r}, v{Pi}, v{Ei}"),
                mk(f"v_fma_f32 v{Nr}, -v{l16i}, v{Pi}, v{Nr}"), mk(f"v_fma_f32 v{Ni}, v{l16i}, v{Pr}, v{Ni}")]
            Pr,Pi,Nr,Ni=Nr,Ni,Pr,Pi
        L+=[mk(f"v_accvgpr_write_b32 a{A_KS+10}, v{Sr}"), mk(f"v_accvgpr_write_b32 a{A_KS+11}, v{Si}")]
        L+=[mk(f"s_lshl_b32 s{S_T0}, s{S_C}, 12"), mk(f"s_lshl_b32 s{S_T1}, s{S_J}, 8"), mk(f"s_add_u32 s{S_T0}, s{S_T0}, s{S_T1}"), mk(f"s_add_u32 s{S_T0}, s{S_T0}, {WS_E}"),
            mk(f"s_cmp_eq_u32 s{S_W}, 0"), mk(f"s_cselect_b32 s{S_T0}, s{S_T0}, {OOB}"),
            mk(f"v_lshlrev_b32 v{Er}, 3, v{V_L}"), mk(f"v_add_u32 v{Er}, s{S_T0}, v{Er}"), mk(f"v_mov_b32 v{Ei}, {OOB}"), mk(f"v_cmp_gt_u32 vcc, 32, v{V_L}"),
            mk(f"v_cndmask_b32 v{Er}, v{Ei}, v{Er}, vcc")]
        st=mk(f"buffer_store_dwordx2 {vr(Pr,2)}, v{Er}, {sr(R_WS)}, 0 offen sc1"); L.append(st)
        return L,st

    def poll_issue(self, vdst, off_items):
        L=[mk(x) for x in off_items]
        L+=[mk(f"v_mov_b32 v{vdst}, {OOB}"), mk(f"v_mov_b32 v{V_U+7}, s{S_T0}"), mk(f"v_cmp_eq_u32 vcc, 0, v{V_L}"), mk(f"v_cndmask_b32 v{vdst+1}, v{vdst}, v{V_U+7}, vcc")]
        t=mk(f"buffer_load_dword v{vdst}, v{vdst+1}, {sr(R_DBG)}, 0 offen sc1"); L.append(t)
        return L,t
    def poll_check(self, name, vdst, tok, cond_items):
        L=[Wait(vm=tok), mk(f"v_readlane_b32 s{S_T0}, v{vdst}, 0")]+[mk(x) for x in cond_items]
        L+=[mk(f"s_cbranch_scc0 L_slow_{name}"), mk(f"L_back_{name}:")]
        S=[f"L_slow_{name}:", f"s_mov_b32 s{S_CNT}, 0", f"L_loop_{name}:", "s_sleep 2",
           f"buffer_load_dword v{vdst}, v{vdst+1}, {sr(R_DBG)}, 0 offen sc1", "s_waitcnt vmcnt(0)",
           f"v_readlane_b32 s{S_T0}, v{vdst}, 0", "s_nop 1", f"s_add_u32 s{S_CNT}, s{S_CNT}, 1", f"s_cmp_gt_u32 s{S_CNT}, 200000", f"s_cbranch_scc1 L_back_{name}"]
        S+=cond_items+[f"s_cbranch_scc1 L_back_{name}", f"s_branch L_loop_{name}"]
        self.slow+=S
        return L

    def g_loads(self):
        L=[]
        T=V_T
        L+=[mk(f"v_bfe_u32 v{T}, v{V_L}, 2, 1"), mk(f"v_lshlrev_b32 v{T}, 4, v{T}"), mk(f"v_bfe_u32 v{T+1}, v{V_L}, 3, 2"), mk(f"v_lshlrev_b32 v{T+1}, 2, v{T+1}"),
            mk(f"v_add_u32 v{T}, v{T}, v{T+1}"), mk(f"v_and_b32 v{T+1}, 3, v{V_L}"), mk(f"v_add_u32 v{T}, v{T}, v{T+1}"), mk(f"v_lshlrev_b32 v{T}, 2, v{T}"),
            mk(f"s_lshl_b32 s{S_T0}, s{S_C}, 2"), mk(f"s_add_u32 s{S_T0}, s{S_T0}, s{S_W}"), mk(f"s_lshl_b32 s{S_T0}, s{S_T0}, 7"), mk(f"s_add_u32 s{S_T0}, s{S_T0}, {WS_G}")]
        t0=mk(f"buffer_load_dword v14, v{T}, {sr(R_WS)}, s{S_T0} offen sc1"); L.append(t0)
        L+=[mk(f"v_lshrrev_b32 v{T+1}, 5, v{V_L}"), mk(f"v_lshlrev_b32 v{T+1}, 6, v{T+1}")]
        toks=[t0]
        for i,r in enumerate((2,6,10,18)):
            t=mk(f"buffer_load_dwordx4 {vr(r,4)}, v{T+1}, {sr(R_WS)}, s{S_T0} offen offset:{16*i} sc1"); L.append(t); toks.append(t)
        return L,toks
    GREG=[2,3,4,5,6,7,8,9,10,11,12,13,18,19,20,21]

    def e_loads(self):
        T=V_T
        L=[mk(f"v_and_b32 v{T+2}, 31, v{V_L}"), mk(f"v_lshlrev_b32 v{T+2}, 3, v{T+2}"), mk(f"s_lshl_b32 s{S_T1}, s{S_J}, 8"), mk(f"s_add_u32 s{S_T1}, s{S_T1}, {WS_E}"), mk(f"v_add_u32 v{T+2}, s{S_T1}, v{T+2}")]
        toks=[]
        for m in range(15):
            a=T+3+(m&1)
            L+=[mk(f"s_sub_u32 s{S_T0}, s{S_C}, {m+1}"), mk(f"s_lshl_b32 s{S_T0}, s{S_T0}, 12"), mk(f"s_cmp_gt_u32 s{S_C}, {m}"), mk(f"s_cselect_b32 s{S_T0}, s{S_T0}, {OOB}"),
                mk(f"v_add_u32 v{a}, s{S_T0}, v{T+2}")]
            t=mk(f"buffer_load_dwordx2 {ar(2*m,2)}, v{a}, {sr(R_WS)}, 0 offen sc1"); L.append(t); toks.append(t)
        return L,toks

    def ffn_epilogue(self, gtok):
        L=[]; st=[]
        IR=V_WF; C0,C1=S_K0,S_K0+1
        T=V_WF+2
        L+=[Wait(vm=gtok), mk(f"v_sub_f32 v{IR}, 1.0, v14"), mk(f"v_cvt_pk_bf16_f32 v{IR}, v{IR}, v{IR}"), mk(f"v_lshlrev_b32 v{IR}, 16, v{IR}"), mk(f"v_rcp_f32 v{IR}, v{IR}"),
            mk(self.fconst(S_T0,1e30)), mk(f"v_min_f32 v{IR}, s{S_T0}, v{IR}")]
        k0=-2.0*0.7978845608028654*self.LOG2E
        L+=[mk(self.fconst(C0,k0)), mk(self.fconst(C1,k0*0.044715))]
        L+=[mk(f"v_mov_b32 v{IR+1}, s{C0}")]
        L+=[mk(f"s_lshl_b32 s{S_AO}, s{S_C}, 2"), mk(f"s_add_u32 s{S_AO}, s{S_AO}, s{S_W}"), mk(f"s_mul_i32 s{S_AO}, s{S_AO}, 176"), mk(f"s_mul_i32 s{S_T0}, s{S_J}, 11"),
            mk(f"s_add_u32 s{S_AO}, s{S_AO}, s{S_T0}"), mk(f"s_lshl_b32 s{S_AO}, s{S_AO}, 10"), mk(f"v_lshlrev_b32 v{V_AO}, 4, v{V_L}")]
        for i in range(7):
            a=V_ACC+16*i
            o=T+24*(i&1)
            Z,Pd,K=o,o+8,o+16
            pr=[(a+j,a+4+j) for j in range(4)]+[(a+8+j,a+12+j) for j in range(4)]
            for e,(g,u) in enumerate(pr): L.append(mk(f"v_mul_f32 v{Z+e}, v{g}, v{g}"))
            for e,(g,u) in enumerate(pr): L.append(mk(f"v_fma_f32 v{Z+e}, v{Z+e}, s{C1}, v{IR+1}"))
            for e,(g,u) in enumerate(pr): L.append(mk(f"v_mul_f32 v{Z+e}, v{g}, v{Z+e}"))
            for e,(g,u) in enumerate(pr):
                L.append(mk(f"v_exp_f32 v{Z+e}, v{Z+e}")); L.append(mk(f"v_mul_f32 v{Pd+e}, v{g}, v{u}"))
            for e in range(8): L.append(mk(f"v_fma_f32 v{Z+e}, v{Z+e}, v{IR}, v{IR}"))
            for e in range(8): L.append(mk(f"v_rcp_f32 v{Z+e}, v{Z+e}"))
            for e in range(8): L.append(mk(f"v_mul_f32 v{Pd+e}, v{Pd+e}, v{Z+e}"))
            for e in range(4): L.append(mk(f"v_cvt_pk_bf16_f32 v{K+e}, v{Pd+2*e}, v{Pd+2*e+1}"))
            off=1024*i
            if i==4: L.append(mk(f"s_add_u32 s{S_AO}, s{S_AO}, 4096"))
            t=mk(f"buffer_store_dwordx4 {vr(K,4)}, v{V_AO}, {sr(R_WS)}, s{S_AO} offen offset:{1024*(i&3)} sc1"); L.append(t); st.append(t)
        return L,st

    def ssm_epilogue(self, etok, gtok, tbase_items):
        L=[]; st=[]
        LR,LI,QR,QI,SR_,SI=32,33,34,35,36,37
        HR,HI,NR,NI=38,39,40,41
        L+=[mk(f"v_accvgpr_read_b32 v{QR}, a{A_KS+4}"), mk(f"v_accvgpr_read_b32 v{QI}, a{A_KS+5}")]
        L+=[Wait(vm=etok), mk(f"v_accvgpr_read_b32 v{HR}, a28"), mk(f"v_accvgpr_read_b32 v{HI}, a29")]
        er,ei=42,43
        for m in range(13,-1,-1):
            L+=[mk(f"v_accvgpr_read_b32 v{er}, a{2*m}"), mk(f"v_accvgpr_read_b32 v{ei}, a{2*m+1}"),
                mk(f"v_fma_f32 v{NR}, v{QR}, v{HR}, v{er}"), mk(f"v_fma_f32 v{NI}, v{QR}, v{HI}, v{ei}"),
                mk(f"v_fma_f32 v{NR}, -v{QI}, v{HI}, v{NR}"), mk(f"v_fma_f32 v{NI}, v{QI}, v{HR}, v{NI}")]
            HR,HI,NR,NI=NR,NI,HR,HI
        L+=[mk(f"v_accvgpr_read_b32 v{QR}, a{A_KS+6}"), mk(f"v_accvgpr_read_b32 v{QI}, a{A_KS+7}"), mk(f"v_accvgpr_read_b32 v{er}, a{A_KS+10}"), mk(f"v_accvgpr_read_b32 v{ei}, a{A_KS+11}"),
            mk(f"v_fma_f32 v{NR}, v{QR}, v{HR}, v{er}"), mk(f"v_fma_f32 v{NI}, v{QR}, v{HI}, v{ei}"),
            mk(f"v_fma_f32 v{NR}, -v{QI}, v{HI}, v{NR}"), mk(f"v_fma_f32 v{NI}, v{QI}, v{HR}, v{NI}")]
        HR,HI,NR,NI=NR,NI,HR,HI
        L+=[mk(f"v_accvgpr_read_b32 v{LR}, a{A_KS}"), mk(f"v_accvgpr_read_b32 v{LI}, a{A_KS+1}"), mk(f"v_accvgpr_read_b32 v{SR_}, a{A_KS+8}"), mk(f"v_accvgpr_read_b32 v{SI}, a{A_KS+9}"), Wait(vm=gtok)]
        for r in range(16):
            g=self.GREG[r]
            L+=[mk(f"v_fma_f32 v{NR}, v{LR}, v{HR}, v{V_SRE+r}"), mk(f"v_fma_f32 v{NI}, v{LR}, v{HI}, v{V_SIM+r}"),
                mk(f"v_fma_f32 v{NR}, -v{LI}, v{HI}, v{NR}"), mk(f"v_fma_f32 v{NI}, v{LI}, v{HR}, v{NI}")]
            HR,HI,NR,NI=NR,NI,HR,HI
            L+=[mk(f"v_mul_f32 v{er}, v{SR_}, v{HR}"), mk(f"v_mul_f32 v{ei}, v{SR_}, v{HI}"),
                mk(f"v_fma_f32 v{er}, -v{SI}, v{HI}, v{er}"), mk(f"v_fma_f32 v{ei}, v{SI}, v{HR}, v{ei}"),
                mk(f"v_mul_f32 v{V_SRE+r}, v{g}, v{er}"), mk(f"v_mul_f32 v{V_SIM+r}, -v{g}, v{ei}")]
        PK=64
        for m,base in enumerate((V_SRE,V_SIM)):
            for e in range(8): L.append(mk(f"v_cvt_pk_bf16_f32 v{PK+8*m+e}, v{base+2*e}, v{base+2*e+1}"))
        TW,TR0,TR1=44,45,46
        L+=tbase_items
        n_=47
        L+=[mk(f"v_and_b32 v{n_}, 31, v{V_L}"), mk(f"v_lshlrev_b32 v{TW}, 6, v{n_}"), mk(f"v_bfe_u32 v{n_+1}, v{V_L}, 1, 2"),
            mk(f"v_lshrrev_b32 v{n_+2}, 5, v{V_L}"), mk(f"v_lshlrev_b32 v{n_+2}, 1, v{n_+2}"),
            mk(f"v_xor_b32 v{n_+2}, v{n_+2}, v{n_+1}"),
            mk(f"v_lshlrev_b32 v{n_+3}, 4, v{n_+2}"), mk(f"v_xor_b32 v{n_+2}, 1, v{n_+2}"), mk(f"v_lshlrev_b32 v{n_+2}, 4, v{n_+2}"),
            mk(f"v_add_u32 v{TW}, s{S_T0}, v{TW}"), mk(f"v_add_u32 v{n_+2}, v{TW}, v{n_+2}"), mk(f"v_add_u32 v{TW}, v{TW}, v{n_+3}")]
        wr=[]
        for m in range(2):
            wr.append(mk(f"ds_write_b128 v{TW}, {vr(PK+8*m,4)} offset:{2048*m}")); wr.append(mk(f"ds_write_b128 v{n_+2}, {vr(PK+8*m+4,4)} offset:{2048*m}"))
        L+=wr
        a=n_+4
        L+=[mk(f"v_lshrrev_b32 v{a}, 5, v{V_L}"), mk(f"v_lshlrev_b32 v{a}, 3, v{a}"), mk(f"v_bfe_u32 v{a+1}, v{V_L}, 2, 2"), mk(f"v_add_u32 v{a}, v{a}, v{a+1}"), mk(f"v_lshlrev_b32 v{a}, 6, v{a}"),
            mk(f"v_and_b32 v{a+1}, 1, v{V_L}"), mk(f"v_lshlrev_b32 v{a+1}, 1, v{a+1}"), mk(f"v_bfe_u32 v{a+2}, v{V_L}, 4, 1"), mk(f"v_add_u32 v{a+1}, v{a+1}, v{a+2}"),
            mk(f"v_bfe_u32 v{a+2}, v{V_L}, 3, 1"), mk(f"v_xor_b32 v{a+1}, v{a+1}, v{a+2}"),
            mk(f"v_bfe_u32 v{a+2}, v{V_L}, 1, 1"), mk(f"v_lshlrev_b32 v{a+2}, 3, v{a+2}"), mk(f"v_add_u32 v{a}, v{a}, v{a+2}"), mk(f"v_add_u32 v{a}, s{S_T0}, v{a}"),
            mk(f"v_lshlrev_b32 v{a+2}, 4, v{a+1}"), mk(f"v_add_u32 v{TR0}, v{a}, v{a+2}"),
            mk(f"v_xor_b32 v{a+1}, 2, v{a+1}"), mk(f"v_lshlrev_b32 v{a+2}, 4, v{a+1}"), mk(f"v_add_u32 v{TR1}, v{a}, v{a+2}"), mk(f"v_add_u32 v{TR1}, 256, v{TR1}")]
        L+=[Wait(lgkm=wr)]
        OUT=80
        rd=[]
        for b in range(4):
            m,mu=b>>1,b&1
            rd.append(mk(f"ds_read_b64_tr_b16 {vr(OUT+4*b,2)}, v{TR0} offset:{2048*m+1024*mu}")); rd.append(mk(f"ds_read_b64_tr_b16 {vr(OUT+4*b+2,2)}, v{TR1} offset:{2048*m+1024*mu}"))
        L+=rd
        L+=[mk(f"s_add_u32 s{S_AO}, s{S_AO}, 3072")]
        for b in range(4):
            t=mk(f"buffer_store_dwordx4 {vr(OUT+4*b,4)}, v{V_AO}, {sr(R_WS)}, s{S_AO} offen offset:{1024*b} sc1")
            L+=[Wait(lgkm=rd[2*b:2*b+2]), t]; st.append(t)
        self.t_reads=rd
        return L,st

    def copy_consts(self):
        return [mk(f"v_accvgpr_mov_b32 a{A_KS+i}, a{A_K+i}") for i in range(10)]

    def p3_patterns(self):
        l=f"v{V_L}"; a,b,c=V_T,V_T+1,30
        L=[]
        A=lambda x: L.append(mk(x))
        A(f"s_mul_i32 s{S_RG}, s{S_W}, {REGION}")
        A(f"v_lshrrev_b32 v{a}, 3, {l}"); A(f"v_lshlrev_b32 v{a}, 10, v{a}"); A(f"v_bfe_u32 v{b}, {l}, 4, 1"); A(f"v_lshlrev_b32 v{b}, 2, v{b}"); A(f"v_and_b32 v{c}, 7, {l}")
        A(f"v_xor_b32 v{b}, v{b}, v{c}"); A(f"v_lshlrev_b32 v{b}, 4, v{b}"); A(f"v_add_u32 v{V_FD}, v{a}, v{b}"); A(f"v_add_u32 v{V_FD+1}, 7168, v{V_FD}")
        A(f"v_lshrrev_b32 v{b}, 4, {l}"); A(f"v_xor_b32 v{b}, v{b}, v{c}"); A(f"v_xor_b32 v{c}, 4, v{b}"); A(f"v_lshlrev_b32 v{b}, 4, v{b}"); A(f"v_lshlrev_b32 v{c}, 4, v{c}")
        for q in range(4):
            A(f"v_add_u32 v{V_CD+q}, v{a}, v{b if q%2==0 else c}")
            if q: A(f"v_add_u32 v{V_CD+q}, {7168*q}, v{V_CD+q}")
        A(f"v_lshrrev_b32 v{a}, 5, {l}"); A(f"v_lshlrev_b32 v{a}, 2, v{a}"); A(f"v_bfe_u32 v{b}, {l}, 2, 2"); A(f"v_add_u32 v{a}, v{a}, v{b}"); A(f"v_lshlrev_b32 v{a}, 7, v{a}")
        A(f"v_bfe_u32 v{b}, {l}, 4, 1"); A(f"v_lshlrev_b32 v{b}, 5, v{b}"); A(f"v_add_u32 v{a}, v{a}, v{b}"); A(f"v_and_b32 v{b}, 3, {l}"); A(f"v_lshlrev_b32 v{b}, 3, v{b}"); A(f"v_add_u32 v{a}, v{a}, v{b}")
        A(f"v_add_u32 v{a}, s{S_RG}, v{a}"); A(f"v_bfe_u32 v{b}, {l}, 3, 1"); A(f"v_lshlrev_b32 v{b}, 6, v{b}"); A(f"v_add_u32 v{V_FR}, v{a}, v{b}"); A(f"v_xor_b32 v{b}, 64, v{b}"); A(f"v_add_u32 v{V_FR+1}, v{a}, v{b}")
        A(f"v_and_b32 v{a}, 31, {l}"); A(f"v_lshlrev_b32 v{a}, 7, v{a}"); A(f"v_add_u32 v{a}, s{S_RG}, v{a}"); A(f"v_bfe_u32 v{b}, {l}, 1, 3"); A(f"v_lshrrev_b32 v{c}, 5, {l}"); A(f"v_xor_b32 v{b}, v{b}, v{c}")
        for s in range(4):
            A(f"v_xor_b32 v{c}, {2*s}, v{b}"); A(f"v_lshlrev_b32 v{c}, 4, v{c}"); A(f"v_add_u32 v{V_CR[s]}, v{a}, v{c}")
        A(f"s_mul_i32 s{S_FO}, s{S_W}, {448*1024}"); A(f"s_lshl_b32 s{S_T0}, s{S_CB}, 7"); A(f"s_add_u32 s{S_FO}, s{S_FO}, s{S_T0}")
        A(f"s_lshl_b32 s{S_CO}, s{S_CB}, 16"); A(f"s_lshl_b32 s{S_T0}, s{S_W}, 8"); A(f"s_add_u32 s{S_CO}, s{S_CO}, s{S_T0}")
        for reg,ptr,size in ((R_T,P_WD,1792*1024),(R_B,P_CRE,512*1024),(R_W,P_CIM,512*1024)):
            A(f"s_mov_b32 s{reg}, s{ptr}"); A(f"s_mov_b32 s{reg+1}, s{ptr+1}"); A(f"s_mov_b32 s{reg+2}, {size}"); A(f"s_mov_b32 s{reg+3}, 0x20000")
        return L
    def p3_dma_f(self, b, slot):
        L=[mk(f"s_add_u32 m0, s{S_RG}, {slot*2048}"), mk(f"s_add_u32 s{S_XO}, s{S_FO}, {b*16*1024}")]
        t=[mk(f"buffer_load_dwordx4 v{V_FD+i}, {sr(R_T)}, s{S_XO} offen offset:{1024*i} lds") for i in range(2)]
        return L+t,t
    def p3_dma_c(self, k, half):
        mat,ph,ct=k>>2,(k>>1)&1,k&1
        L=[mk(f"s_add_u32 m0, s{S_RG}, {k*4096}"), mk(f"s_add_u32 s{S_XO}, s{S_CO}, {ct*32*1024+ph*128}")]
        t=[mk(f"buffer_load_dwordx4 v{V_CD+q}, {sr(R_W if mat else R_B)}, s{S_XO} offen offset:{1024*q} lds") for q in (2*half,2*half+1)]
        return L+t,t
    def p3_rd_f(self, slot, dst, agpr):
        R=ar if agpr else vr
        return [mk(f"ds_read_b64_tr_b16 {R(dst+4*ct+2*q,2)}, v{V_FR+ct} offset:{slot*2048+1024*q}") for ct in range(2) for q in range(2)]
    def p3_rd_c(self, mat, ph, s, dst):
        return [mk(f"ds_read_b128 {vr(dst+4*ct,4)}, v{V_CR[s]} offset:{(4*mat+2*ph+ct)*4096}") for ct in range(2)]

    def prefetch_events(self, t0=0, dt=136, lat=1000, t_free=10**9):
        ev=[]; tok={}
        units=[("f",b,b) for b in range(16)]+[("f",b,b-16) for b in range(16,24)]
        for k in (4,5,6,7,0,1,2,3): units+=[("c",k,0),("c",k,1)]
        units+=[("f",24,16),("f",25,17),("f",26,18),("f",27,19)]
        rd={}
        for u,(kind,x,y) in enumerate(units):
            t=t0+dt*u
            pre=[]
            if kind=="f":
                L,tk=self.p3_dma_f(x,y)
                if 16<=x<24: pre=[Wait(lgkm=rd[x-16])]
                if x>=26: t=max(t,t_free); pre=[Wait(lgkm=self.t_reads)] if x==26 else []
                tok[("f",x)]=tk
                if x<24:
                    r=self.p3_rd_f(y,A_P3+8*x,True); rd[x]=r
                    ev.append((t+lat,[Wait(vm=tk)]+r))
            else:
                L,tk=self.p3_dma_c(x,y)
                if y==0:
                    a,b=(2*x,2*x+1) if x>=4 else (16+2*x,16+2*x+1)
                    pre=[Wait(lgkm=rd[a]+rd[b])]
                tok[("c",x,y)]=tk
            ev.append((t,pre+L))
        ev.sort(key=lambda e:e[0])
        self.p3_rd=rd
        return ev,tok

    @staticmethod
    def cost(it):
        if isinstance(it,Wait): return 2
        if it.kind=="label": return 0
        if it.op in TRANS: return 8
        if it.kind=="vmem": return 12
        return 4
    def merge_time(self, stream, ev, t=0):
        out=[]; i=0
        for it in stream:
            while i<len(ev) and ev[i][0]<=t:
                for x in ev[i][1]:
                    out.append(x); t+=self.cost(x)
                i+=1
            out.append(it); t+=self.cost(it)
        return out,ev[i:],t

    def phase3(self, tok):
        p=self.p
        ACC=32; RING=96; D=8; BJ=176
        order=[("f",b) for b in range(26)]+[("c",1,ph,s) for ph in range(2) for s in range(4)]+[("c",0,ph,s) for ph in range(2) for s in range(4)]+[("f",26),("f",27)]
        def krel(st):
            if st[0]=="f": return 11*(st[1]//7)+st[1]%7
            _,mat,ph,s=st
            return 11*(2*ph+(s>>1))+7+2*mat+(s&1)
        p.I(f"s_lshl_b32 s{S_A0}, s{S_C3}, 2\ns_lshl_b32 s{S_T0}, s{S_RH}, 1\ns_add_u32 s{S_A0}, s{S_A0}, s{S_T0}\ns_mul_i32 s{S_A0}, s{S_A0}, 176\ns_mul_i32 s{S_T0}, s{S_W}, 44\ns_add_u32 s{S_A0}, s{S_A0}, s{S_T0}\ns_lshl_b32 s{S_A0}, s{S_A0}, 10\ns_add_u32 s{S_A0+1}, s{S_A0}, {176*1024}")
        def aload(i):
            st=order[i]; r=RING+8*(i%D); k=krel(st)*1024
            L=[mk(f"s_add_u32 s{S_T2}, s{S_A0}, {k}"), mk(f"s_add_u32 s{S_T3}, s{S_A0+1}, {k}")]
            t=[mk(f"buffer_load_dwordx4 {vr(r+4*e,4)}, v{V_AO}, {sr(R_WS)}, s{S_T2+e} offen sc1") for e in range(2)]
            return [L[0],t[0],L[1],t[1]],t
        at={}
        for i in range(D):
            L,at[i]=aload(i); p.add(L)
        post=self.final_loads()
        p.add(post)
        brd={}
        def bread(i):
            st=order[i]; dst=BJ+8*(i%3)
            if st[0]=="f":
                b=st[1]
                if b<24: return None
                slot={24:16,25:17,26:18,27:19}[b]
                return [Wait(vm=tok[("f",b)])]+self.p3_rd_f(slot,dst,False)
            _,mat,ph,s=st
            w=[Wait(vm=tok[("c",4*mat+2*ph+ct,1)]) for ct in range(2)]
            return w+self.p3_rd_c(mat,ph,s,dst)
        n=len(order)
        for i in range(n):
            st=order[i]
            fill=[]
            if i+2<n:
                r=bread(i+2)
                if r: brd[i+2]=[x for x in r if not isinstance(x,Wait)]; fill+=r
            r=RING+8*(i%D)
            if st[0]=="f" and st[1]<24: B=lambda ct,b=st[1]: ar(A_P3+8*b+4*ct,4)
            else: B=lambda ct,i=i: vr(BJ+8*(i%3)+4*ct,4)
            mf=[]
            for tau in range(2):
                for ct in range(2):
                    a=ACC+16*(2*tau+ct)
                    mf.append(mk(f"v_mfma_f32_32x32x16_bf16 {vr(a,16)}, {vr(r+4*tau,4)}, {B(ct)}, {'0' if i==0 else vr(a,16)}"))
            p.wait(vm=at[i][0])
            if i in brd: p.wait(lgkm=brd[i])
            p.add(mf[0]); p.add(fill[:3]); p.add(mf[1]); p.add(fill[3:])
            p.wait(vm=at[i][1])
            p.add(mf[2]); p.add(mf[3])
            if i+D<n:
                L,at[i+D]=aload(i+D); p.add(L)

    def final_loads(self):
        L=[]; A=lambda x: L.append(mk(x)) or L[-1]
        XV,GV,DV=160,200,216
        a=V_T
        A(f"s_lshl_b32 s{S_R0}, s{S_C3}, 7"); A(f"s_lshl_b32 s{S_T0}, s{S_RH}, 6"); A(f"s_add_u32 s{S_R0}, s{S_R0}, s{S_T0}"); A(f"s_lshr_b32 s{S_T0}, s{S_W}, 1"); A(f"s_lshl_b32 s{S_T0}, s{S_T0}, 5"); A(f"s_add_u32 s{S_R0}, s{S_R0}, s{S_T0}")
        A(f"s_lshl_b32 s{S_D0}, s{S_CB}, 6"); A(f"s_and_b32 s{S_T0}, s{S_W}, 1"); A(f"s_lshl_b32 s{S_T0}, s{S_T0}, 5"); A(f"s_add_u32 s{S_D0}, s{S_D0}, s{S_T0}")
        A(f"v_lshrrev_b32 v{a}, 5, v{V_L}"); A(f"v_lshlrev_b32 v{a+1}, 6, v{a}"); A(f"s_lshl_b32 s{S_T0}, s{S_R0}, 2"); A(f"s_add_u32 s{S_T0}, s{S_T0}, {WS_G}")
        toks=[]
        for i in range(4): toks.append(A(f"buffer_load_dwordx4 {vr(GV+4*i,4)}, v{a+1}, {sr(R_WS)}, s{S_T0} offen offset:{16*i} sc1"))
        for i,(v) in enumerate((P_DSK,P_DSK+1)): A(f"s_mov_b32 s{R_T2+i}, s{v}")
        A(f"s_mov_b32 s{R_T2+2}, 1024"); A(f"s_mov_b32 s{R_T2+3}, 0x20000")
        A(f"v_and_b32 v{a+2}, 31, v{V_L}"); A(f"v_add_u32 v{a+2}, s{S_D0}, v{a+2}"); A(f"v_lshlrev_b32 v{a+2}, 1, v{a+2}")
        toks.append(A(f"buffer_load_ushort v{DV}, v{a+2}, {sr(R_T2)}, 0 offen"))
        A(f"v_lshlrev_b32 v{a}, 14, v{a}"); A(f"v_add_u32 v{a+2}, v{a+2}, v{a}"); A(f"s_lshl_b32 s{S_T0}, s{S_R0}, 10")
        for r in range(16):
            if r and r%4==0: A(f"s_add_u32 s{S_T0}, s{S_T0}, 4096")
            toks.append(A(f"buffer_load_ushort v{XV+r}, v{a+2}, {sr(R_X)}, s{S_T0} offen offset:{1024*(r%4)}"))
        A(f"v_and_b32 v{V_OO}, 31, v{V_L}"); A(f"v_add_u32 v{V_OO}, s{S_D0}, v{V_OO}"); A(f"v_lshlrev_b32 v{V_OO}, 2, v{V_OO}"); A(f"v_add_u32 v{V_OO}, v{V_OO}, v{a}"); A(f"v_add_u32 v{V_OO}, v{V_OO}, v{a}")
        self.fin_toks=toks
        return L

    def final(self):
        p=self.p
        ACC=32; XV,GV,DV=160,200,216
        a=V_T
        p.I(f"v_lshlrev_b32 v{a}, 4, v{V_L}\nv_add_u32 v{a}, s{S_RG}, v{a}")
        wr=[]
        p.I("s_nop 15")
        for w in range(4):
            p.I(f"s_cmp_eq_u32 s{S_W}, {w}\ns_cbranch_scc0 L_wr{w}")
            for k in range(1,4):
                t=(w+k)&3
                for q in range(4): wr.append(p.I(f"ds_write_b128 v{a}, {vr(ACC+16*t+4*q,4)} offset:{(k-1)*4096+q*1024}"))
            for r in range(16): p.I(f"v_mov_b32 v{96+r}, v{ACC+16*w+r}")
            p.I(f"L_wr{w}:")
        p.I("s_waitcnt lgkmcnt(0)\ns_barrier")
        rd=[]
        for k in range(1,4):
            p.I(f"s_sub_u32 s{S_T0}, s{S_W}, {k}\ns_and_b32 s{S_T0}, s{S_T0}, 3\ns_mul_i32 s{S_T0}, s{S_T0}, {REGION}\nv_lshlrev_b32 v{a+1}, 4, v{V_L}\nv_add_u32 v{a+1}, s{S_T0}, v{a+1}")
            for q in range(4): rd.append(p.I(f"ds_read_b128 {vr(112+16*(k-1)+4*q,4)}, v{a+1} offset:{(k-1)*4096+q*1024}"))
        p.wait(vm=self.fin_toks)
        p.I(f"v_lshlrev_b32 v{DV}, 16, v{DV}")
        for r in range(16): p.I(f"v_lshlrev_b32 v{XV+r}, 16, v{XV+r}")
        for r in range(16): p.I(f"v_mul_f32 v{XV+r}, v{XV+r}, v{DV}")
        for r in range(0,16,2): p.I(f"v_cvt_pk_bf16_f32 v{XV+r}, v{XV+r}, v{XV+r+1}")
        for r in range(0,16,2): p.I(f"v_and_b32 v{XV+r+1}, 0xffff0000, v{XV+r}\nv_lshlrev_b32 v{XV+r}, 16, v{XV+r}")
        for r in range(16): p.I(f"v_fmac_f32 v{96+r}, v{GV+r}, v{XV+r}")
        for k in range(3):
            p.wait(lgkm=rd[4*k:4*k+4])
            for r in range(16): p.I(f"v_add_f32 v{96+r}, v{96+r}, v{112+16*k+r}")
        srd(p,R_T2,P_OUT,2048*2048)
        p.I(f"s_lshl_b32 s{S_T0}, s{S_R0}, 11")
        fl=self.o.get("out_flags","")
        for r in range(16):
            if r and r%2==0: p.I(f"s_add_u32 s{S_T0}, s{S_T0}, 4096")
            p.I(f"buffer_store_dword v{96+r}, v{V_OO}, {sr(R_T2)}, s{S_T0} offen offset:{2048*(r%2)} {fl}")

    def dump_regs(self, regs, slot_base, agpr=False):
        p=self.p
        n=len(regs)
        p.I(f"s_lshl_b32 s{S_T0}, s2, 2\ns_add_u32 s{S_T0}, s{S_T0}, s{S_W}\ns_mul_i32 s{S_T0}, s{S_T0}, {n*256}\ns_add_u32 s{S_T0}, s{S_T0}, {slot_base}")
        p.I(f"v_lshlrev_b32 v{V_T}, 2, v{V_L}")
        for i,r in enumerate(regs):
            p.I(f"buffer_store_dword {r}, v{V_T}, {sr(R_WS)}, s{S_T0} offen")
            p.I(f"s_add_u32 s{S_T0}, s{S_T0}, 256")
        p.wait(vm_all=True)

    def finish(self):
        p=self.p
        p.I("s_endpgm")
        for x in self.slow: p.I(x)
        p.I("L_exit:\ns_endpgm")

    def text(self):
        items,npad,errs=finalize(self.p)
        for e in errs[:20]: print("ERR",e,file=sys.stderr)
        hdr=open("gated_mix__ssm_conv_s5__glu_gated_geglu__prompt.s.ref").read().split("; Override launch")[0]
        out=hdr+"; @launch grid=(256,1,1) block=(256,1,1) lds=163840\n"
        out+='.amdgcn_target "amdgcn-amd-amdhsa--gfx950"\n.text\n'
        out+=f".globl {KNAME}\n.p2align 8\n.type {KNAME},@function\n{KNAME}:\n"
        out+=emit(items)
        out+=f'''.section .rodata,"a"
.p2align 6
.amdhsa_kernel {KNAME}
  .amdhsa_next_free_vgpr 512
  .amdhsa_next_free_sgpr 102
  .amdhsa_accum_offset 256
  .amdhsa_group_segment_fixed_size 0
  .amdhsa_kernarg_size 136
  .amdhsa_user_sgpr_count 2
  .amdhsa_user_sgpr_kernarg_segment_ptr 1
  .amdhsa_system_sgpr_workgroup_id_x 1
.end_amdhsa_kernel
'''
        self.stats=dict(n=len(items),npad=npad,errs=len(errs))
        return out

def build_full(opts=None, stop=None):
    g=Gen(opts=opts); p=g.p
    g.prologue_a()
    ex={}
    ex["after_first_dma"]=g.gate_and_consts
    ex[("F",0,3)]=g.flag_op("add",[f"s_lshl_b32 s{S_T0}, s{S_C}, 4"],"1")
    L1,w1=g.pass1()
    n=len(L1)
    ex[("F",3,0)]=L1[:10]; ex[("F",3,1)]=L1[10:10+(n-10)//2]; ex[("F",3,2)]=L1[10+(n-10)//2:]
    g.extra_head={("F",3,3):[Wait(lgkm=w1)]}
    L2,est=g.exchange()
    k=len(L2)//3
    ex[("F",3,3)]=L2[:12]; ex[("F",4,0)]=L2[12:12+k]; ex[("F",4,1)]=L2[12+k:12+2*k]; ex[("F",4,2)]=L2[12+2*k:]
    ex[("F",4,3)]=g.copy_consts()
    ex[("F",5,2)]=[Wait(vm=est)]+g.flag_op("or",[f"s_lshl_b32 s{S_T0}, s{S_J}, 4", f"s_add_u32 s{S_T0}, s{S_T0}, 4", f"s_lshl_b32 s{S_K0}, 1, s{S_C}"],f"s{S_K0}")
    Lp,tp=g.poll_issue(23,[f"s_lshl_b32 s{S_T0}, s{S_C}, 4"])
    ex[("F",5,3)]=Lp
    Lc=g.poll_check("g",23,tp,[f"s_cmp_eq_u32 s{S_T0}, 16"])
    Lg,gt=g.g_loads()
    ex[("F",6,2)]=Lc; ex[("F",6,3)]=Lg
    pat=g.p3_patterns()
    ex[("F",7,0)]=pat[:len(pat)//2]; ex[("F",7,1)]=pat[len(pat)//2:]
    g.end_barrier=True
    g.phase1(ex)
    if stop=="gemm":
        p.I("s_nop 15"); g.dump_regs([f"v{r}" for r in range(V_ACC,V_ACC+144)], WS_DBG); g.finish(); return g
    Lf,sf=g.ffn_epilogue(gt[:1])
    Le0,te=g.poll_issue(30,[f"s_lshl_b32 s{S_T0}, s{S_J}, 4", f"s_add_u32 s{S_T0}, s{S_T0}, 4"])
    Le1=g.poll_check("e",30,te,[f"s_lshl_b32 s{S_T1}, 1, s{S_C}", f"s_sub_u32 s{S_T1}, s{S_T1}, 1", f"s_and_b32 s{S_T0}, s{S_T0}, s{S_T1}", f"s_cmp_eq_u32 s{S_T0}, s{S_T1}"])
    Le2,et=g.e_loads()
    Ls,ss=g.ssm_epilogue(et,gt[1:],[mk(f"s_add_u32 s{S_T0}, s{S_RG}, 36864")])
    nf=len(Lf)
    stream=Le0+Lf[:nf//3]+Le1+Le2+Lf[nf//3:]+Ls
    ev,tok=g.prefetch_events(t0=g.o.get("pf_t0",0), dt=g.o.get("pf_dt",136), lat=g.o.get("pf_lat",1000))
    merged,rest,t=g.merge_time(stream,ev)
    p.I("s_nop 7")
    p.add(merged)
    if stop=="epi":
        p.wait(vm_all=True,lgkm_all=True); g.finish(); return g
    p.wait(vm=sf+ss); p.I("s_barrier")
    p.add(g.flag_op("add",[f"s_lshl_b32 s{S_T0}, s{S_C}, 4", f"s_add_u32 s{S_T0}, s{S_T0}, 8", f"s_lshr_b32 s{S_K0}, s{S_J}, 2", f"s_lshl_b32 s{S_K0}, s{S_K0}, 3", f"s_lshl_b32 s{S_K0}, 1, s{S_K0}"],f"s{S_K0}"))
    for _,items in rest: p.add(items)
    Lq,tq=g.poll_issue(30,[f"s_lshl_b32 s{S_T0}, s{S_C3}, 4", f"s_add_u32 s{S_T0}, s{S_T0}, 8"])
    p.add(Lq)
    p.add(g.poll_check("a",30,tq,[f"s_lshl_b32 s{S_T1}, s{S_W}, 3", f"s_lshr_b32 s{S_T0}, s{S_T0}, s{S_T1}", f"s_and_b32 s{S_T0}, s{S_T0}, 0xff", f"s_cmp_eq_u32 s{S_T0}, 4"]))
    g.phase3(tok)
    g.final()
    g.finish()
    return g

if __name__=="__main__":
    stop=sys.argv[2] if len(sys.argv)>2 else None
    g=build_full(stop=stop); t=g.text(); open(sys.argv[1] if len(sys.argv)>1 else "full.s","w").write(t); print(g.stats)
```

```python
import sys
from asmb import *

KNAME="gated_mix__ssm_conv_s5__glu_gated_geglu__prompt_kernel"

WS_A=0; WS_E=0xB00000; WS_G=0xB10000; WS_CNT=0xB18000; WS_DBG=0xB20000; WS_SIZE=0x4000000
OOB=0x7ff00000
WSLOT=28928; WUP=14464
L_W=0; L_B=86784; L_X=119552; L_EX=152320; L_GL=154368
P_X,P_LRE,P_LIM,P_BRE,P_BIM,P_CRE,P_CIM,P_LDT=4,6,8,10,12,14,16,18
P_DSK,P_BX,P_WG,P_WU,P_WD,P_GW,P_OUT,P_DBG=20,22,24,26,28,30,32,34
P_WS=36
S_C,S_J,S_W,S_C3,S_RH,S_CB=38,39,40,41,42,43
R_X,R_B,R_W,R_WS,R_DBG,R_T,R_T2=44,48,52,56,60,64,68
S_XO,S_BO,S_WO=72,73,74
S_XROW,S_BROW,S_WROW=75,76,77
S_XM,S_BM,S_WM=78,79,80
S_T0,S_T1,S_T2,S_T3=81,82,83,84
S_GT=85
S_M0=86
S_CNT=88
S_K0=89
S_AO=91
V_AO=22
S_RG,S_FO,S_CO=92,93,94
S_TB,S_PO=95,3
S_A0=96
S_R0,S_D0=98,99
REGION=40960
V_FD=232
V_CD=234
V_FR=238
V_CR=[240,241,242,243]
V_OO=23
V_ST=247
S_G0=64
A_P3=64
A_KS=48
V_TID,V_L=0,1
V_XG=2
V_BG=6
V_WG=8
V_WA,V_WB=15,16
V_BA=17
V_XA=21
V_T=25
V_ACC=32
V_SRE,V_SIM=144,160
V_WF=176
V_BF=232
V_U=248
A_X=0
A_BF=128
A_K=160

def srd(p, reg, ptr, size):
    p.I(f"s_mov_b32 s{reg}, s{ptr}\ns_mov_b32 s{reg+1}, s{ptr+1}\ns_mov_b32 s{reg+2}, {size}\ns_mov_b32 s{reg+3}, 0x20000")

def sr(r): return f"s[{r}:{r+3}]"
def vr(r,n): return f"v[{r}:{r+n-1}]" if n>1 else f"v{r}"
def ar(r,n): return f"a[{r}:{r+n-1}]" if n>1 else f"a{r}"

class Gen:
    def __init__(self, stop_after=None, opts=None):
        self.p=Prog(); self.stop=stop_after; self.o=opts or {}; self.slow=[]
    def prologue_a(self):
        p=self.p
        p.I("s_cmp_ge_u32 s2, 256\ns_cbranch_scc1 L_exit")
        p.I("s_load_dwordx16 s[4:19], s[0:1], 0"); p.I("s_load_dwordx16 s[20:35], s[0:1], 64"); p.I("s_load_dwordx2 s[36:37], s[0:1], 128")
        p.I(f"v_and_b32 v{V_L}, 63, v0\nv_lshrrev_b32 v{V_T}, 6, v0")
        p.I(f"s_lshr_b32 s{S_C}, s2, 4\ns_and_b32 s{S_J}, s2, 15")
        p.I(f"v_readfirstlane_b32 s{S_W}, v{V_T}")
        l=f"v{V_L}"; T=V_T
        p.I(f"v_lshrrev_b32 v{T}, 5, {l}\nv_lshlrev_b32 v{T}, 4, v{T}\nv_bfe_u32 v{T+1}, {l}, 3, 2\nv_add_u32 v{T}, v{T}, v{T+1}\nv_lshlrev_b32 v{T}, 10, v{T}")
        p.I(f"v_and_b32 v{T+1}, 7, {l}\nv_lshrrev_b32 v{T+2}, 4, {l}\nv_xor_b32 v{T+3}, v{T+1}, v{T+2}\nv_xor_b32 v{T+4}, 4, v{T+3}")
        p.I(f"v_lshlrev_b32 v{T+3}, 4, v{T+3}\nv_lshlrev_b32 v{T+4}, 4, v{T+4}")
        for q in range(4):
            p.I(f"v_add_u32 v{V_XG+q}, v{T}, v{T+3+(q&1)}")
            if q: p.I(f"v_add_u32 v{V_XG+q}, {3072*q}, v{V_XG+q}")
        p.I(f"v_lshrrev_b32 v{T}, 3, {l}\nv_lshlrev_b32 v{T}, 10, v{T}")
        p.I(f"v_add_u32 v{V_BG}, v{T}, v{T+3}\nv_add_u32 v{V_BG+1}, v{T}, v{T+4}\nv_add_u32 v{V_BG+1}, {7*1024}, v{V_BG+1}")
        p.I(f"s_lshl_b32 s{S_T0}, s{S_W}, 12\ns_add_u32 s{S_XM}, s{S_T0}, {L_X}")
        p.I(f"s_lshl_b32 s{S_T1}, s{S_C}, 2\ns_add_u32 s{S_T1}, s{S_T1}, s{S_W}\ns_lshl_b32 s{S_XROW}, s{S_T1}, 15")
        p.I(f"s_and_b32 s{S_T1}, s{S_W}, 1\ns_lshr_b32 s{S_T2}, s{S_W}, 1")
        p.I(f"s_lshl_b32 s{S_T3}, s{S_J}, 1\ns_add_u32 s{S_T3}, s{S_T3}, s{S_T1}\ns_lshl_b32 s{S_BROW}, s{S_T3}, 14")
        p.I(f"s_lshl_b32 s{S_BM}, s{S_T2}, 12\ns_lshl_b32 s{S_T3}, s{S_T1}, 11\ns_add_u32 s{S_BM}, s{S_BM}, s{S_T3}\ns_add_u32 s{S_BM}, s{S_BM}, {L_B}")
        p.I(f"s_mul_i32 s{S_WROW}, s{S_T1}, {32*3584}\ns_mul_i32 s{S_T3}, s{S_J}, 224\ns_add_u32 s{S_WROW}, s{S_WROW}, s{S_T3}")
        p.I(f"s_mul_i32 s{S_WM}, s{S_T2}, {WUP}\ns_mul_i32 s{S_T3}, s{S_T1}, 7168\ns_add_u32 s{S_WM}, s{S_WM}, s{S_T3}")
        p.wait(lgkm_all=True)
        srd(p,R_X,P_X,2048*1024)
        p.I(f"s_cmp_eq_u32 s{S_T2}, 0")
        p.I(f"s_cselect_b32 s{R_B}, s{P_BRE}, s{P_BIM}\ns_cselect_b32 s{R_B+1}, s{P_BRE+1}, s{P_BIM+1}\ns_mov_b32 s{R_B+2}, {512*1024}\ns_mov_b32 s{R_B+3}, 0x20000")
        p.I(f"s_cselect_b32 s{R_W}, s{P_WG}, s{P_WU}\ns_cselect_b32 s{R_W+1}, s{P_WG+1}, s{P_WU+1}\ns_mov_b32 s{R_W+2}, {512*3584}\ns_mov_b32 s{R_W+3}, 0x20000")
    def prologue_b(self):
        p=self.p; l=f"v{V_L}"; T=V_T
        p.I(f"s_mov_b32 s{S_T0}, 4682\ns_mov_b32 s{S_T1}, 3584")
        for i in range(7):
            p.I(f"v_add_u32 v{T}, {64*i}, {l}\nv_mul_lo_u32 v{T+1}, v{T}, s{S_T0}\nv_lshrrev_b32 v{T+1}, 16, v{T+1}")
            p.I(f"v_mul_u32_u24 v{T+2}, 14, v{T+1}\nv_sub_u32 v{T+2}, v{T}, v{T+2}\nv_lshlrev_b32 v{T+2}, 4, v{T+2}")
            p.I(f"v_mul_lo_u32 v{T+1}, v{T+1}, s{S_T1}\nv_add_u32 v{V_WG+i}, v{T+1}, v{T+2}")
            if i&3: p.I(f"v_subrev_u32 v{V_WG+i}, {1024*(i&3)}, v{V_WG+i}")
    def prologue_c(self):
        p=self.p; l=f"v{V_L}"; T=V_T
        p.I(f"v_lshrrev_b32 v{T}, 5, {l}\nv_lshlrev_b32 v{T}, 3, v{T}\nv_bfe_u32 v{T+1}, {l}, 2, 2\nv_add_u32 v{T}, v{T}, v{T+1}\nv_mul_u32_u24 v{T}, 224, v{T}")
        p.I(f"v_bfe_u32 v{T+1}, {l}, 1, 1\nv_mul_u32_u24 v{T+1}, {WUP}, v{T+1}\nv_add_u32 v{T}, v{T}, v{T+1}")
        p.I(f"v_bfe_u32 v{T+1}, {l}, 4, 1\nv_lshlrev_b32 v{T+1}, 4, v{T+1}\nv_add_u32 v{T}, v{T}, v{T+1}")
        p.I(f"v_and_b32 v{T+1}, 1, {l}\nv_lshlrev_b32 v{T+1}, 3, v{T+1}\nv_add_u32 v{V_WA}, v{T}, v{T+1}\nv_add_u32 v{V_WB}, {2*WSLOT}, v{V_WA}")
        p.I(f"v_and_b32 v{T}, 31, {l}\nv_lshlrev_b32 v{T+1}, 7, v{T}\nv_bfe_u32 v{T+2}, {l}, 1, 3\nv_lshrrev_b32 v{T+3}, 5, {l}\nv_xor_b32 v{T+2}, v{T+2}, v{T+3}")
        p.I(f"s_lshl_b32 s{S_T0}, s{S_W}, 12\ns_add_u32 s{S_T0}, s{S_T0}, {L_X}")
        for s in range(4):
            p.I(f"v_xor_b32 v{T+3}, {2*s}, v{T+2}\nv_lshlrev_b32 v{T+3}, 4, v{T+3}\nv_add_u32 v{T+3}, v{T+1}, v{T+3}\nv_add_u32 v{V_BA+s}, {L_B}, v{T+3}\nv_add_u32 v{V_XA+s}, s{S_T0}, v{T+3}")
        srd(p,R_WS,P_WS,WS_SIZE); srd(p,R_DBG,P_DBG,256)
        p.I(f"s_lshr_b32 s{S_T0}, s2, 6\ns_lshl_b32 s{S_T0}, s{S_T0}, 2\ns_bfe_u32 s{S_T1}, s2, 0x20001\ns_add_u32 s{S_C3}, s{S_T0}, s{S_T1}")
        p.I(f"s_and_b32 s{S_RH}, s2, 1\ns_bfe_u32 s{S_CB}, s2, 0x30003")

    def dma_x(self, ch):
        slot=ch&1
        L=[mk(f"s_add_u32 m0, s{S_XM}, {slot*16384}"), mk(f"s_add_u32 s{S_XO}, s{S_XROW}, {ch*128}")]
        toks=[mk(f"buffer_load_dwordx4 v{V_XG+q}, {sr(R_X)}, s{S_XO} offen offset:{1024*q} lds") for q in range(4)]
        return L+toks, toks
    def dma_b(self, ch):
        slot=(ch>>1)&1
        L=[mk(f"s_add_u32 m0, s{S_BM}, {slot*16384+(ch&1)*8192}"), mk(f"s_add_u32 s{S_BO}, s{S_BROW}, {ch*128}")]
        toks=[mk(f"buffer_load_dwordx4 v{V_BG+i}, {sr(R_B)}, s{S_BO} offen offset:{1024*i} lds") for i in range(2)]
        return L+toks, toks
    def dma_w(self, ch):
        slot=ch%3
        L=[mk(f"s_add_u32 m0, s{S_WM}, {slot*WSLOT}"), mk(f"s_add_u32 s{S_WO}, s{S_WROW}, {ch*64*3584}")]
        toks=[]
        for i in range(7):
            if i==4: L.append(mk(f"s_add_u32 m0, s{S_WM}, {slot*WSLOT+4096}"))
            t=mk(f"buffer_load_dwordx4 v{V_WG+i}, {sr(R_W)}, s{S_WO} offen offset:{1024*(i&3)} lds"); toks.append(t); L.append(t)
        return L,toks
    def rd_x(self, ch):
        return [mk(f"ds_read_b128 {ar(A_X+16*ch+4*s,4)}, v{V_XA+s} offset:{(ch&1)*16384}") for s in range(4)]
    def rd_b(self, ch, d, bset):
        base=((ch>>1)&1)*16384+(ch&1)*8192
        L=[]
        for e in range(2):
            for m in range(2):
                L.append(mk(f"ds_read_b128 {ar(A_BF+16*bset+8*e+4*m,4)}, v{V_BA+2*d+e} offset:{base+4096*m}"))
        return L
    def rd_w(self, ch, s, wset):
        slot=ch%3; va=V_WB if slot==2 else V_WA; base=0 if slot==2 else slot*WSLOT
        L=[]
        for i in range(7):
            for q in range(2):
                d=V_WF+28*wset+4*i+2*q
                L.append(mk(f"ds_read_b64_tr_b16 {vr(d,2)}, v{va} offset:{base+(16*s+4*q)*224+32*i}"))
        return L
    def mf_s(self, ch, d, bset):
        L=[]
        for e in range(2):
            s=2*d+e
            x=ar(A_X+16*ch+4*s,4)
            first=(ch==0 and s==0)
            for m,a in enumerate((V_SRE,V_SIM)):
                L.append(mk(f"v_mfma_f32_32x32x16_bf16 {vr(a,16)}, {x}, {ar(A_BF+16*bset+8*e+4*m,4)}, {'0' if first else vr(a,16)}"))
        return L
    def mf_f(self, ch, s, wset):
        x=ar(A_X+16*ch+4*s,4)
        first=(ch==0 and s==0)
        return [mk(f"v_mfma_f32_32x32x16_bf16 {vr(V_ACC+16*i,16)}, {vr(V_WF+28*wset+4*i,4)}, {x}, {'0' if first else vr(V_ACC+16*i,16)}") for i in range(7)]

    def phase1(self, extra):
        p=self.p
        X={};B={};W={}
        def issue(lst):
            for kind,ch in lst:
                L,t={"x":self.dma_x,"b":self.dma_b,"w":self.dma_w}[kind](ch); p.add(L); {"x":X,"b":B,"w":W}[kind][ch]=t
        self.small_loads()
        issue([("x",0),("b",0),("x",1),("b",1)])
        self.code_prefetch()
        self.prologue_b()
        issue([("w",0),("b",2),("b",3),("w",1)])
        self.prologue_c()
        self.late(); self.late2()
        if hasattr(self,"late3"): self.late3()
        p.add(self.stamp(1))
        steps=[]
        for g in range(4):
            for ch in (2*g,2*g+1):
                for d in range(2): steps.append(("S",ch,d))
            for s in range(4): steps.append(("F",g,s))
        for ch in range(4,8):
            for s in range(4): steps.append(("F",ch,s))
        setof={}; cnt={"S":0,"F":0}
        for st in steps:
            setof[st]=cnt[st[0]]&1; cnt[st[0]]+=1
        reads={}
        for st in steps:
            k,ch,s=st
            reads[st]=self.rd_b(ch,s,setof[st]) if k=="S" else self.rd_w(ch,s,setof[st])
        xr={ch:self.rd_x(ch) for ch in range(8)}
        rfill={st:[] for st in steps}
        fill={st:[] for st in steps}
        head={st:[] for st in steps}
        for i,st in enumerate(steps[:-1]):
            nx=steps[i+1]
            if st[0]=="S" and nx[0]=="F":
                rfill[steps[i-1]]+=reads[nx][:6]; rfill[st]+=reads[nx][6:]
            else: rfill[st]=reads[nx]+rfill[st]
        p.wait(vm=X[0]+B[0]); p.I("s_barrier")
        p.add(xr[0][0:2]); p.add(reads[steps[0]][:2]); p.add(xr[0][2:]); p.add(reads[steps[0]][2:])
        head[("S",0,1)]+=[Wait(vm=X[1]+B[1]), mk("s_barrier")]
        rfill[("S",0,1)]=xr[1][0:2]+rfill[("S",0,1)]+xr[1][2:]
        L,X[2]=self.dma_x(2); fill[("S",0,1)]+=[Wait(lgkm=xr[0])]+L
        L,X[3]=self.dma_x(3); fill[("S",1,1)]+=[Wait(lgkm=xr[1])]+L
        head[("S",1,0)]+=[Wait(vm=W[0]), mk("s_barrier")]
        L,W[2]=self.dma_w(2); fill[("F",0,0)]+=L
        for g in range(1,4):
            a,b=2*g,2*g+1
            rfill[("F",g-1,1)]+=[Wait(vm=X[a]+X[b])]+xr[a]+xr[b]
            last=("F",g-1,3)
            head[last]+=[Wait(vm=B[a]+B[b]+W[g], lgkm=reads[last]+xr[a]+xr[b]), mk("s_barrier")]
            if g<3:
                L,X[a+2]=self.dma_x(a+2); fill[last]+=L
                L,X[b+2]=self.dma_x(b+2); fill[("S",a,0)]+=L
                L,B[a+2]=self.dma_b(a+2); fill[("S",a,1)]+=L
                L,B[b+2]=self.dma_b(b+2); fill[("S",b,0)]+=L
            L,W[g+2]=self.dma_w(g+2); fill[("F",g,0)]+=L
        for ch in range(4,8):
            last=("F",ch-1,3)
            head[last]+=[Wait(vm=W[ch], lgkm=reads[last]), mk("s_barrier")]
            if ch+2<8:
                L,W[ch+2]=self.dma_w(ch+2); fill[last]+=L[:6]; fill[("F",ch,0)]+=L[6:]
        for k,v in getattr(self,"extra_head",{}).items(): head[k]=list(v)+head[k]
        if getattr(self,"end_barrier",False):
            last=("F",7,3); head[last]+=[Wait(lgkm=reads[last]), mk("s_barrier")]
        self.steps=steps
        for k,v in extra.items():
            assert k in fill, k
            fill[k]+=v
        for st in steps:
            k,ch,s=st
            mf=self.mf_s(ch,s,setof[st]) if k=="S" else self.mf_f(ch,s,setof[st])
            p.add(head[st])
            r=reads[st]; n=len(mf)
            slots=[[] for _ in range(n)]
            rf=rfill[st]; per=max(3 if k=="F" else 2, -(-len(rf)//n))
            for t,it in enumerate(rf): slots[min(t//per,n-1)].append(it)
            f=fill[st]
            for t,it in enumerate(f): slots[min((t*n)//max(len(f),1),n-1)].append(it)
            for m,ins in enumerate(mf):
                if k=="S":
                    if m==0: p.wait(lgkm=r[0:2]+[xr[ch][2*s]])
                    if m==2: p.wait(lgkm=r[2:4]+[xr[ch][2*s+1]])
                else:
                    if m==0: p.wait(lgkm=r[0:6]+[xr[ch][s]])
                    if m==3: p.wait(lgkm=r[6:14])
                p.add(ins)
                p.add(slots[m])

    LOG2E=1.4426950408889634
    def fconst(self, sreg, val):
        import struct
        return f"s_mov_b32 s{sreg}, 0x{struct.unpack('<I',struct.pack('<f',val))[0]:08x}"

    def small_loads(self):
        p=self.p; l=f"v{V_L}"
        srd(p,R_T,P_GW,1024)
        p.I(f"v_lshlrev_b32 v{V_AO}, 4, {l}")
        p.I(f"s_lshl_b32 s{S_T0}, s{S_C}, 7\ns_lshl_b32 s{S_T1}, s{S_J}, 3\ns_add_u32 s{S_T0}, s{S_T0}, s{S_T1}\ns_lshl_b32 s{S_T1}, s{S_W}, 1\ns_add_u32 s{S_GT}, s{S_T0}, s{S_T1}")
        p.I(f"s_lshl_b32 s{S_T0}, s{S_GT}, 10")
        X0,X1,GW=232,236,240
        self.gl=[p.I(f"buffer_load_dwordx4 {vr(X0,4)}, v{V_AO}, {sr(R_X)}, s{S_T0} offen"),
                 p.I(f"buffer_load_dwordx4 {vr(X1,4)}, v{V_AO}, {sr(R_X)}, s{S_T0} offen offset:1024"),
                 p.I(f"buffer_load_dwordx4 {vr(GW,4)}, v{V_AO}, {sr(R_T)}, 0 offen")]
        p.I(f"v_and_b32 v{V_T}, 31, {l}\ns_lshl_b32 s{S_T1}, s{S_J}, 6\nv_lshlrev_b32 v{V_T}, 1, v{V_T}\nv_add_u32 v{V_T}, s{S_T1}, v{V_T}")
        self.kl=[]
        for i,ptr in enumerate((P_LRE,P_LIM,P_LDT)):
            srd(p,R_T2,ptr,1024)
            self.kl.append(p.I(f"buffer_load_ushort v{244+i}, v{V_T}, {sr(R_T2)}, 0 offen"))

    def gate_items(self):
        l=f"v{V_L}"; L=[]; A=lambda x: L.append(mk(x))
        X0,X1,GW=232,236,240
        A0,A1=248,249; u=250
        L.append(Wait(vm=self.gl))
        for i in range(4):
            A(f"v_lshlrev_b32 v{u+2}, 16, v{GW+i}"); A(f"v_and_b32 v{u+3}, 0xffff0000, v{GW+i}")
            for X,Ac in ((X0,A0),(X1,A1)):
                A(f"v_lshlrev_b32 v{u}, 16, v{X+i}"); A(f"v_and_b32 v{u+1}, 0xffff0000, v{X+i}"); A(f"v_mul_f32 v{u}, v{u}, v{u+2}"); A(f"v_mul_f32 v{u+1}, v{u+1}, v{u+3}")
                A(f"v_cvt_pk_bf16_f32 v{X+i}, v{u}, v{u+1}"); A(f"v_lshlrev_b32 v{u}, 16, v{X+i}"); A(f"v_and_b32 v{u+1}, 0xffff0000, v{X+i}")
                if i==0: A(f"v_add_f32 v{Ac}, v{u}, v{u+1}")
                else: A(f"v_add_f32 v{Ac}, v{Ac}, v{u}"); A(f"v_add_f32 v{Ac}, v{Ac}, v{u+1}")
        for sh in (8,4,2,1):
            for Ac in (A0,A1): A(f"v_add_f32_dpp v{Ac}, v{Ac}, v{Ac} row_ror:{sh} row_mask:0xf bank_mask:0xf")
        for Ac,sb in ((A0,S_G0),(A1,S_G0+4)):
            for q in range(4): A(f"v_readlane_b32 s{sb+q}, v{Ac}, {16*q}")
        for Ac,sb in ((A0,S_G0),(A1,S_G0+4)):
            A(f"v_mov_b32 v{Ac}, s{sb}"); A(f"v_add_f32 v{Ac}, s{sb+1}, v{Ac}"); A(f"v_add_f32 v{Ac}, s{sb+2}, v{Ac}"); A(f"v_add_f32 v{Ac}, s{sb+3}, v{Ac}")
        A(f"v_cmp_eq_u32 vcc, 1, {l}"); A(f"v_cndmask_b32 v{A0}, v{A0}, v{A1}, vcc")
        A(f"v_cvt_pk_bf16_f32 v{A0}, v{A0}, v{A0}"); A(f"v_lshlrev_b32 v{A0}, 16, v{A0}")
        A(self.fconst(S_G0,-self.LOG2E))
        A(f"v_mul_f32 v{A0}, s{S_G0}, v{A0}"); A(f"v_exp_f32 v{A0}, v{A0}"); A(f"v_add_f32 v{A0}, 1.0, v{A0}"); A(f"v_rcp_f32 v{A0}, v{A0}")
        A(f"v_cvt_pk_bf16_f32 v{A0}, v{A0}, v{A0}"); A(f"v_lshlrev_b32 v{A0}, 16, v{A0}")
        A(f"v_lshlrev_b32 v{u}, 2, {l}"); A(f"s_lshl_b32 s{S_G0}, s{S_GT}, 2"); A(f"s_add_u32 s{S_G0}, s{S_G0}, {WS_G}"); A(f"v_add_u32 v{u}, s{S_G0}, v{u}")
        A(f"v_mov_b32 v{u+1}, {OOB}"); A(f"v_cmp_gt_u32 vcc, 2, {l}"); A(f"v_cndmask_b32 v{u}, v{u+1}, v{u}, vcc")
        A(f"buffer_store_dword v{A0}, v{u}, {sr(R_WS)}, 0 offen sc1"); self.g_store=L[-1]
        A(f"s_lshl_b32 s{S_G0}, s{S_C}, 7"); A(f"s_add_u32 s{S_G0}, s{S_G0}, {WS_CNT}"); A(f"s_or_b32 s{S_G0+1}, s{S_J}, s{S_W}"); A(f"s_cmp_eq_u32 s{S_G0+1}, 0"); A(f"s_cselect_b32 s{S_G0}, s{S_G0}, {OOB}")
        A(f"v_mov_b32 v{u}, {OOB}"); A(f"v_mov_b32 v{u+1}, s{S_G0}"); A(f"v_cmp_eq_u32 vcc, 0, {l}"); A(f"v_cndmask_b32 v{u}, v{u}, v{u+1}, vcc"); A(f"v_mov_b32 v{u+1}, 0")
        A(f"buffer_store_dword v{u+1}, v{u}, {sr(R_WS)}, 0 offen sc1"); self.c_store=L[-1]
        return L

    def const_items(self):
        l=f"v{V_L}"; L=[]; A=lambda x: L.append(mk(x))
        LR,LI,DT=244,245,246
        AE,AN,SG,M,AG=232,233,234,235,236
        R=238
        C,S=238,239
        L.append(Wait(vm=self.kl))
        A(f"v_lshlrev_b32 v{LR}, 16, v{LR}"); A(f"v_lshlrev_b32 v{LI}, 16, v{LI}"); A(f"v_lshlrev_b32 v{DT}, 16, v{DT}")
        A(self.fconst(S_G0,self.LOG2E)); A(self.fconst(S_G0+1,0.15915494309189535)); A(self.fconst(S_G0+2,16.0)); A(self.fconst(S_G0+3,128.0))
        A(f"v_mul_f32 v{DT}, s{S_G0}, v{DT}"); A(f"v_exp_f32 v{DT}, v{DT}"); A(f"v_lshrrev_b32 v{SG}, 5, {l}"); A(f"v_cvt_pk_bf16_f32 v{DT}, v{DT}, v{DT}"); A(f"v_lshlrev_b32 v{DT}, 16, v{DT}")
        A(f"v_mul_f32 v{AE}, v{DT}, v{LR}"); A(f"v_mul_f32 v{AN}, v{DT}, v{LI}"); A(f"v_mul_f32 v{AE}, s{S_G0}, v{AE}"); A(f"v_mul_f32 v{AN}, s{S_G0+1}, v{AN}")
        A(f"s_lshl_b32 s{S_G0+4}, s{S_W}, 1"); A(f"v_add_u32 v{SG}, s{S_G0+4}, v{SG}"); A(f"v_lshlrev_b32 v{SG}, 4, v{SG}"); A(f"v_cvt_f32_u32 v{SG}, v{SG}")
        def cexp(k, mul, keep=None):
            if mul is None: A(f"v_mov_b32 v{M}, v{AE}"); A(f"v_mov_b32 v{AG}, v{AN}")
            else: A(f"v_mul_f32 v{M}, {mul}, v{AE}"); A(f"v_mul_f32 v{AG}, {mul}, v{AN}")
            A(f"v_exp_f32 v{M}, v{M}"); A(f"v_fract_f32 v{AG}, v{AG}"); A(f"v_cos_f32 v{C}, v{AG}"); A(f"v_sin_f32 v{S}, v{AG}"); A("s_nop 0")
            A(f"v_mul_f32 v{C}, v{M}, v{C}"); A(f"v_mul_f32 v{S}, v{M}, v{S}")
            A(f"v_accvgpr_write_b32 a{A_K+k}, v{C}"); A(f"v_accvgpr_write_b32 a{A_K+k+1}, v{S}")
        cexp(2,f"s{S_G0+2}"); cexp(4,f"s{S_G0+3}"); cexp(6,f"v{SG}"); cexp(0,None)
        NR,DEN,u2=235,236,240
        A(f"v_add_f32 v{NR}, -1.0, v{C}"); A(f"v_mul_f32 v{DEN}, v{LR}, v{LR}"); A(f"v_fmac_f32 v{DEN}, v{LI}, v{LI}"); A(f"v_rcp_f32 v{DEN}, v{DEN}")
        A(f"v_mul_f32 v{u2}, v{NR}, v{LR}"); A(f"v_fmac_f32 v{u2}, v{S}, v{LI}"); A(f"v_mul_f32 v{u2+1}, v{S}, v{LR}"); A(f"v_fma_f32 v{u2+1}, -v{NR}, v{LI}, v{u2+1}")
        A(f"v_add_f32 v{DEN}, v{DEN}, v{DEN}"); A(f"v_mul_f32 v{u2}, v{u2}, v{DEN}"); A(f"v_mul_f32 v{u2+1}, v{u2+1}, v{DEN}")
        A(f"v_accvgpr_write_b32 a{A_K+8}, v{u2}"); A(f"v_accvgpr_write_b32 a{A_K+9}, v{u2+1}")
        return L

    def code_prefetch(self):
        p=self.p
        p.I(f"s_getpc_b64 s[{R_T2}:{R_T2+1}]\nL_pc:")
        p.I(f"s_mov_b32 s{R_T2+2}, L_codeend-L_pc\ns_mov_b32 s{R_T2+3}, 0x20000")
        p.I(f"s_bfe_u32 s{S_T0}, s2, 0x30003\ns_lshl_b32 s{S_T0}, s{S_T0}, 12\nv_lshlrev_b32 v{V_T}, 4, v0")
        p.I(f"buffer_load_dwordx4 a[252:255], v{V_T}, {sr(R_T2)}, s{S_T0} offen")

    def flag_op(self, op, idx_sgpr_expr_items, valsrc, R=R_DBG):
        L=[mk(x) for x in idx_sgpr_expr_items]
        L+=[mk(f"s_cmp_eq_u32 s{S_W}, 0"), mk(f"s_cselect_b32 s{S_T0}, s{S_T0}, {OOB}"),
            mk(f"v_mov_b32 v{V_U+6}, {OOB}"), mk(f"v_mov_b32 v{V_U+7}, s{S_T0}"), mk(f"v_cmp_eq_u32 vcc, 0, v{V_L}"),
            mk(f"v_cndmask_b32 v{V_U+6}, v{V_U+6}, v{V_U+7}, vcc"), mk(f"v_mov_b32 v{V_U+7}, {valsrc}"),
            mk(f"buffer_atomic_{op} v{V_U+7}, v{V_U+6}, {sr(R)}, 0 offen sc1")]
        return L

    def pass1(self):
        lr,li=V_U,V_U+1; e=[(V_T,V_T+1),(V_T+2,V_T+3)]
        e=[(26,27),(28,29)]
        L=[mk(f"v_accvgpr_read_b32 v{lr}, a{A_K}"), mk(f"v_accvgpr_read_b32 v{li}, a{A_K+1}")]
        L+=[mk(f"v_lshrrev_b32 v{V_U+2}, 5, v{V_L}"), mk(f"s_lshl_b32 s{S_T0}, s{S_W}, 1"), mk(f"v_add_u32 v{V_U+2}, s{S_T0}, v{V_U+2}"), mk(f"v_lshlrev_b32 v{V_U+2}, 8, v{V_U+2}"),
            mk(f"v_and_b32 v{V_U+3}, 31, v{V_L}"), mk(f"v_lshlrev_b32 v{V_U+3}, 3, v{V_U+3}"), mk(f"v_add_u32 v{V_U+3}, {L_EX}, v{V_U+3}"), mk(f"v_add_u32 v{V_U+2}, v{V_U+2}, v{V_U+3}")]
        cr,ci=V_SRE,V_SIM
        for r in range(1,16):
            nr,ni=e[r&1]
            L+=[mk(f"v_fma_f32 v{nr}, v{lr}, v{cr}, v{V_SRE+r}"), mk(f"v_fma_f32 v{ni}, v{lr}, v{ci}, v{V_SIM+r}"),
                mk(f"v_fma_f32 v{nr}, -v{li}, v{ci}, v{nr}"), mk(f"v_fma_f32 v{ni}, v{li}, v{cr}, v{ni}")]
            cr,ci=nr,ni
        w=mk(f"ds_write_b64 v{V_U+2}, {vr(cr,2)}"); L.append(w)
        return L,w

    def exchange(self):
        ER=V_U+3
        l16r,l16i=V_U,V_U+1
        L=[mk(f"v_accvgpr_read_b32 v{l16r}, a{A_K+2}"), mk(f"v_accvgpr_read_b32 v{l16i}, a{A_K+3}")]
        rd=[mk(f"ds_read_b64 {ar(A_K+16+2*k,2)}, v{ER} offset:{256*k}") for k in range(8)]
        L+=rd
        Pr,Pi=26,27; Nr,Ni=28,29; Er,Ei=30,31; Sr,Si=V_U+4,V_U+5
        L+=[Wait(lgkm=rd[:2]), mk(f"v_accvgpr_read_b32 v{Pr}, a{A_K+16}"), mk(f"v_accvgpr_read_b32 v{Pi}, a{A_K+17}"),
            mk(f"v_mov_b32 v{Sr}, 0"), mk(f"v_mov_b32 v{Si}, 0"), mk(f"s_lshl_b32 s{S_T0}, s{S_W}, 1"), mk(f"s_add_u32 s{S_T1}, s{S_T0}, 1")]
        for k in range(1,8):
            L+=[mk(f"s_cmp_eq_u32 s{S_T0}, {k}"), mk(f"s_cselect_b32 s{S_M0}, -1, 0"), mk(f"s_cmp_eq_u32 s{S_T1}, {k}"), mk(f"s_cselect_b32 s{S_M0+1}, -1, 0"),
                Wait(lgkm=rd[k]), mk(f"v_accvgpr_read_b32 v{Er}, a{A_K+16+2*k}"), mk(f"v_accvgpr_read_b32 v{Ei}, a{A_K+17+2*k}"),
                mk(f"v_cndmask_b32 v{Sr}, v{Sr}, v{Pr}, s[{S_M0}:{S_M0+1}]"), mk(f"v_cndmask_b32 v{Si}, v{Si}, v{Pi}, s[{S_M0}:{S_M0+1}]"),
                mk(f"v_fma_f32 v{Nr}, v{l16r}, v{Pr}, v{Er}"), mk(f"v_fma_f32 v{Ni}, v{l16r}, v{Pi}, v{Ei}"),
                mk(f"v_fma_f32 v{Nr}, -v{l16i}, v{Pi}, v{Nr}"), mk(f"v_fma_f32 v{Ni}, v{l16i}, v{Pr}, v{Ni}")]
            Pr,Pi,Nr,Ni=Nr,Ni,Pr,Pi
        L+=[mk(f"v_accvgpr_write_b32 a{A_KS+10}, v{Sr}"), mk(f"v_accvgpr_write_b32 a{A_KS+11}, v{Si}")]
        L+=[mk(f"s_lshl_b32 s{S_T0}, s{S_C}, 12"), mk(f"s_lshl_b32 s{S_T1}, s{S_J}, 8"), mk(f"s_add_u32 s{S_T0}, s{S_T0}, s{S_T1}"), mk(f"s_add_u32 s{S_T0}, s{S_T0}, {WS_E}"),
            mk(f"s_cmp_eq_u32 s{S_W}, 0"), mk(f"s_cselect_b32 s{S_T0}, s{S_T0}, {OOB}"),
            mk(f"v_lshlrev_b32 v{Er}, 3, v{V_L}"), mk(f"v_add_u32 v{Er}, s{S_T0}, v{Er}"), mk(f"v_mov_b32 v{Ei}, {OOB}"), mk(f"v_cmp_gt_u32 vcc, 32, v{V_L}"),
            mk(f"v_cndmask_b32 v{Er}, v{Ei}, v{Er}, vcc")]
        st=mk(f"buffer_store_dwordx2 {vr(Pr,2)}, v{Er}, {sr(R_WS)}, 0 offen sc1"); L.append(st)
        return L,st

    def poll_issue(self, vdst, off_items, R=R_DBG, w0only=False, off2=None):
        L=[mk(x) for x in off_items]
        if w0only:
            L+=[mk(f"s_cmp_eq_u32 s{S_W}, 0"), mk(f"s_cselect_b32 s{S_T0}, s{S_T0}, {OOB}")]
            if off2: L+=[mk(f"s_cselect_b32 s{S_T1}, s{S_T1}, {OOB}")]
        L+=[mk(f"v_mov_b32 v{vdst+1}, {OOB}"), mk(f"v_mov_b32 v{V_U+7}, s{S_T0}"), mk(f"v_cmp_eq_u32 vcc, 0, v{V_L}"), mk(f"v_cndmask_b32 v{vdst+1}, v{vdst+1}, v{V_U+7}, vcc")]
        if off2:
            L+=[mk(f"v_mov_b32 v{V_U+7}, s{S_T1}"), mk(f"v_cmp_eq_u32 vcc, 1, v{V_L}"), mk(f"v_cndmask_b32 v{vdst+1}, v{vdst+1}, v{V_U+7}, vcc")]
        t=mk(f"buffer_load_dword v{vdst}, v{vdst+1}, {sr(R)}, 0 offen sc1"); L.append(t)
        return L,t
    def poll_check(self, name, vdst, tok, cond_items, R=R_DBG, w0only=False, two=False, sleep=1):
        sid={"g":20,"e":24,"a":28}[name]
        rl=[f"v_readlane_b32 s{S_T0}, v{vdst}, 0"]+([f"v_readlane_b32 s{S_T1}, v{vdst}, 1"] if two else [])
        L=self.stamp(sid)+([mk(f"s_mov_b32 s{S_CNT}, 0")] if self.o.get("stamps") else [])+[Wait(vm=tok)]+self.stamp(sid+1)
        if w0only: L+=[mk(f"s_cmp_lg_u32 s{S_W}, 0"), mk(f"s_cbranch_scc1 L_back_{name}")]
        L+=[mk(x) for x in rl]+[mk(x) for x in cond_items]
        L+=[mk(f"s_cbranch_scc0 L_slow_{name}"), mk(f"L_back_{name}:")]+self.stamp(sid+2)+self.note(sid+3,S_CNT)
        S=[f"L_slow_{name}:", f"s_mov_b32 s{S_CNT}, 0", f"L_loop_{name}:"]+([f"s_sleep {sleep}"] if sleep else [])+[
           f"buffer_load_dword v{vdst}, v{vdst+1}, {sr(R)}, 0 offen sc1", "s_waitcnt vmcnt(0)"]+rl+["s_nop 1",
           f"s_add_u32 s{S_CNT}, s{S_CNT}, 1", f"s_cmp_gt_u32 s{S_CNT}, 100000", f"s_cbranch_scc1 L_back_{name}"]
        S+=cond_items+[f"s_cbranch_scc1 L_back_{name}", f"s_branch L_loop_{name}"]
        self.slow+=S
        return L

    def g_loads(self):
        L=[]
        T=V_T
        L+=[mk(f"v_bfe_u32 v{T}, v{V_L}, 2, 1"), mk(f"v_lshlrev_b32 v{T}, 4, v{T}"), mk(f"v_bfe_u32 v{T+1}, v{V_L}, 3, 2"), mk(f"v_lshlrev_b32 v{T+1}, 2, v{T+1}"),
            mk(f"v_add_u32 v{T}, v{T}, v{T+1}"), mk(f"v_and_b32 v{T+1}, 3, v{V_L}"), mk(f"v_add_u32 v{T}, v{T}, v{T+1}"), mk(f"v_lshlrev_b32 v{T}, 2, v{T}"),
            mk(f"s_lshl_b32 s{S_T0}, s{S_C}, 2"), mk(f"s_add_u32 s{S_T0}, s{S_T0}, s{S_W}"), mk(f"s_lshl_b32 s{S_T0}, s{S_T0}, 7"), mk(f"s_add_u32 s{S_T0}, s{S_T0}, {WS_G}")]
        t0=mk(f"buffer_load_dword v14, v{T}, {sr(R_WS)}, s{S_T0} offen sc1"); L.append(t0)
        L+=[mk(f"v_lshrrev_b32 v{T+1}, 5, v{V_L}"), mk(f"v_lshlrev_b32 v{T+1}, 6, v{T+1}")]
        toks=[t0]
        for i,r in enumerate((2,6,10,18)):
            t=mk(f"buffer_load_dwordx4 {vr(r,4)}, v{T+1}, {sr(R_WS)}, s{S_T0} offen offset:{16*i} sc1"); L.append(t); toks.append(t)
        return L,toks
    GREG=[2,3,4,5,6,7,8,9,10,11,12,13,18,19,20,21]

    def e_loads(self):
        T=V_T
        L=[mk(f"v_and_b32 v{T+2}, 31, v{V_L}"), mk(f"v_lshlrev_b32 v{T+2}, 3, v{T+2}"), mk(f"s_lshl_b32 s{S_T1}, s{S_J}, 8"), mk(f"s_add_u32 s{S_T1}, s{S_T1}, {WS_E}"), mk(f"v_add_u32 v{T+2}, s{S_T1}, v{T+2}")]
        toks=[]
        for m in range(15):
            a=T+3+(m&1)
            L+=[mk(f"s_sub_u32 s{S_T0}, s{S_C}, {m+1}"), mk(f"s_lshl_b32 s{S_T0}, s{S_T0}, 12"), mk(f"s_cmp_gt_u32 s{S_C}, {m}"), mk(f"s_cselect_b32 s{S_T0}, s{S_T0}, {OOB}"),
                mk(f"v_add_u32 v{a}, s{S_T0}, v{T+2}")]
            t=mk(f"buffer_load_dwordx2 {ar(2*m,2)}, v{a}, {sr(R_WS)}, 0 offen sc1"); L.append(t); toks.append(t)
        return L,toks

    def ffn_epilogue(self, gtok):
        L=[]; st=[]
        IR=V_WF; C0,C1=S_K0,S_K0+1
        T=V_WF+2
        L+=[Wait(vm=gtok), mk(f"v_sub_f32 v{IR}, 1.0, v14"), mk(f"v_cvt_pk_bf16_f32 v{IR}, v{IR}, v{IR}"), mk(f"v_lshlrev_b32 v{IR}, 16, v{IR}"), mk(f"v_rcp_f32 v{IR}, v{IR}"),
            mk(self.fconst(S_T0,1e30)), mk(f"v_min_f32 v{IR}, s{S_T0}, v{IR}")]
        k0=-2.0*0.7978845608028654*self.LOG2E
        L+=[mk(self.fconst(C0,k0)), mk(self.fconst(C1,k0*0.044715))]
        L+=[mk(f"v_mov_b32 v{IR+1}, s{C0}")]
        L+=[mk(f"s_lshl_b32 s{S_AO}, s{S_C}, 2"), mk(f"s_add_u32 s{S_AO}, s{S_AO}, s{S_W}"), mk(f"s_mul_i32 s{S_AO}, s{S_AO}, 176"), mk(f"s_mul_i32 s{S_T0}, s{S_J}, 11"),
            mk(f"s_add_u32 s{S_AO}, s{S_AO}, s{S_T0}"), mk(f"s_lshl_b32 s{S_AO}, s{S_AO}, 10"), mk(f"v_lshlrev_b32 v{V_AO}, 4, v{V_L}")]
        for i in range(7):
            a=V_ACC+16*i
            o=T+24*(i&1)
            Z,Pd,K=o,o+8,o+16
            pr=[(a+j,a+4+j) for j in range(4)]+[(a+8+j,a+12+j) for j in range(4)]
            for e,(g,u) in enumerate(pr): L.append(mk(f"v_mul_f32 v{Z+e}, v{g}, v{g}"))
            for e,(g,u) in enumerate(pr): L.append(mk(f"v_fma_f32 v{Z+e}, v{Z+e}, s{C1}, v{IR+1}"))
            for e,(g,u) in enumerate(pr): L.append(mk(f"v_mul_f32 v{Z+e}, v{g}, v{Z+e}"))
            for e,(g,u) in enumerate(pr):
                L.append(mk(f"v_exp_f32 v{Z+e}, v{Z+e}")); L.append(mk(f"v_mul_f32 v{Pd+e}, v{g}, v{u}"))
            for e in range(8): L.append(mk(f"v_fma_f32 v{Z+e}, v{Z+e}, v{IR}, v{IR}"))
            for e in range(8): L.append(mk(f"v_rcp_f32 v{Z+e}, v{Z+e}"))
            for e in range(8): L.append(mk(f"v_mul_f32 v{Pd+e}, v{Pd+e}, v{Z+e}"))
            for e in range(4): L.append(mk(f"v_cvt_pk_bf16_f32 v{K+e}, v{Pd+2*e}, v{Pd+2*e+1}"))
            off=1024*i
            if i==4: L.append(mk(f"s_add_u32 s{S_AO}, s{S_AO}, 4096"))
            t=mk(f"buffer_store_dwordx4 {vr(K,4)}, v{V_AO}, {sr(R_WS)}, s{S_AO} offen offset:{1024*(i&3)} sc1"); L.append(t); st.append(t)
        return L,st

    def ssm_epilogue(self, etok, gtok, tbase_items):
        L=[]; st=[]
        LR,LI,QR,QI,SR_,SI=32,33,34,35,36,37
        HR,HI,NR,NI=38,39,40,41
        L+=[mk(f"v_accvgpr_read_b32 v{QR}, a{A_KS+4}"), mk(f"v_accvgpr_read_b32 v{QI}, a{A_KS+5}")]
        L+=[Wait(vm=etok), mk(f"v_accvgpr_read_b32 v{HR}, a28"), mk(f"v_accvgpr_read_b32 v{HI}, a29")]
        er,ei=42,43
        for m in range(13,-1,-1):
            L+=[mk(f"v_accvgpr_read_b32 v{er}, a{2*m}"), mk(f"v_accvgpr_read_b32 v{ei}, a{2*m+1}"),
                mk(f"v_fma_f32 v{NR}, v{QR}, v{HR}, v{er}"), mk(f"v_fma_f32 v{NI}, v{QR}, v{HI}, v{ei}"),
                mk(f"v_fma_f32 v{NR}, -v{QI}, v{HI}, v{NR}"), mk(f"v_fma_f32 v{NI}, v{QI}, v{HR}, v{NI}")]
            HR,HI,NR,NI=NR,NI,HR,HI
        L+=[mk(f"v_accvgpr_read_b32 v{QR}, a{A_KS+6}"), mk(f"v_accvgpr_read_b32 v{QI}, a{A_KS+7}"), mk(f"v_accvgpr_read_b32 v{er}, a{A_KS+10}"), mk(f"v_accvgpr_read_b32 v{ei}, a{A_KS+11}"),
            mk(f"v_fma_f32 v{NR}, v{QR}, v{HR}, v{er}"), mk(f"v_fma_f32 v{NI}, v{QR}, v{HI}, v{ei}"),
            mk(f"v_fma_f32 v{NR}, -v{QI}, v{HI}, v{NR}"), mk(f"v_fma_f32 v{NI}, v{QI}, v{HR}, v{NI}")]
        HR,HI,NR,NI=NR,NI,HR,HI
        L+=[mk(f"v_accvgpr_read_b32 v{LR}, a{A_KS}"), mk(f"v_accvgpr_read_b32 v{LI}, a{A_KS+1}"), mk(f"v_accvgpr_read_b32 v{SR_}, a{A_KS+8}"), mk(f"v_accvgpr_read_b32 v{SI}, a{A_KS+9}"), Wait(vm=gtok)]
        for r in range(16):
            g=self.GREG[r]
            L+=[mk(f"v_fma_f32 v{NR}, v{LR}, v{HR}, v{V_SRE+r}"), mk(f"v_fma_f32 v{NI}, v{LR}, v{HI}, v{V_SIM+r}"),
                mk(f"v_fma_f32 v{NR}, -v{LI}, v{HI}, v{NR}"), mk(f"v_fma_f32 v{NI}, v{LI}, v{HR}, v{NI}")]
            HR,HI,NR,NI=NR,NI,HR,HI
            L+=[mk(f"v_mul_f32 v{er}, v{SR_}, v{HR}"), mk(f"v_mul_f32 v{ei}, v{SR_}, v{HI}"),
                mk(f"v_fma_f32 v{er}, -v{SI}, v{HI}, v{er}"), mk(f"v_fma_f32 v{ei}, v{SI}, v{HR}, v{ei}"),
                mk(f"v_mul_f32 v{V_SRE+r}, v{g}, v{er}"), mk(f"v_mul_f32 v{V_SIM+r}, -v{g}, v{ei}")]
        PK=64
        for m,base in enumerate((V_SRE,V_SIM)):
            for e in range(8): L.append(mk(f"v_cvt_pk_bf16_f32 v{PK+8*m+e}, v{base+2*e}, v{base+2*e+1}"))
        TW,TR0,TR1=44,45,46
        L+=tbase_items
        n_=47
        L+=[mk(f"v_and_b32 v{n_}, 31, v{V_L}"), mk(f"v_lshlrev_b32 v{TW}, 6, v{n_}"), mk(f"v_bfe_u32 v{n_+1}, v{V_L}, 1, 2"),
            mk(f"v_lshrrev_b32 v{n_+2}, 5, v{V_L}"), mk(f"v_lshlrev_b32 v{n_+2}, 1, v{n_+2}"),
            mk(f"v_xor_b32 v{n_+2}, v{n_+2}, v{n_+1}"),
            mk(f"v_lshlrev_b32 v{n_+3}, 4, v{n_+2}"), mk(f"v_xor_b32 v{n_+2}, 1, v{n_+2}"), mk(f"v_lshlrev_b32 v{n_+2}, 4, v{n_+2}"),
            mk(f"v_add_u32 v{TW}, s{S_T0}, v{TW}"), mk(f"v_add_u32 v{n_+2}, v{TW}, v{n_+2}"), mk(f"v_add_u32 v{TW}, v{TW}, v{n_+3}")]
        wr=[]
        for m in range(2):
            wr.append(mk(f"ds_write_b128 v{TW}, {vr(PK+8*m,4)} offset:{2048*m}")); wr.append(mk(f"ds_write_b128 v{n_+2}, {vr(PK+8*m+4,4)} offset:{2048*m}"))
        L+=wr
        a=n_+4
        L+=[mk(f"v_lshrrev_b32 v{a}, 5, v{V_L}"), mk(f"v_lshlrev_b32 v{a}, 3, v{a}"), mk(f"v_bfe_u32 v{a+1}, v{V_L}, 2, 2"), mk(f"v_add_u32 v{a}, v{a}, v{a+1}"), mk(f"v_lshlrev_b32 v{a}, 6, v{a}"),
            mk(f"v_and_b32 v{a+1}, 1, v{V_L}"), mk(f"v_lshlrev_b32 v{a+1}, 1, v{a+1}"), mk(f"v_bfe_u32 v{a+2}, v{V_L}, 4, 1"), mk(f"v_add_u32 v{a+1}, v{a+1}, v{a+2}"),
            mk(f"v_bfe_u32 v{a+2}, v{V_L}, 3, 1"), mk(f"v_xor_b32 v{a+1}, v{a+1}, v{a+2}"),
            mk(f"v_bfe_u32 v{a+2}, v{V_L}, 1, 1"), mk(f"v_lshlrev_b32 v{a+2}, 3, v{a+2}"), mk(f"v_add_u32 v{a}, v{a}, v{a+2}"), mk(f"v_add_u32 v{a}, s{S_T0}, v{a}"),
            mk(f"v_lshlrev_b32 v{a+2}, 4, v{a+1}"), mk(f"v_add_u32 v{TR0}, v{a}, v{a+2}"),
            mk(f"v_xor_b32 v{a+1}, 2, v{a+1}"), mk(f"v_lshlrev_b32 v{a+2}, 4, v{a+1}"), mk(f"v_add_u32 v{TR1}, v{a}, v{a+2}"), mk(f"v_add_u32 v{TR1}, 256, v{TR1}")]
        L+=[Wait(lgkm=wr)]
        OUT=80
        rd=[]
        for b in range(4):
            m,mu=b>>1,b&1
            rd.append(mk(f"ds_read_b64_tr_b16 {vr(OUT+4*b,2)}, v{TR0} offset:{2048*m+1024*mu}")); rd.append(mk(f"ds_read_b64_tr_b16 {vr(OUT+4*b+2,2)}, v{TR1} offset:{2048*m+1024*mu}"))
        L+=rd
        L+=[mk(f"s_add_u32 s{S_AO}, s{S_AO}, 3072")]
        for b in range(4):
            t=mk(f"buffer_store_dwordx4 {vr(OUT+4*b,4)}, v{V_AO}, {sr(R_WS)}, s{S_AO} offen offset:{1024*b} sc1")
            L+=[Wait(lgkm=rd[2*b:2*b+2]), t]; st.append(t)
        self.t_reads=rd
        return L,st

    def copy_consts(self):
        return [mk(f"v_accvgpr_mov_b32 a{A_KS+i}, a{A_K+i}") for i in range(10)]

    def blk_areg(self,b):
        if b<8: return 192+8*b
        if b<12: return 128+8*(b-8)
        if b<14: return 32+8*(b-12)
        if b<16: return 176+8*(b-14)
        return 64+8*(b-16)
    def p3_patterns1(self):
        l=f"v{V_L}"; a,b,c=V_T,30,31
        L=[]; A=lambda x: L.append(mk(x))
        A(f"s_mul_i32 s{S_RG}, s{S_W}, {REGION}"); A(f"s_lshl_b32 s{S_TB}, s{S_W}, 14"); A(f"s_add_u32 s{S_TB}, s{S_TB}, {L_B}")
        A(f"v_lshrrev_b32 v{a}, 3, {l}"); A(f"v_lshlrev_b32 v{a}, 10, v{a}"); A(f"v_bfe_u32 v{b}, {l}, 4, 1"); A(f"v_lshlrev_b32 v{b}, 2, v{b}"); A(f"v_and_b32 v{c}, 7, {l}")
        A(f"v_xor_b32 v{b}, v{b}, v{c}"); A(f"v_lshlrev_b32 v{b}, 4, v{b}"); A(f"v_add_u32 v{V_FD}, v{a}, v{b}"); A(f"v_add_u32 v{V_FD+1}, 7168, v{V_FD}")
        A(f"v_lshrrev_b32 v{a}, 5, {l}"); A(f"v_lshlrev_b32 v{a}, 2, v{a}"); A(f"v_bfe_u32 v{b}, {l}, 2, 2"); A(f"v_add_u32 v{a}, v{a}, v{b}"); A(f"v_lshlrev_b32 v{a}, 7, v{a}")
        A(f"v_bfe_u32 v{b}, {l}, 4, 1"); A(f"v_lshlrev_b32 v{b}, 5, v{b}"); A(f"v_add_u32 v{a}, v{a}, v{b}"); A(f"v_and_b32 v{b}, 3, {l}"); A(f"v_lshlrev_b32 v{b}, 3, v{b}"); A(f"v_add_u32 v{a}, v{a}, v{b}")
        A(f"v_add_u32 v{a}, s{S_TB}, v{a}"); A(f"v_bfe_u32 v{b}, {l}, 3, 1"); A(f"v_lshlrev_b32 v{b}, 6, v{b}"); A(f"v_add_u32 v{V_FR}, v{a}, v{b}"); A(f"v_xor_b32 v{b}, 64, v{b}"); A(f"v_add_u32 v{V_FR+1}, v{a}, v{b}")
        A(f"s_mul_i32 s{S_FO}, s{S_W}, {448*1024}"); A(f"s_lshl_b32 s{S_G0+4}, s{S_CB}, 7"); A(f"s_add_u32 s{S_FO}, s{S_FO}, s{S_G0+4}")
        for k,v in enumerate((f"s{P_WD}",f"s{P_WD+1}",1792*1024,"0x20000")): A(f"s_mov_b32 s{R_T+k}, {v}")
        return L
    def p3_patterns2(self):
        l=f"v{V_L}"; a,b,c=V_T,30,31
        L=[]; A=lambda x: L.append(mk(x))
        A(f"v_lshrrev_b32 v{a}, 3, {l}"); A(f"v_lshlrev_b32 v{a}, 10, v{a}"); A(f"v_and_b32 v{c}, 7, {l}")
        A(f"v_lshrrev_b32 v{b}, 4, {l}"); A(f"v_xor_b32 v{b}, v{b}, v{c}"); A(f"v_xor_b32 v{c}, 4, v{b}"); A(f"v_lshlrev_b32 v{b}, 4, v{b}"); A(f"v_lshlrev_b32 v{c}, 4, v{c}")
        for q in range(4):
            A(f"v_add_u32 v{V_CD+q}, v{a}, v{b if q%2==0 else c}")
            if q: A(f"v_add_u32 v{V_CD+q}, {7168*q}, v{V_CD+q}")
        A(f"v_and_b32 v{a}, 31, {l}"); A(f"v_lshlrev_b32 v{a}, 7, v{a}"); A(f"v_add_u32 v{a}, s{S_RG}, v{a}"); A(f"v_bfe_u32 v{b}, {l}, 1, 3"); A(f"v_lshrrev_b32 v{c}, 5, {l}"); A(f"v_xor_b32 v{b}, v{b}, v{c}")
        for s in range(4):
            A(f"v_xor_b32 v{c}, {2*s}, v{b}"); A(f"v_lshlrev_b32 v{c}, 4, v{c}"); A(f"v_add_u32 v{V_CR[s]}, v{a}, v{c}")
        A(f"s_lshl_b32 s{S_CO}, s{S_CB}, 16"); A(f"s_lshl_b32 s{S_T0}, s{S_W}, 8"); A(f"s_add_u32 s{S_CO}, s{S_CO}, s{S_T0}")
        for reg,ptr,size in ((R_B,P_CRE,512*1024),(R_W,P_CIM,512*1024)):
            A(f"s_mov_b32 s{reg}, s{ptr}"); A(f"s_mov_b32 s{reg+1}, s{ptr+1}"); A(f"s_mov_b32 s{reg+2}, {size}"); A(f"s_mov_b32 s{reg+3}, 0x20000")
        return L
    def p3_rebase_after(self, rd2):
        return [Wait(lgkm=sum(rd2.values(),[]))]+self.p3_rebase()
    def p3_rebase(self):
        return [mk(f"s_sub_u32 s{S_T0}, s{S_RG}, s{S_TB}"), mk(f"v_add_u32 v{V_FR}, s{S_T0}, v{V_FR}"), mk(f"v_add_u32 v{V_FR+1}, s{S_T0}, v{V_FR+1}")]
    def p3_dma_f(self, b, slot, tail=False):
        L=[mk(f"s_add_u32 m0, s{S_TB if tail else S_RG}, {slot*2048}"), mk(f"s_add_u32 s{S_PO}, s{S_FO}, {b*16*1024}")]
        t=[mk(f"buffer_load_dwordx4 v{V_FD+i}, {sr(R_T)}, s{S_PO} offen offset:{1024*i} lds") for i in range(2)]
        return L+t,t
    def p3_dma_c(self, k):
        mat,ph,ct=k>>2,(k>>1)&1,k&1
        L=[mk(f"s_add_u32 m0, s{S_RG}, {k*4096}"), mk(f"s_add_u32 s{S_PO}, s{S_CO}, {ct*32*1024+ph*128}")]
        t=[mk(f"buffer_load_dwordx4 v{V_CD+q}, {sr(R_W if mat else R_B)}, s{S_PO} offen offset:{1024*q} lds") for q in range(4)]
        return L+t,t
    def p3_rd_f(self, slot, dst, agpr):
        R=ar if agpr else vr
        return [mk(f"ds_read_b64_tr_b16 {R(dst+4*ct+2*q,2)}, v{V_FR+ct} offset:{slot*2048+1024*q}") for ct in range(2) for q in range(2)]
    def p3_rd_c(self, mat, ph, s, dst):
        return [mk(f"ds_read_b128 {vr(dst+4*ct,4)}, v{V_CR[s]} offset:{(4*mat+2*ph+ct)*4096}") for ct in range(2)]

    @staticmethod
    def cost(it):
        if isinstance(it,Wait): return 2
        if it.kind=="label": return 0
        if it.op in TRANS: return 8
        if it.kind=="vmem": return 12
        return 4
    def merge_time(self, stream, ev, t=0):
        out=[]; i=0
        for it in stream:
            sccuse = (not isinstance(it,Wait)) and (it.op.startswith("s_cselect") or it.op.startswith("s_cbranch_scc") or it.op.startswith("s_addc"))
            while (not sccuse) and i<len(ev) and ev[i][0]<=t:
                for x in ev[i][1]:
                    out.append(x); t+=self.cost(x)
                i+=1
            out.append(it); t+=self.cost(it)
        return out,ev[i:],t

    def phase3(self, tok):
        p=self.p
        ACC=32; RING=96; D=self.o.get('ring',12); BJ=96+8*D
        order=[("f",b) for b in range(26)]+[("c",1,ph,s) for ph in range(2) for s in range(4)]+[("c",0,ph,s) for ph in range(2) for s in range(4)]+[("f",26),("f",27)]
        def krel(st):
            if st[0]=="f": return 11*(st[1]//7)+st[1]%7
            _,mat,ph,s=st
            return 11*(2*ph+(s>>1))+7+2*mat+(s&1)
        p.I(f"s_lshl_b32 s{S_A0}, s{S_C3}, 2\ns_lshl_b32 s{S_T0}, s{S_RH}, 1\ns_add_u32 s{S_A0}, s{S_A0}, s{S_T0}\ns_mul_i32 s{S_A0}, s{S_A0}, 176\ns_mul_i32 s{S_T0}, s{S_W}, 44\ns_add_u32 s{S_A0}, s{S_A0}, s{S_T0}\ns_lshl_b32 s{S_A0}, s{S_A0}, 10\ns_add_u32 s{S_A0+1}, s{S_A0}, {176*1024}")
        def aload(i):
            st=order[i]; r=RING+8*(i%D); k=krel(st)*1024
            L=[mk(f"s_add_u32 s{S_T2}, s{S_A0}, {k}"), mk(f"s_add_u32 s{S_T3}, s{S_A0+1}, {k}")]
            t=[mk(f"buffer_load_dwordx4 {vr(r+4*e,4)}, v{V_AO}, {sr(R_WS)}, s{S_T2+e} offen sc1") for e in range(2)]
            return [L[0],t[0],L[1],t[1]],t
        at={}
        for i in range(D):
            L,at[i]=aload(i); p.add(L)
        post=self.final_loads()
        p.add(post)
        brd={}
        def bread(i):
            st=order[i]; dst=BJ+8*(i%3)
            if st[0]=="f":
                b=st[1]
                if b<24: return None
                slot={24:16,25:17,26:18,27:19}[b]
                return [Wait(vm=tok[("f",b)])]+self.p3_rd_f(slot,dst,False)
            _,mat,ph,s=st
            w=[Wait(vm=tok[("c",4*mat+2*ph+ct)]) for ct in range(2)]
            return w+self.p3_rd_c(mat,ph,s,dst)
        n=len(order)
        for i in range(n):
            st=order[i]
            fill=[]
            if i+2<n:
                r=bread(i+2)
                if r: brd[i+2]=[x for x in r if not isinstance(x,Wait)]; fill+=r
            r=RING+8*(i%D)
            if st[0]=="f" and st[1]<24: B=lambda ct,b=st[1]: ar(self.blk_areg(b)+4*ct,4)
            else: B=lambda ct,i=i: vr(BJ+8*(i%3)+4*ct,4)
            mf=[]
            for tau in range(2):
                for ct in range(2):
                    a=ACC+16*(2*tau+ct)
                    mf.append(mk(f"v_mfma_f32_32x32x16_bf16 {vr(a,16)}, {vr(r+4*tau,4)}, {B(ct)}, {'0' if i==0 else vr(a,16)}"))
            p.wait(vm=at[i][0])
            if i in brd: p.wait(lgkm=brd[i])
            p.add(mf[0]); p.add(fill[:3]); p.add(mf[1]); p.add(fill[3:])
            p.wait(vm=at[i][1])
            p.add(mf[2]); p.add(mf[3])
            if i+D<n:
                L,at[i+D]=aload(i+D); p.add(L)

    def final_loads(self):
        L=[]; A=lambda x: L.append(mk(x)) or L[-1]
        XV,GV,DV=2,216,18
        a=V_T
        A(f"s_lshl_b32 s{S_R0}, s{S_C3}, 7"); A(f"s_lshl_b32 s{S_T0}, s{S_RH}, 6"); A(f"s_add_u32 s{S_R0}, s{S_R0}, s{S_T0}"); A(f"s_lshr_b32 s{S_T0}, s{S_W}, 1"); A(f"s_lshl_b32 s{S_T0}, s{S_T0}, 5"); A(f"s_add_u32 s{S_R0}, s{S_R0}, s{S_T0}")
        A(f"s_lshl_b32 s{S_D0}, s{S_CB}, 6"); A(f"s_and_b32 s{S_T0}, s{S_W}, 1"); A(f"s_lshl_b32 s{S_T0}, s{S_T0}, 5"); A(f"s_add_u32 s{S_D0}, s{S_D0}, s{S_T0}")
        A(f"v_lshrrev_b32 v{a}, 5, v{V_L}"); A(f"v_lshlrev_b32 v{a+1}, 6, v{a}"); A(f"s_lshl_b32 s{S_T0}, s{S_R0}, 2"); A(f"s_add_u32 s{S_T0}, s{S_T0}, {WS_G}")
        toks=[]
        for i in range(4): toks.append(A(f"buffer_load_dwordx4 {vr(GV+4*i,4)}, v{a+1}, {sr(R_WS)}, s{S_T0} offen offset:{16*i} sc1"))
        for i,(v) in enumerate((P_DSK,P_DSK+1)): A(f"s_mov_b32 s{R_T2+i}, s{v}")
        A(f"s_mov_b32 s{R_T2+2}, 1024"); A(f"s_mov_b32 s{R_T2+3}, 0x20000")
        A(f"v_and_b32 v{a+2}, 31, v{V_L}"); A(f"v_add_u32 v{a+2}, s{S_D0}, v{a+2}"); A(f"v_lshlrev_b32 v{a+2}, 1, v{a+2}")
        toks.append(A(f"buffer_load_ushort v{DV}, v{a+2}, {sr(R_T2)}, 0 offen"))
        A(f"v_lshlrev_b32 v{a}, 14, v{a}"); A(f"v_add_u32 v{a+2}, v{a+2}, v{a}"); A(f"s_lshl_b32 s{S_T0}, s{S_R0}, 10")
        for r in range(16):
            if r and r%4==0: A(f"s_add_u32 s{S_T0}, s{S_T0}, 4096")
            toks.append(A(f"buffer_load_ushort v{XV+r}, v{a+2}, {sr(R_X)}, s{S_T0} offen offset:{1024*(r%4)}"))
        A(f"v_and_b32 v{V_OO}, 31, v{V_L}"); A(f"v_add_u32 v{V_OO}, s{S_D0}, v{V_OO}"); A(f"v_lshlrev_b32 v{V_OO}, 2, v{V_OO}"); A(f"v_add_u32 v{V_OO}, v{V_OO}, v{a}"); A(f"v_add_u32 v{V_OO}, v{V_OO}, v{a}")
        self.fin_toks=toks
        return L

    def final(self):
        p=self.p
        ACC=32; XV,GV,DV=2,216,18
        a=V_T
        p.I(f"v_lshlrev_b32 v{a}, 4, v{V_L}\nv_add_u32 v{a}, s{S_RG}, v{a}")
        wr=[]
        p.I("s_nop 15")
        for w in range(4):
            p.I(f"s_cmp_eq_u32 s{S_W}, {w}\ns_cbranch_scc0 L_wr{w}")
            for k in range(1,4):
                t=(w+k)&3
                for q in range(4): wr.append(p.I(f"ds_write_b128 v{a}, {vr(ACC+16*t+4*q,4)} offset:{(k-1)*4096+q*1024}"))
            for r in range(16): p.I(f"v_mov_b32 v{96+r}, v{ACC+16*w+r}")
            p.I(f"L_wr{w}:")
        p.I("s_waitcnt lgkmcnt(0)\ns_barrier")
        rd=[]
        for k in range(1,4):
            p.I(f"s_sub_u32 s{S_T0}, s{S_W}, {k}\ns_and_b32 s{S_T0}, s{S_T0}, 3\ns_mul_i32 s{S_T0}, s{S_T0}, {REGION}\nv_lshlrev_b32 v{a+1}, 4, v{V_L}\nv_add_u32 v{a+1}, s{S_T0}, v{a+1}")
            for q in range(4): rd.append(p.I(f"ds_read_b128 {vr(112+16*(k-1)+4*q,4)}, v{a+1} offset:{(k-1)*4096+q*1024}"))
        p.wait(vm=self.fin_toks)
        p.I(f"v_lshlrev_b32 v{DV}, 16, v{DV}")
        for r in range(16): p.I(f"v_lshlrev_b32 v{XV+r}, 16, v{XV+r}")
        for r in range(16): p.I(f"v_mul_f32 v{XV+r}, v{XV+r}, v{DV}")
        for r in range(0,16,2): p.I(f"v_cvt_pk_bf16_f32 v{XV+r}, v{XV+r}, v{XV+r+1}")
        for r in range(0,16,2): p.I(f"v_and_b32 v{XV+r+1}, 0xffff0000, v{XV+r}\nv_lshlrev_b32 v{XV+r}, 16, v{XV+r}")
        for r in range(16): p.I(f"v_fmac_f32 v{96+r}, v{GV+r}, v{XV+r}")
        for k in range(3):
            p.wait(lgkm=rd[4*k:4*k+4])
            for r in range(16): p.I(f"v_add_f32 v{96+r}, v{96+r}, v{112+16*k+r}")
        srd(p,R_T2,P_OUT,2048*2048)
        p.I(f"s_lshl_b32 s{S_T0}, s{S_R0}, 11")
        fl=self.o.get("out_flags","")
        for r in range(16):
            if r and r%2==0: p.I(f"s_add_u32 s{S_T0}, s{S_T0}, 4096")
            p.I(f"buffer_store_dword v{96+r}, v{V_OO}, {sr(R_T2)}, s{S_T0} offen offset:{2048*(r%2)} {fl}")

    def stamp(self, idx):
        if not self.o.get("stamps"): return []
        only=self.o.get("only")
        if only is not None and idx not in only: return []
        L=[mk("s_memrealtime s[100:101]"), mk("s_waitcnt lgkmcnt(0)"), mk(f"v_writelane_b32 v{V_ST}, s100, {idx}")]
        if self.o.get("cyc"): L+=[mk("s_memtime s[100:101]"), mk("s_waitcnt lgkmcnt(0)"), mk(f"v_writelane_b32 v{V_ST}, s100, {idx+32}")]
        return L
    def note(self, idx, sreg):
        if not self.o.get("stamps"): return []
        return [mk("s_nop 0"), mk(f"v_writelane_b32 v{V_ST}, s{sreg}, {idx}")]
    def dump_stamps(self):
        if not self.o.get("stamps"): return
        p=self.p
        p.I(f"s_lshl_b32 s{S_T0}, s2, 2\ns_add_u32 s{S_T0}, s{S_T0}, s{S_W}\ns_lshl_b32 s{S_T0}, s{S_T0}, 8\ns_add_u32 s{S_T0}, s{S_T0}, {WS_DBG}")
        p.I(f"v_lshlrev_b32 v{V_T}, 2, v{V_L}")
        p.I(f"buffer_store_dword v{V_ST}, v{V_T}, {sr(R_WS)}, s{S_T0} offen")
        p.wait(vm_all=True)

    def dump_regs(self, regs, slot_base, agpr=False):
        p=self.p
        n=len(regs)
        p.I(f"s_lshl_b32 s{S_T0}, s2, 2\ns_add_u32 s{S_T0}, s{S_T0}, s{S_W}\ns_mul_i32 s{S_T0}, s{S_T0}, {n*256}\ns_add_u32 s{S_T0}, s{S_T0}, {slot_base}")
        p.I(f"v_lshlrev_b32 v{V_T}, 2, v{V_L}")
        for i,r in enumerate(regs):
            p.I(f"buffer_store_dword {r}, v{V_T}, {sr(R_WS)}, s{S_T0} offen")
            p.I(f"s_add_u32 s{S_T0}, s{S_T0}, 256")
        p.wait(vm_all=True)

    def finish(self):
        p=self.p
        p.I("s_endpgm")
        for x in self.slow: p.I(x)
        p.I("L_exit:\ns_endpgm\nL_codeend:")

    def text(self):
        items,npad,errs=finalize(self.p)
        for e in errs[:20]: print("ERR",e,file=sys.stderr)
        hdr=open("gated_mix__ssm_conv_s5__glu_gated_geglu__prompt.s.ref").read().split("; Override launch")[0]
        out=hdr+"; @launch grid=(256,1,1) block=(256,1,1) lds=163840\n"
        out+='.amdgcn_target "amdgcn-amd-amdhsa--gfx950"\n.text\n'
        out+=f".globl {KNAME}\n.p2align 8\n.type {KNAME},@function\n{KNAME}:\n"
        out+=emit(items)
        out+=f'''.section .rodata,"a"
.p2align 6
.amdhsa_kernel {KNAME}
  .amdhsa_next_free_vgpr 512
  .amdhsa_next_free_sgpr 102
  .amdhsa_accum_offset 256
  .amdhsa_group_segment_fixed_size 0
  .amdhsa_kernarg_size 136
  .amdhsa_user_sgpr_count 2
  .amdhsa_user_sgpr_kernarg_segment_ptr 1
  .amdhsa_system_sgpr_workgroup_id_x 1
.end_amdhsa_kernel
'''
        self.stats=dict(n=len(items),npad=npad,errs=len(errs))
        return out

def split(L,n):
    k=len(L); return [L[(k*i)//n:(k*(i+1))//n] for i in range(n)]

def build_full(opts=None, stop=None):
    g=Gen(opts=opts); p=g.p; o=g.o
    if o.get("stamps"): p.I(f"v_mov_b32 v{V_ST}, 0")
    p.add(g.stamp(0))
    g.prologue_a()
    ex={}; head={}
    def add(key,items): ex[key]=ex.get(key,[])+list(items)
    def addh(key,items): head[key]=head.get(key,[])+list(items)
    g.gl=[];g.kl=[]
    def late():
        G=g.gate_items(); K=g.const_items()
        parts=split(G,5)
        for key,part in zip([("S",0,1),("S",1,0),("S",1,1),("F",0,0),("F",0,1)],parts): add(key,part)
        for key,part in zip([("F",0,2),("S",2,0),("S",2,1),("S",3,0)],split(K,4)): add(key,part)
        addh(("F",1,3),[Wait(vm=[g.g_store,g.c_store])])
        add(("F",1,3),g.flag_op("add",[f"s_lshl_b32 s{S_T0}, s{S_C}, 4"],"1"))
    g.late=late
    L1,w1=g.pass1(); n=len(L1)
    tail={}
    def late2():
        add(("F",3,0),L1[:10]); add(("F",3,1),L1[10:10+(n-10)//2]); add(("F",3,2),L1[10+(n-10)//2:])
        addh(("F",3,3),[Wait(lgkm=w1)])
        add(("F",2,0),g.p3_patterns1())
        r1=[]; t1={}
        for b in range(8):
            L,t1[b]=g.p3_dma_f(b,b,tail=True); r1+=L
        add(("F",3,3),r1[:16]); add(("F",4,0),r1[16:])
        L2,est=g.exchange(); k=len(L2)//3
        add(("F",3,3),L2[:12]); add(("F",4,0),L2[12:12+k]); add(("F",4,1),L2[12+k:12+2*k]); add(("F",4,2),L2[12+2*k:])
        add(("F",4,3),g.copy_consts())
        rd1={b:g.p3_rd_f(b,g.blk_areg(b),True) for b in range(8)}
        add(("F",5,0),[Wait(vm=t1[3])]+sum([rd1[b] for b in range(4)],[]))
        add(("F",5,1),[Wait(vm=t1[7])]+sum([rd1[b] for b in range(4,8)],[]))
        add(("F",5,2),[Wait(vm=est)]+g.flag_op("or",[f"s_lshl_b32 s{S_T0}, s{S_J}, 4", f"s_add_u32 s{S_T0}, s{S_T0}, 4", f"s_lshl_b32 s{S_K0}, 1, s{S_C}"],f"s{S_K0}"))
        r2=[]; t2={}
        for b in range(8,16):
            L,t2[b]=g.p3_dma_f(b,b-8,tail=True)
            r2+=([Wait(lgkm=rd1[b-8])] if b in (8,12) else [])+L
        add(("F",5,2),r2[:17]); add(("F",5,3),r2[17:])
        Lp,tp=g.poll_issue(23,[f"s_lshl_b32 s{S_T0}, s{S_C}, 4", f"s_lshl_b32 s{S_T1}, s{S_C3}, 4"],w0only=True,off2=True)
        add(("F",6,0),Lp)
        addh(("F",6,3),g.poll_check("g",23,tp,[f"s_cmp_eq_u32 s{S_T0}, 16", f"s_cselect_b32 s{S_T1}, s{S_T1}, 0", f"s_cmp_eq_u32 s{S_T1}, 16"],w0only=True,two=True))
        Lg,gt=g.g_loads(); g.gt=gt
        add(("F",6,3),Lg)
        rd2={b:g.p3_rd_f(b-8,g.blk_areg(b),True) for b in range(8,16)}
        add(("F",6,1),g.p3_patterns2())
        add(("F",7,0),[Wait(vm=t2[11])]+sum([rd2[b] for b in range(8,12)],[]))
        add(("F",7,1),[Wait(vm=t2[15])]+sum([rd2[b] for b in range(12,16)],[]))
        Le0,te=g.poll_issue(30,[f"s_lshl_b32 s{S_T0}, s{S_J}, 4", f"s_add_u32 s{S_T0}, s{S_T0}, 4"])
        add(("F",7,0),Le0)
        addh(("F",7,3),[Wait(lgkm=sum(rd2.values(),[]))])
        Le1=g.poll_check("e",30,te,[f"s_lshl_b32 s{S_T1}, 1, s{S_C}", f"s_sub_u32 s{S_T1}, s{S_T1}, 1", f"s_and_b32 s{S_T0}, s{S_T0}, s{S_T1}", f"s_cmp_eq_u32 s{S_T0}, s{S_T1}"])
        Le2,et=g.e_loads(); g.et=et
        add(("F",7,2),g.p3_rebase_after(rd2))
        add(("F",7,3),Le1+Le2)
    g.late2=late2
    g.ex=ex; g.extra_head=head; g.end_barrier=True
    if o.get("stamps"):
        def st():
            for key,idx in ((("S",0,0),2),(("F",0,0),3),(("S",2,0),4),(("S",4,0),5),(("S",6,0),6),(("F",4,0),7),(("F",7,3),8)):
                ex[key]=g.stamp(idx)+ex.get(key,[])
        g.late3=st
    g.phase1(ex)
    p.add(g.stamp(9))
    tok={}
    pre=[]
    for b in range(16,24):
        L,tok[("f",b)]=g.p3_dma_f(b,b-16); pre+=L
    for k in (4,5,6,7):
        L,tok[("c",k)]=g.p3_dma_c(k); pre+=L
    for b,slot in ((24,16),(25,17)):
        L,tok[("f",b)]=g.p3_dma_f(b,slot); pre+=L
    Lf,sf=g.ffn_epilogue(g.gt[:1])
    Ls,ss=g.ssm_epilogue(g.et,g.gt[1:],[mk(f"s_add_u32 s{S_T0}, s{S_RG}, 36864")])
    ev=[(40*i,[x]) for i,x in enumerate(pre)]
    merged,rest,t=g.merge_time(Lf+Ls,ev)
    assert not rest
    p.I("s_nop 7")
    p.add(merged)
    p.add(g.stamp(10))
    p.wait(vm=sf+ss); p.add(g.stamp(11)); p.I("s_barrier")
    p.add(g.flag_op("add",[f"s_lshl_b32 s{S_T0}, s{S_C}, 7", f"s_add_u32 s{S_T0}, s{S_T0}, {WS_CNT}", f"s_lshr_b32 s{S_K0}, s{S_J}, 2", f"s_lshl_b32 s{S_K0}, s{S_K0}, 3", f"s_lshl_b32 s{S_K0}, 1, s{S_K0}"],f"s{S_K0}",R=R_WS))
    Lq,tq=g.poll_issue(30,[f"s_lshl_b32 s{S_T0}, s{S_C3}, 7", f"s_add_u32 s{S_T0}, s{S_T0}, {WS_CNT}"],R=R_WS)
    rd=[]
    for b in range(16,24):
        r=g.p3_rd_f(b-16,g.blk_areg(b),True); rd.append(r); p.add(r)
    for k in range(4):
        L,tok[("c",k)]=g.p3_dma_c(k); p.wait(lgkm=rd[2*k]+rd[2*k+1]); p.add(L)
    p.wait(lgkm=g.t_reads)
    for b,slot in ((26,18),(27,19)):
        L,tok[("f",b)]=g.p3_dma_f(b,slot); p.add(L)
    p.add(Lq)
    p.add(g.poll_check("a",30,tq,[f"s_lshl_b32 s{S_T1}, s{S_W}, 3", f"s_lshr_b32 s{S_T0}, s{S_T0}, s{S_T1}", f"s_and_b32 s{S_T0}, s{S_T0}, 0xff", f"s_cmp_eq_u32 s{S_T0}, 4"],R=R_WS,sleep=0))
    p.add(g.stamp(12))
    g.phase3(tok)
    p.add(g.stamp(13))
    g.final()
    p.add(g.stamp(14))
    if o.get("stamps"): p.wait(vm_all=True)
    p.add(g.stamp(15))
    g.dump_stamps()
    g.finish()
    return g

if __name__=="__main__":
    opts=eval(sys.argv[2]) if len(sys.argv)>2 else {}
    g=build_full(opts=opts); t=g.text(); open(sys.argv[1] if len(sys.argv)>1 else "full.s","w").write(t); print(g.stats)
```

```python
import re

TRANS = ("v_exp_f32","v_log_f32","v_rcp_f32","v_rsq_f32","v_sqrt_f32","v_sin_f32","v_cos_f32","v_rcp_iflag_f32")

def _regs(tok):
    tok = tok.strip()
    neg = tok.lstrip("-")
    if neg.startswith("abs(") or neg.startswith("|"):
        neg = neg.replace("abs(","").replace(")","").replace("|","")
    tok = neg
    m = re.fullmatch(r"([vas])(\d+)", tok)
    if m: return [(m.group(1), int(m.group(2)))]
    m = re.fullmatch(r"([vas])\[(\d+):(\d+)\]", tok)
    if m: return [(m.group(1), i) for i in range(int(m.group(2)), int(m.group(3))+1)]
    if tok == "vcc": return [("s","vcc_lo"),("s","vcc_hi")]
    if tok in ("vcc_lo","vcc_hi","m0"): return [("s",tok)]
    if tok == "exec": return [("s","exec_lo"),("s","exec_hi")]
    if tok in ("exec_lo","exec_hi"): return [("s",tok)]
    return []

def _split_ops(s):
    out=[]; depth=0; cur=""
    for ch in s:
        if ch in "[(": depth+=1
        if ch in "])": depth-=1
        if ch=="," and depth==0: out.append(cur.strip()); cur=""
        else: cur+=ch
    if cur.strip(): out.append(cur.strip())
    return out

class Inst:
    __slots__=("text","op","kind","rd","wr","tok","waits","meta","ws","srcC","data")
    def __init__(self, text, kind=None, **meta):
        self.text=text; self.meta=meta; self.tok=None; self.waits=None; self.srcC=[]; self.data=[]
        self.rd=[]; self.wr=[]
        t=text.split(";")[0].strip()
        if t.endswith(":") or t=="" :
            self.op="label"; self.kind="label"; self.ws=0; return
        parts=t.split(None,1); op=parts[0]; self.op=op
        rest=parts[1] if len(parts)>1 else ""
        ops=_split_ops(rest)
        mods=""
        if ops:
            last=ops[-1].split()
            ops[-1]=last[0]; mods=" ".join(last[1:])
        self.ws=1
        R=lambda i: _regs(ops[i]) if i<len(ops) else []
        if op=="s_nop":
            self.kind="nop"; self.ws=int(ops[0],0)+1
        elif op in("s_waitcnt",):
            self.kind="wait"
        elif op=="s_barrier": self.kind="barrier"
        elif op.startswith("s_cbranch") or op=="s_branch" or op=="s_endpgm" or op=="s_sleep" or op=="s_setprio":
            self.kind="ctrl"
        elif op.startswith("s_load") or op in("s_memtime","s_memrealtime"):
            self.kind="smem"; self.wr=R(0); self.rd=R(1) if op.startswith("s_load") else []
        elif op.startswith("s_cmp") or op.startswith("s_bitcmp"):
            self.kind="salu"
            for i in range(len(ops)): self.rd+=R(i)
        elif op.startswith("s_"):
            self.kind="salu"; self.wr=R(0)
            for i in range(1,len(ops)): self.rd+=R(i)
            if "saveexec" in op: self.wr+=_regs("exec"); self.rd+=_regs("exec")
            if op in("s_addk_i32","s_mulk_i32"): self.rd+=R(0)
        elif op.startswith("v_mfma"):
            self.kind="mfma"; self.wr=R(0); self.rd=R(1)+R(2); self.srcC=R(3)
        elif op.startswith("v_"):
            self.kind="valu"
            if op.startswith("v_cmp"):
                self.wr=R(0)
                for i in range(1,len(ops)): self.rd+=R(i)
                if op.startswith("v_cmpx"): self.wr+=_regs("exec")
            elif op.startswith("v_permlane"):
                self.wr=R(0)+R(1); self.rd=R(0)+R(1)
            elif "_co_" in op:
                self.wr=R(0)+R(1)
                for i in range(2,len(ops)): self.rd+=R(i)
            else:
                self.wr=R(0)
                for i in range(1,len(ops)): self.rd+=R(i)
                if op.startswith("v_fmac") or op.startswith("v_dot2c") or op.startswith("v_pk_fmac") or op=="v_writelane_b32": self.rd+=R(0)
                if op.startswith("v_cndmask") and len(ops)==3: self.rd+=_regs("vcc")
                if "dpp" in op or "row_" in mods or "quad_perm" in mods or "wave_" in mods:
                    self.meta["dpp"]=True
                    self.rd+=R(0)
        elif op.startswith("ds_"):
            self.kind="ds"
            if op.startswith("ds_read") or op.startswith("ds_bpermute") or op.startswith("ds_swizzle"):
                self.wr=R(0)
                for i in range(1,len(ops)): self.rd+=R(i)
            else:
                for i in range(len(ops)): self.rd+=R(i)
                self.data=R(1)
        elif op.startswith("buffer_") or op.startswith("global_"):
            self.kind="vmem"
            lds = ("lds" in mods.split()) or ("_lds_" in op)
            self.meta["lds"]=lds
            if op in("buffer_wbl2","buffer_inv"):
                pass
            elif "load" in op and not lds:
                self.wr=R(0)
                for i in range(1,len(ops)): self.rd+=R(i)
            elif "load" in op and lds:
                for i in range(len(ops)): self.rd+=R(i)
                self.rd+=[("s","m0")]
            elif "atomic" in op:
                for i in range(len(ops)): self.rd+=R(i)
                if "sc0" in mods.split():
                    self.wr=R(0)
            else:
                for i in range(len(ops)): self.rd+=R(i)
                self.data = R(0) if op.startswith("buffer_") else R(1)
        else:
            raise ValueError("unknown op "+text)

class Wait:
    def __init__(self, vm=None, lgkm=None, vm_all=False, lgkm_all=False):
        self.vm=vm; self.lgkm=lgkm; self.vm_all=vm_all; self.lgkm_all=lgkm_all

class Prog:
    def __init__(self):
        self.items=[]
    def I(self, text, **meta):
        out=None
        for line in text.strip().split("\n"):
            line=line.strip()
            if not line: continue
            out=Inst(line, **meta); self.items.append(out)
        return out
    def add(self, item):
        if isinstance(item,(list,tuple)):
            for x in item: self.add(x)
        elif isinstance(item,str): self.I(item)
        else: self.items.append(item)
        return item
    def wait(self, vm=None, lgkm=None, vm_all=False, lgkm_all=False):
        self.items.append(Wait(vm,lgkm,vm_all,lgkm_all))

def mk(text, **meta): return Inst(text, **meta)

def resolve_waits(items):
    out=[]; vmq=[]; lgq=[]; done=set()
    for it in items:
        if isinstance(it,Wait):
            parts=[]
            def need(x): return [t for t in (x if isinstance(x,(list,tuple)) else [x]) if t.kind!="nop"]
            if it.vm_all: n=0
            elif it.vm is not None:
                idx=[vmq.index(t) for t in need(it.vm) if t in vmq]
                for t in need(it.vm):
                    assert (t in vmq) or (id(t) in done), "wait on vm token not issued yet: "+t.text
                n = len(vmq)-1-max(idx) if idx else None
            else: n=None
            if n is not None:
                n=min(n,63); k=len(vmq)-n
                if k>0 or it.vm_all:
                    for t in vmq[:max(k,0)]: done.add(id(t))
                    vmq=vmq[max(k,0):]
                    parts.append(f"vmcnt({n})")
            if it.lgkm_all: m=0
            elif it.lgkm is not None:
                idx=[lgq.index(t) for t in need(it.lgkm) if t in lgq]
                for t in need(it.lgkm):
                    assert (t in lgq) or (id(t) in done), "wait on lgkm token not issued yet: "+t.text
                m = len(lgq)-1-max(idx) if idx else None
                if m is not None and any(x.kind=="smem" for x in lgq): m=0
            else: m=None
            if m is not None:
                m=min(m,15); k=len(lgq)-m
                if k>0 or it.lgkm_all:
                    for t in lgq[:max(k,0)]: done.add(id(t))
                    lgq=lgq[max(k,0):]
                    parts.append(f"lgkmcnt({m})")
            if parts:
                w=Inst("s_waitcnt "+" ".join(parts)); w.meta["auto"]=True; out.append(w)
            continue
        if it.kind=="wait":
            m=re.search(r"vmcnt\((\d+)\)",it.text)
            if m:
                n=int(m.group(1)); k=len(vmq)-n
                if k>0:
                    for t in vmq[:k]: done.add(id(t))
                    vmq=vmq[k:]
            m=re.search(r"lgkmcnt\((\d+)\)",it.text)
            if m:
                n=int(m.group(1)); k=len(lgq)-n
                if k>0:
                    for t in lgq[:k]: done.add(id(t))
                    lgq=lgq[k:]
        if it.kind=="vmem": vmq.append(it)
        if it.kind in("ds","smem"): lgq.append(it)
        out.append(it)
    return out

def check_pending(items):
    vmq=[]; lgq=[]; errs=[]
    def pend():
        d={}
        for t in vmq+lgq:
            for r in t.wr: d[r]=t
        return d
    for it in items:
        if it.kind=="wait":
            m=re.search(r"vmcnt\((\d+)\)",it.text)
            if m:
                n=int(m.group(1)); vmq=vmq[max(len(vmq)-n,0):] if n else []
            m=re.search(r"lgkmcnt\((\d+)\)",it.text)
            if m:
                n=int(m.group(1))
                if any(x.kind=="smem" for x in lgq) and n>0: pass
                else: lgq=lgq[max(len(lgq)-n,0):] if n else []
            continue
        if it.kind in("label","nop","barrier","ctrl"): continue
        p=pend()
        for r in list(it.rd)+list(it.srcC)+list(it.wr):
            if r in p and not it.meta.get("allow_pending") and not (it.kind=="vmem" and p[r].kind=="vmem" and r in it.wr and r in (("a",250),("v",24))):
                errs.append(f"PENDING {r} from [{p[r].text}] touched by [{it.text}]")
        if it.kind=="vmem": vmq.append(it)
        if it.kind in("ds","smem"): lgq.append(it)
    return errs

def mfma_passes(op):
    if "32x32x16" in op: return 8
    if "16x16x32" in op: return 4
    raise ValueError(op)

def pad_hazards(items, verbose=False):
    out=[]
    hist=[]
    pos=0
    def isv(r): return r[0] in "va"
    npad=0
    for it in items:
        if it.kind=="label":
            out.append(it); continue
        need=0
        rds=set(it.rd)|set(it.srcC); wrs=set(it.wr)
        for (p,ppos) in reversed(hist):
            dist=pos-ppos-p.ws
            if dist>=20: break
            req=0
            pw=set(p.wr)
            if p.kind=="valu":
                vw={r for r in pw if isv(r)}; sw={r for r in pw if r[0]=="s"}
                if it.kind=="mfma" and vw & rds: req=max(req,2)
                if it.kind=="valu":
                    if p.op in TRANS and (vw & rds): req=max(req,1)
                    if it.meta.get("dpp") and (vw & rds): req=max(req,2)
                    if it.op.startswith("v_permlane") and (vw & rds): req=max(req,2)
                    if it.op.startswith("v_readfirstlane") or it.op.startswith("v_readlane"):
                        if vw & rds: req=max(req,1)
                        if sw & rds: req=max(req,4)
                    if sw & rds: req=max(req,2)
                    if p.meta.get("opsel") and (vw & (rds|wrs)): req=max(req,1)
                if it.kind=="vmem" and (sw & rds): req=max(req,5)
                if it.kind in("salu",) and (sw & rds): req=max(req,1)
                if it.kind=="mfma" and any(r[1] in("exec_lo","exec_hi") for r in sw): req=max(req,4)
            if p.kind=="mfma":
                np_=mfma_passes(p.op); big={8:12,4:8}[np_]; ov={8:10,4:6}[np_]; war={8:7,4:3}[np_]
                if it.kind=="mfma":
                    if pw & set(it.rd): req=max(req,big)
                    if pw & set(it.srcC):
                        if not (it.srcC==p.wr and mfma_passes(it.op)==np_): req=max(req,ov)
                    elif pw & wrs: req=max(req,big)
                elif it.kind in("valu","vmem","ds"):
                    if pw & (rds|wrs): req=max(req,big)
                    if it.kind=="valu" and (set(p.srcC) & wrs): req=max(req,war)
            if p.kind in("vmem",) and p.data and len(p.data)>=3:
                if set(p.data) & wrs:
                    req=max(req, 2 if it.kind=="valu" else 1)
            if p.kind=="ds" and p.data and len(p.data)>=3 and (set(p.data)&wrs) and it.kind=="valu":
                req=max(req,2)
            if p.kind=="salu" and ("s","m0") in pw and it.kind=="vmem" and it.meta.get("lds"): req=max(req,1)
            if req>dist: need=max(need,req-dist)
        while need>0:
            n=min(need,16); nop=Inst(f"s_nop {n-1}"); out.append(nop); hist.append((nop,pos)); pos+=nop.ws; need-=n; npad+=1
        out.append(it); hist.append((it,pos)); pos+=it.ws
        if len(hist)>64: hist=hist[-40:]
    return out,npad

def check_srd(items):
    last={}; errs=[]
    for it in items:
        if it.kind in("label",): continue
        if it.kind=="vmem" and it.op.startswith("buffer_") and it.op not in("buffer_wbl2","buffer_inv"):
            m=re.search(r"s\[(\d+):(\d+)\]", it.text)
            a=int(m.group(1))
            for k in range(4):
                w=last.get(a+k)
                if w is None: errs.append(f"SRD word s{a+k} never written: {it.text}"); continue
                ops=_split_ops(w.text.split(None,1)[1])
                if k<2:
                    ok = w.op=="s_getpc_b64" or (w.op in("s_add_u32","s_addc_u32") and re.fullmatch(r"s(36|37)",ops[1]) is not None) or (w.op in("s_mov_b32","s_cselect_b32") and all(re.fullmatch(r"s(\d+)",o) and 4<=int(o[1:])<=37 and (int(o[1:])%2)==k for o in ops[1:]))
                elif k==2: ok = w.op=="s_mov_b32" and not re.fullmatch(r"s\d+",ops[1])
                else: ok = w.op=="s_mov_b32" and ops[1]=="0x20000"
                if not ok: errs.append(f"SRD word s{a+k} bad writer [{w.text}] for [{it.text}]")
        for r in it.wr:
            if r[0]=="s" and isinstance(r[1],int):
                last[r[1]]=it
                if it.kind!="smem" and 4<=r[1]<=37: errs.append(f"pointer register s{r[1]} overwritten by [{it.text}]")
    return errs

def check_slow_labels(items):
    errs=[]
    for i,it in enumerate(items):
        if it.kind=="ctrl" and "L_slow_" in it.text:
            name=it.text.split("L_slow_")[1].strip()
            nx=items[i+1]
            if not (nx.kind=="label" and nx.text.strip()==f"L_back_{name}:"): errs.append(f"slow-path return label does not follow [{it.text}] but [{nx.text}]")
    return errs

def finalize(prog):
    items=resolve_waits(prog.items)
    items,npad=pad_hazards(items)
    errs=check_pending(items)+check_srd(items)+check_slow_labels(items)
    return items,npad,errs

def emit(items):
    L=[]
    for it in items:
        L.append(it.text if it.kind=="label" else "    "+it.text)
    return "\n".join(L)+"\n"

def interleave(backbone, fillers, start=0, end=None, per=None):
    n=len(backbone); end=n if end is None else end
    slots=[[] for _ in range(n)]
    m=len(fillers); span=end-start
    for i,f in enumerate(fillers):
        k=start+(i*span)//max(m,1)
        slots[min(k,n-1)].append(f)
    out=[]
    for b,s in zip(backbone,slots):
        out.append(b); out+=s
    return out
```

```python
import sys
from asmb import *

KNAME="gated_mix__ssm_conv_s5__glu_gated_geglu__prompt_kernel"

WS_A=0; WS_E=0xB00000; WS_G=0xB10000; WS_CNT=0xB18000; WS_DBG=0xB20000; WS_SIZE=0x4000000
OOB=0x7ff00000
WSLOT=28928; WUP=14464
L_W=0; L_B=86784; L_X=119552; L_EX=152320; L_GL=154368
P_X,P_LRE,P_LIM,P_BRE,P_BIM,P_CRE,P_CIM,P_LDT=4,6,8,10,12,14,16,18
P_DSK,P_BX,P_WG,P_WU,P_WD,P_GW,P_OUT,P_DBG=20,22,24,26,28,30,32,34
P_WS=36
S_C,S_J,S_W,S_C3,S_RH,S_CB=38,39,40,41,42,43
R_X,R_B,R_W,R_WS,R_DBG,R_T,R_T2=44,48,52,56,60,64,68
S_XO,S_BO,S_WO=72,73,74
S_XROW,S_BROW,S_WROW=75,76,77
S_XM,S_BM,S_WM=78,79,80
S_T0,S_T1,S_T2,S_T3=81,82,83,84
S_GT=85
S_M0=86
S_CNT=88
S_K0=89
S_AO=91
V_AO=22
S_RG,S_FO,S_CO=92,93,94
S_TB,S_PO=95,3
S_A0=96
S_R0,S_D0=98,99
REGION=40960
V_FD=232
V_CD=234
V_FR=238
V_CR=[240,241,242,243]
V_OO=23
V_ST=247
A_JUNK=250
V_TCH=246
S_TW=95
S_CO1=95
V_JUNK=24
S_G0=64
A_P3=64
A_KS=48
V_TID,V_L=0,1
V_XG=2
V_BG=6
V_WG=8
V_WA,V_WB=15,16
V_BA=17
V_XA=21
V_T=25
V_ACC=32
V_SRE,V_SIM=144,160
V_WF=176
V_BF=232
V_U=248
A_X=0
A_BF=128
A_K=160

def srd(p, reg, ptr, size):
    p.I(f"s_mov_b32 s{reg}, s{ptr}\ns_mov_b32 s{reg+1}, s{ptr+1}\ns_mov_b32 s{reg+2}, {size}\ns_mov_b32 s{reg+3}, 0x20000")

def sr(r): return f"s[{r}:{r+3}]"
def vr(r,n): return f"v[{r}:{r+n-1}]" if n>1 else f"v{r}"
def ar(r,n): return f"a[{r}:{r+n-1}]" if n>1 else f"a{r}"

class Gen:
    def __init__(self, stop_after=None, opts=None):
        self.p=Prog(); self.stop=stop_after; self.o=opts or {}; self.slow=[]
    def prologue_a(self):
        p=self.p
        p.I("s_cmp_ge_u32 s2, 256\ns_cbranch_scc1 L_exit")
        p.I("s_load_dwordx16 s[4:19], s[0:1], 0"); p.I("s_load_dwordx16 s[20:35], s[0:1], 64"); p.I("s_load_dwordx2 s[36:37], s[0:1], 128")
        p.I(f"v_and_b32 v{V_L}, 63, v0\nv_lshrrev_b32 v{V_T}, 6, v0")
        p.I(f"s_lshr_b32 s{S_C}, s2, 4\ns_and_b32 s{S_J}, s2, 15")
        p.I(f"v_readfirstlane_b32 s{S_W}, v{V_T}")
        l=f"v{V_L}"; T=V_T
        p.I(f"v_lshrrev_b32 v{T}, 5, {l}\nv_lshlrev_b32 v{T}, 4, v{T}\nv_bfe_u32 v{T+1}, {l}, 3, 1\nv_lshl_add_u32 v{T}, v{T+1}, 3, v{T}\nv_bfe_u32 v{T+1}, {l}, 4, 1\nv_add_u32 v{T}, v{T}, v{T+1}\nv_lshlrev_b32 v{T}, 10, v{T}")
        p.I(f"v_and_b32 v{T+1}, 7, {l}\nv_lshrrev_b32 v{T+2}, 4, {l}\nv_xor_b32 v{T+3}, v{T+1}, v{T+2}\nv_xor_b32 v{T+4}, 4, v{T+3}")
        p.I(f"v_lshlrev_b32 v{T+3}, 4, v{T+3}\nv_lshlrev_b32 v{T+4}, 4, v{T+4}")
        for q in range(4):
            p.I(f"v_add_u32 v{V_XG+q}, v{T}, v{T+3+(q&1)}")
            if q: p.I(f"v_add_u32 v{V_XG+q}, {1024*q}, v{V_XG+q}")
        p.I(f"v_lshrrev_b32 v{T}, 3, {l}\nv_lshlrev_b32 v{T}, 10, v{T}")
        p.I(f"v_add_u32 v{V_BG}, v{T}, v{T+3}\nv_add_u32 v{V_BG+1}, v{T}, v{T+4}\nv_add_u32 v{V_BG+1}, {7*1024}, v{V_BG+1}")
        p.I(f"s_lshl_b32 s{S_T0}, s{S_W}, 12\ns_add_u32 s{S_XM}, s{S_T0}, {L_X}")
        p.I(f"s_lshl_b32 s{S_T1}, s{S_C}, 2\ns_add_u32 s{S_T1}, s{S_T1}, s{S_W}\ns_lshl_b32 s{S_XROW}, s{S_T1}, 15")
        p.I(f"s_and_b32 s{S_T1}, s{S_W}, 1\ns_lshr_b32 s{S_T2}, s{S_W}, 1")
        p.I(f"s_lshl_b32 s{S_T3}, s{S_J}, 1\ns_add_u32 s{S_T3}, s{S_T3}, s{S_T1}\ns_lshl_b32 s{S_BROW}, s{S_T3}, 14")
        p.I(f"s_lshl_b32 s{S_BM}, s{S_T2}, 12\ns_lshl_b32 s{S_T3}, s{S_T1}, 11\ns_add_u32 s{S_BM}, s{S_BM}, s{S_T3}\ns_add_u32 s{S_BM}, s{S_BM}, {L_B}")
        p.I(f"s_mul_i32 s{S_WROW}, s{S_T1}, {32*3584}\ns_mul_i32 s{S_T3}, s{S_J}, 224\ns_add_u32 s{S_WROW}, s{S_WROW}, s{S_T3}")
        p.I(f"s_mul_i32 s{S_WM}, s{S_T2}, {WUP}\ns_mul_i32 s{S_T3}, s{S_T1}, 7168\ns_add_u32 s{S_WM}, s{S_WM}, s{S_T3}")
        p.wait(lgkm_all=True)
        srd(p,R_X,P_X,2048*1024)
        p.I(f"s_cmp_eq_u32 s{S_T2}, 0")
        p.I(f"s_cselect_b32 s{R_B}, s{P_BRE}, s{P_BIM}\ns_cselect_b32 s{R_B+1}, s{P_BRE+1}, s{P_BIM+1}\ns_mov_b32 s{R_B+2}, {512*1024}\ns_mov_b32 s{R_B+3}, 0x20000")
        p.I(f"s_cselect_b32 s{R_W}, s{P_WG}, s{P_WU}\ns_cselect_b32 s{R_W+1}, s{P_WG+1}, s{P_WU+1}\ns_mov_b32 s{R_W+2}, {512*3584}\ns_mov_b32 s{R_W+3}, 0x20000")
    def prologue_b(self):
        p=self.p; l=f"v{V_L}"; T=V_T
        p.I(f"s_mov_b32 s{S_T0}, 4682\ns_mov_b32 s{S_T1}, 3584")
        for i in range(7):
            p.I(f"v_add_u32 v{T}, {64*i}, {l}\nv_mul_lo_u32 v{T+1}, v{T}, s{S_T0}\nv_lshrrev_b32 v{T+1}, 16, v{T+1}")
            p.I(f"v_mul_u32_u24 v{T+2}, 14, v{T+1}\nv_sub_u32 v{T+2}, v{T}, v{T+2}\nv_lshlrev_b32 v{T+2}, 4, v{T+2}")
            p.I(f"v_mul_lo_u32 v{T+1}, v{T+1}, s{S_T1}\nv_add_u32 v{V_WG+i}, v{T+1}, v{T+2}")
            if i&3: p.I(f"v_subrev_u32 v{V_WG+i}, {1024*(i&3)}, v{V_WG+i}")
    def prologue_c(self):
        p=self.p; l=f"v{V_L}"; T=V_T
        p.I(f"v_lshrrev_b32 v{T}, 5, {l}\nv_lshlrev_b32 v{T}, 3, v{T}\nv_bfe_u32 v{T+1}, {l}, 2, 2\nv_add_u32 v{T}, v{T}, v{T+1}\nv_mul_u32_u24 v{T}, 224, v{T}")
        p.I(f"v_bfe_u32 v{T+1}, {l}, 1, 1\nv_mul_u32_u24 v{T+1}, {WUP}, v{T+1}\nv_add_u32 v{T}, v{T}, v{T+1}")
        p.I(f"v_bfe_u32 v{T+1}, {l}, 4, 1\nv_lshlrev_b32 v{T+1}, 4, v{T+1}\nv_add_u32 v{T}, v{T}, v{T+1}")
        p.I(f"v_and_b32 v{T+1}, 1, {l}\nv_lshlrev_b32 v{T+1}, 3, v{T+1}\nv_add_u32 v{V_WA}, v{T}, v{T+1}\nv_add_u32 v{V_WB}, {2*WSLOT}, v{V_WA}")
        p.I(f"v_and_b32 v{T}, 31, {l}\nv_lshlrev_b32 v{T+1}, 7, v{T}\nv_bfe_u32 v{T+2}, {l}, 1, 3\nv_lshrrev_b32 v{T+3}, 5, {l}\nv_xor_b32 v{T+2}, v{T+2}, v{T+3}")
        p.I(f"s_lshl_b32 s{S_T0}, s{S_W}, 12\ns_add_u32 s{S_T0}, s{S_T0}, {L_X}")
        for s in range(4):
            p.I(f"v_xor_b32 v{T+3}, {2*s}, v{T+2}\nv_lshlrev_b32 v{T+3}, 4, v{T+3}\nv_add_u32 v{T+3}, v{T+1}, v{T+3}\nv_add_u32 v{V_BA+s}, {L_B}, v{T+3}\nv_add_u32 v{V_XA+s}, s{S_T0}, v{T+3}")
        srd(p,R_WS,P_WS,WS_SIZE); srd(p,R_DBG,P_DBG,256)
        p.I(f"s_lshr_b32 s{S_T0}, s2, 6\ns_lshl_b32 s{S_T0}, s{S_T0}, 2\ns_bfe_u32 s{S_T1}, s2, 0x20001\ns_add_u32 s{S_C3}, s{S_T0}, s{S_T1}")
        p.I(f"s_and_b32 s{S_RH}, s2, 1\ns_bfe_u32 s{S_CB}, s2, 0x30003")

    def dma_x(self, ch):
        slot=ch&1
        L=[mk(f"s_add_u32 m0, s{S_XM}, {slot*16384}"), mk(f"s_add_u32 s{S_XO}, s{S_XROW}, {ch*128}")]
        toks=[mk(f"buffer_load_dwordx4 v{V_XG+q}, {sr(R_X)}, s{S_XO} offen offset:{1024*q} lds") for q in range(4)]
        return L+toks, toks
    def dma_b(self, ch):
        slot=(ch>>1)&1
        L=[mk(f"s_add_u32 m0, s{S_BM}, {slot*16384+(ch&1)*8192}"), mk(f"s_add_u32 s{S_BO}, s{S_BROW}, {ch*128}")]
        toks=[mk(f"buffer_load_dwordx4 v{V_BG+i}, {sr(R_B)}, s{S_BO} offen offset:{1024*i} lds") for i in range(2)]
        return L+toks, toks
    def dma_w(self, ch):
        slot=ch%3
        L=[mk(f"s_add_u32 m0, s{S_WM}, {slot*WSLOT}"), mk(f"s_add_u32 s{S_WO}, s{S_WROW}, {ch*64*3584}")]
        toks=[]
        for i in range(7):
            if i==4: L.append(mk(f"s_add_u32 m0, s{S_WM}, {slot*WSLOT+4096}"))
            t=mk(f"buffer_load_dwordx4 v{V_WG+i}, {sr(R_W)}, s{S_WO} offen offset:{1024*(i&3)} lds"); toks.append(t); L.append(t)
        return L,toks
    def rd_x(self, ch):
        return [mk(f"ds_read_b128 {ar(A_X+16*ch+4*s,4)}, v{V_XA+s} offset:{(ch&1)*16384}") for s in range(4)]
    def rd_b(self, ch, d, bset):
        base=((ch>>1)&1)*16384+(ch&1)*8192
        L=[]
        for e in range(2):
            for m in range(2):
                L.append(mk(f"ds_read_b128 {ar(A_BF+16*bset+8*e+4*m,4)}, v{V_BA+2*d+e} offset:{base+4096*m}"))
        return L
    def rd_w(self, ch, s, wset):
        slot=ch%3; va=V_WB if slot==2 else V_WA; base=0 if slot==2 else slot*WSLOT
        L=[]
        for i in range(7):
            for q in range(2):
                d=V_WF+28*wset+4*i+2*q
                L.append(mk(f"ds_read_b64_tr_b16 {vr(d,2)}, v{va} offset:{base+(16*s+4*q)*224+32*i}"))
        return L
    def mf_s(self, ch, d, bset):
        L=[]
        for e in range(2):
            s=2*d+e
            x=ar(A_X+16*ch+4*s,4)
            first=(ch==0 and s==0)
            for m,a in enumerate((V_SRE,V_SIM)):
                L.append(mk(f"v_mfma_f32_32x32x16_bf16 {vr(a,16)}, {x}, {ar(A_BF+16*bset+8*e+4*m,4)}, {'0' if first else vr(a,16)}"))
        return L
    def mf_f(self, ch, s, wset):
        x=ar(A_X+16*ch+4*s,4)
        first=(ch==0 and s==0)
        return [mk(f"v_mfma_f32_32x32x16_bf16 {vr(V_ACC+16*i,16)}, {vr(V_WF+28*wset+4*i,4)}, {x}, {'0' if first else vr(V_ACC+16*i,16)}") for i in range(7)]

    def phase1(self, extra):
        p=self.p
        X={};B={};W={}
        def issue(lst):
            for kind,ch in lst:
                L,t={"x":self.dma_x,"b":self.dma_b,"w":self.dma_w}[kind](ch); p.add(L); {"x":X,"b":B,"w":W}[kind][ch]=t
        fs=lambda i: p.add(self.stamp(i)) if self.o.get("fine") else None
        fs(32)
        if self.o.get("touch_w",0): p.add(self.touch_w())
        issue([("x",0),("b",0)]); fs(33)
        self.small_loads()
        issue([("x",1),("b",1)]); fs(34)
        self.prologue_b(); fs(35)
        issue([("w",0)])
        if self.o.get("touch_x",0): p.add(self.touch_x())
        if not self.o.get("nocodepf"): self.code_prefetch()
        fs(36)
        self.prologue_c()
        self.late(); self.late2()
        if hasattr(self,"late3"): self.late3()
        if not self.o.get("cyc"): p.add(self.stamp(1))
        steps=[]
        for g in range(4):
            for ch in (2*g,2*g+1):
                for d in range(2): steps.append(("S",ch,d))
            for s in range(4): steps.append(("F",g,s))
        for ch in range(4,8):
            for s in range(4): steps.append(("F",ch,s))
        setof={}; cnt={"S":0,"F":0}
        for st in steps:
            setof[st]=cnt[st[0]]&1; cnt[st[0]]+=1
        reads={}
        for st in steps:
            k,ch,s=st
            reads[st]=self.rd_b(ch,s,setof[st]) if k=="S" else self.rd_w(ch,s,setof[st])
        xr={ch:self.rd_x(ch) for ch in range(8)}
        rfill={st:[] for st in steps}
        fill={st:[] for st in steps}
        head={st:[] for st in steps}
        for i,st in enumerate(steps[:-1]):
            nx=steps[i+1]
            if st[0]=="S" and nx[0]=="F":
                rfill[steps[i-1]]+=reads[nx][:6]; rfill[st]+=reads[nx][6:]
            else: rfill[st]=reads[nx]+rfill[st]
        p.wait(vm=X[0]+B[0]); p.I("s_barrier")
        p.add(xr[0][0:2]); p.add(reads[steps[0]][:2]); p.add(xr[0][2:]); p.add(reads[steps[0]][2:])
        L,B[2]=self.dma_b(2); fill[("S",0,0)]+=L
        L,B[3]=self.dma_b(3); fill[("S",1,0)]+=L
        L,W[1]=self.dma_w(1); fill[("S",1,1)]+=L[:6]; w1b=L[6:]
        head[("S",0,1)]+=[Wait(vm=X[1]+B[1]), mk("s_barrier")]
        rfill[("S",0,1)]=xr[1][0:2]+rfill[("S",0,1)]+xr[1][2:]
        L,X[2]=self.dma_x(2); fill[("S",0,1)]+=[Wait(lgkm=xr[0])]+L
        L,X[3]=self.dma_x(3); fill[("S",1,1)]+=[Wait(lgkm=xr[1])]+L
        head[("S",1,0)]+=[Wait(vm=W[0]), mk("s_barrier")]
        fill[("F",0,0)]+=w1b
        L,W[2]=self.dma_w(2); fill[("F",0,1)]+=L[:6]; fill[("F",0,2)]+=L[6:]
        for g in range(1,4):
            a,b=2*g,2*g+1
            rfill[("F",g-1,1)]+=[Wait(vm=X[a]+X[b])]+xr[a]+xr[b]
            last=("F",g-1,3)
            head[last]+=[Wait(vm=B[a]+B[b]+W[g], lgkm=reads[last]+xr[a]+xr[b]), mk("s_barrier")]
            if g<3:
                L,X[a+2]=self.dma_x(a+2); fill[last]+=L
                L,X[b+2]=self.dma_x(b+2); fill[("S",a,0)]+=L
                L,B[a+2]=self.dma_b(a+2); fill[("S",a,1)]+=L
                L,B[b+2]=self.dma_b(b+2); fill[("S",b,0)]+=L
            L,W[g+2]=self.dma_w(g+2); fill[("F",g,0)]+=L
        for ch in range(4,8):
            last=("F",ch-1,3)
            head[last]+=[Wait(vm=W[ch], lgkm=reads[last]), mk("s_barrier")]
            if ch+2<8:
                L,W[ch+2]=self.dma_w(ch+2); fill[last]+=L[:6]; fill[("F",ch,0)]+=L[6:]
        for k,v in getattr(self,"extra_head",{}).items(): head[k]=list(v)+head[k]
        if getattr(self,"end_barrier",False):
            last=("F",7,3); head[last]+=[Wait(lgkm=reads[last]), mk("s_barrier")]
        self.steps=steps
        for k,v in extra.items():
            assert k in fill, k
            fill[k]+=v
        for st in steps:
            k,ch,s=st
            mf=self.mf_s(ch,s,setof[st]) if k=="S" else self.mf_f(ch,s,setof[st])
            p.add(head[st])
            r=reads[st]; n=len(mf)
            slots=[[] for _ in range(n)]
            rf=rfill[st]; per=max(3 if k=="F" else 2, -(-len(rf)//n))
            for t,it in enumerate(rf): slots[min(t//per,n-1)].append(it)
            f=fill[st]
            for t,it in enumerate(f): slots[min((t*n)//max(len(f),1),n-1)].append(it)
            for m,ins in enumerate(mf):
                if k=="S":
                    if m==0: p.wait(lgkm=r[0:2]+[xr[ch][2*s]])
                    if m==2: p.wait(lgkm=r[2:4]+[xr[ch][2*s+1]])
                else:
                    if m==0: p.wait(lgkm=r[0:6]+[xr[ch][s]])
                    if m==3: p.wait(lgkm=r[6:14])
                p.add(ins)
                p.add(slots[m])

    LOG2E=1.4426950408889634
    def fconst(self, sreg, val):
        import struct
        return f"s_mov_b32 s{sreg}, 0x{struct.unpack('<I',struct.pack('<f',val))[0]:08x}"

    def small_loads(self):
        p=self.p; l=f"v{V_L}"
        srd(p,R_T,P_GW,1024)
        p.I(f"v_lshlrev_b32 v{V_AO}, 4, {l}")
        p.I(f"s_lshl_b32 s{S_T0}, s{S_C}, 7\ns_lshl_b32 s{S_T1}, s{S_J}, 3\ns_add_u32 s{S_T0}, s{S_T0}, s{S_T1}\ns_lshl_b32 s{S_T1}, s{S_W}, 1\ns_add_u32 s{S_GT}, s{S_T0}, s{S_T1}")
        p.I(f"s_lshl_b32 s{S_T0}, s{S_GT}, 10")
        X0,X1,GW=232,236,240
        self.gl=[p.I(f"buffer_load_dwordx4 {vr(X0,4)}, v{V_AO}, {sr(R_X)}, s{S_T0} offen"),
                 p.I(f"buffer_load_dwordx4 {vr(X1,4)}, v{V_AO}, {sr(R_X)}, s{S_T0} offen offset:1024"),
                 p.I(f"buffer_load_dwordx4 {vr(GW,4)}, v{V_AO}, {sr(R_T)}, 0 offen")]
        p.I(f"v_and_b32 v{V_T}, 31, {l}\ns_lshl_b32 s{S_T1}, s{S_J}, 6\nv_lshlrev_b32 v{V_T}, 1, v{V_T}\nv_add_u32 v{V_T}, s{S_T1}, v{V_T}")
        self.kl=[]
        for i,ptr in enumerate((P_LRE,P_LIM,P_LDT)):
            srd(p,R_T2,ptr,1024)
            self.kl.append(p.I(f"buffer_load_ushort v{244+i}, v{V_T}, {sr(R_T2)}, 0 offen"))

    def gate_items(self):
        l=f"v{V_L}"; L=[]; A=lambda x: L.append(mk(x))
        X0,X1,GW=232,236,240
        A0,A1=248,249; u=250
        L.append(Wait(vm=self.gl))
        for i in range(4):
            A(f"v_lshlrev_b32 v{u+2}, 16, v{GW+i}"); A(f"v_and_b32 v{u+3}, 0xffff0000, v{GW+i}")
            for X,Ac in ((X0,A0),(X1,A1)):
                A(f"v_lshlrev_b32 v{u}, 16, v{X+i}"); A(f"v_and_b32 v{u+1}, 0xffff0000, v{X+i}"); A(f"v_mul_f32 v{u}, v{u}, v{u+2}"); A(f"v_mul_f32 v{u+1}, v{u+1}, v{u+3}")
                A(f"v_cvt_pk_bf16_f32 v{X+i}, v{u}, v{u+1}"); A(f"v_lshlrev_b32 v{u}, 16, v{X+i}"); A(f"v_and_b32 v{u+1}, 0xffff0000, v{X+i}")
                if i==0: A(f"v_add_f32 v{Ac}, v{u}, v{u+1}")
                else: A(f"v_add_f32 v{Ac}, v{Ac}, v{u}"); A(f"v_add_f32 v{Ac}, v{Ac}, v{u+1}")
        for sh in (8,4,2,1):
            for Ac in (A0,A1): A(f"v_add_f32_dpp v{Ac}, v{Ac}, v{Ac} row_ror:{sh} row_mask:0xf bank_mask:0xf")
        for Ac,sb in ((A0,S_G0),(A1,S_G0+4)):
            for q in range(4): A(f"v_readlane_b32 s{sb+q}, v{Ac}, {16*q}")
        for Ac,sb in ((A0,S_G0),(A1,S_G0+4)):
            A(f"v_mov_b32 v{Ac}, s{sb}"); A(f"v_add_f32 v{Ac}, s{sb+1}, v{Ac}"); A(f"v_add_f32 v{Ac}, s{sb+2}, v{Ac}"); A(f"v_add_f32 v{Ac}, s{sb+3}, v{Ac}")
        A(f"v_cmp_eq_u32 vcc, 1, {l}"); A(f"v_cndmask_b32 v{A0}, v{A0}, v{A1}, vcc")
        A(f"v_cvt_pk_bf16_f32 v{A0}, v{A0}, v{A0}"); A(f"v_lshlrev_b32 v{A0}, 16, v{A0}")
        A(self.fconst(S_G0,-self.LOG2E))
        A(f"v_mul_f32 v{A0}, s{S_G0}, v{A0}"); A(f"v_exp_f32 v{A0}, v{A0}"); A(f"v_add_f32 v{A0}, 1.0, v{A0}"); A(f"v_rcp_f32 v{A0}, v{A0}")
        A(f"v_cvt_pk_bf16_f32 v{A0}, v{A0}, v{A0}"); A(f"v_lshlrev_b32 v{A0}, 16, v{A0}")
        A(f"v_lshlrev_b32 v{u}, 3, {l}"); A(f"s_lshl_b32 s{S_G0}, s{S_C}, 7"); A(f"s_lshr_b32 s{S_G0+1}, s{S_J}, 1"); A(f"s_lshl_b32 s{S_G0+1}, s{S_G0+1}, 4"); A(f"s_add_u32 s{S_G0}, s{S_G0}, s{S_G0+1}")
        A(f"s_lshl_b32 s{S_G0+1}, s{S_W}, 2"); A(f"s_add_u32 s{S_G0}, s{S_G0}, s{S_G0+1}"); A(f"s_and_b32 s{S_G0+1}, s{S_J}, 1"); A(f"s_add_u32 s{S_G0}, s{S_G0}, s{S_G0+1}")
        A(f"s_lshl_b32 s{S_G0}, s{S_G0}, 2"); A(f"s_add_u32 s{S_G0}, s{S_G0}, {WS_G}"); A(f"v_add_u32 v{u}, s{S_G0}, v{u}")
        A(f"v_mov_b32 v{u+1}, {OOB}"); A(f"v_cmp_gt_u32 vcc, 2, {l}"); A(f"v_cndmask_b32 v{u}, v{u+1}, v{u}, vcc")
        A(f"buffer_store_dword v{A0}, v{u}, {sr(R_WS)}, 0 offen sc1"); self.g_store=L[-1]
        A(f"s_lshl_b32 s{S_G0}, s{S_C}, 7"); A(f"s_add_u32 s{S_G0}, s{S_G0}, {WS_CNT}"); A(f"s_or_b32 s{S_G0+1}, s{S_J}, s{S_W}"); A(f"s_cmp_eq_u32 s{S_G0+1}, 0"); A(f"s_cselect_b32 s{S_G0}, s{S_G0}, {OOB}")
        A(f"v_mov_b32 v{u}, {OOB}"); A(f"v_mov_b32 v{u+1}, s{S_G0}"); A(f"v_cmp_eq_u32 vcc, 0, {l}"); A(f"v_cndmask_b32 v{u}, v{u}, v{u+1}, vcc"); A(f"v_mov_b32 v{u+1}, 0")
        if self.o.get("clr_atomic",0): A(f"buffer_atomic_and v{u+1}, v{u}, {sr(R_WS)}, 0 offen sc1")
        else: A(f"buffer_store_dword v{u+1}, v{u}, {sr(R_WS)}, 0 offen sc1")
        self.c_store=L[-1]
        return L

    def const_items(self):
        l=f"v{V_L}"; L=[]; A=lambda x: L.append(mk(x))
        LR,LI,DT=244,245,246
        AE,AN,SG,M,AG=232,233,234,235,236
        R=238
        C,S=238,239
        L.append(Wait(vm=self.kl))
        A(f"v_lshlrev_b32 v{LR}, 16, v{LR}"); A(f"v_lshlrev_b32 v{LI}, 16, v{LI}"); A(f"v_lshlrev_b32 v{DT}, 16, v{DT}")
        A(self.fconst(S_G0,self.LOG2E)); A(self.fconst(S_G0+1,0.15915494309189535)); A(self.fconst(S_G0+2,16.0)); A(self.fconst(S_G0+3,128.0))
        A(f"v_mul_f32 v{DT}, s{S_G0}, v{DT}"); A(f"v_exp_f32 v{DT}, v{DT}"); A(f"v_lshrrev_b32 v{SG}, 5, {l}"); A(f"v_cvt_pk_bf16_f32 v{DT}, v{DT}, v{DT}"); A(f"v_lshlrev_b32 v{DT}, 16, v{DT}")
        A(f"v_mul_f32 v{AE}, v{DT}, v{LR}"); A(f"v_mul_f32 v{AN}, v{DT}, v{LI}"); A(f"v_mul_f32 v{AE}, s{S_G0}, v{AE}"); A(f"v_mul_f32 v{AN}, s{S_G0+1}, v{AN}")
        A(f"s_lshl_b32 s{S_G0+4}, s{S_W}, 1"); A(f"v_add_u32 v{SG}, s{S_G0+4}, v{SG}"); A(f"v_lshlrev_b32 v{SG}, 4, v{SG}"); A(f"v_cvt_f32_u32 v{SG}, v{SG}")
        def cexp(k, mul, keep=None):
            if mul is None: A(f"v_mov_b32 v{M}, v{AE}"); A(f"v_mov_b32 v{AG}, v{AN}")
            else: A(f"v_mul_f32 v{M}, {mul}, v{AE}"); A(f"v_mul_f32 v{AG}, {mul}, v{AN}")
            A(f"v_exp_f32 v{M}, v{M}"); A(f"v_fract_f32 v{AG}, v{AG}"); A(f"v_cos_f32 v{C}, v{AG}"); A(f"v_sin_f32 v{S}, v{AG}"); A("s_nop 0")
            A(f"v_mul_f32 v{C}, v{M}, v{C}"); A(f"v_mul_f32 v{S}, v{M}, v{S}")
            A(f"v_accvgpr_write_b32 a{A_K+k}, v{C}"); A(f"v_accvgpr_write_b32 a{A_K+k+1}, v{S}")
        A(self.fconst(S_G0+5,8.0))
        cexp(2,f"s{S_G0+2}"); cexp(4,f"s{S_G0+3}"); cexp(6,f"v{SG}"); cexp(12,f"s{S_G0+5}"); cexp(0,None)
        NR,DEN,u2=235,236,240
        A(f"v_add_f32 v{NR}, -1.0, v{C}"); A(f"v_mul_f32 v{DEN}, v{LR}, v{LR}"); A(f"v_fmac_f32 v{DEN}, v{LI}, v{LI}"); A(f"v_rcp_f32 v{DEN}, v{DEN}")
        A(f"v_mul_f32 v{u2}, v{NR}, v{LR}"); A(f"v_fmac_f32 v{u2}, v{S}, v{LI}"); A(f"v_mul_f32 v{u2+1}, v{S}, v{LR}"); A(f"v_fma_f32 v{u2+1}, -v{NR}, v{LI}, v{u2+1}")
        A(f"v_add_f32 v{DEN}, v{DEN}, v{DEN}"); A(f"v_mul_f32 v{u2}, v{u2}, v{DEN}"); A(f"v_mul_f32 v{u2+1}, v{u2+1}, v{DEN}")
        A(f"v_accvgpr_write_b32 a{A_K+8}, v{u2}"); A(f"v_accvgpr_write_b32 a{A_K+9}, v{u2+1}")
        return L

    def touch(self, items_addr, R, soff, vreg):
        return items_addr+[mk(f"buffer_load_dword a{A_JUNK}, v{vreg}, {sr(R)}, {soff} offen")]
    def touch_w(self):
        l=f"v{V_L}"; a,b=V_T,V_T+1; L=[]; A=lambda x: L.append(mk(x))
        A(f"v_lshrrev_b32 v{a}, 2, {l}"); A(f"v_mul_u32_u24 v{a}, 3584, v{a}"); A(f"v_and_b32 v{b}, 3, {l}"); A(f"v_lshlrev_b32 v{b}, 7, v{b}"); A(f"v_add_u32 v{a}, v{a}, v{b}")
        A(f"s_lshl_b32 s{S_T0}, s{S_C}, 1"); A(f"s_and_b32 s{S_T1}, s{S_W}, 1"); A(f"s_add_u32 s{S_T0}, s{S_T0}, s{S_T1}"); A(f"s_mul_i32 s{S_T0}, s{S_T0}, {16*3584}")
        A(f"s_mul_i32 s{S_T1}, s{S_J}, 224"); A(f"s_and_b32 s{S_T1}, s{S_T1}, 0xffffff80"); A(f"s_add_u32 s{S_T0}, s{S_T0}, s{S_T1}")
        A(f"buffer_load_dword a{A_JUNK}, v{a}, {sr(R_W)}, s{S_T0} offen")
        A(f"v_and_b32 v{a}, 7, {l}"); A(f"v_lshlrev_b32 v{a}, 7, v{a}")
        A(f"s_lshl_b32 s{S_T0}, s{S_J}, 4"); A(f"s_add_u32 s{S_T0}, s{S_T0}, s{S_C}"); A(f"s_lshl_b32 s{S_T0}, s{S_T0}, 1"); A(f"s_and_b32 s{S_T1}, s{S_W}, 1"); A(f"s_add_u32 s{S_T0}, s{S_T0}, s{S_T1}"); A(f"s_lshl_b32 s{S_T0}, s{S_T0}, 10")
        A(f"buffer_load_dword a{A_JUNK}, v{a}, {sr(R_B)}, s{S_T0} offen")
        return L
    def touch_x(self):
        l=f"v{V_L}"; a,b=V_T,V_T+1; L=[]; A=lambda x: L.append(mk(x))
        A(f"v_and_b32 v{a}, 31, {l}"); A(f"v_lshlrev_b32 v{a}, 10, v{a}"); A(f"v_lshrrev_b32 v{b}, 5, {l}"); A(f"v_lshlrev_b32 v{b}, 7, v{b}"); A(f"v_add_u32 v{a}, v{a}, v{b}")
        A(f"s_lshr_b32 s{S_T0}, s{S_J}, 3"); A(f"s_mul_i32 s{S_T0}, s{S_T0}, 384"); A(f"s_add_u32 s{S_T0}, s{S_T0}, 256"); A(f"s_add_u32 s{S_T0}, s{S_T0}, s{S_XROW}")
        A(f"buffer_load_dword a{A_JUNK}, v{a}, {sr(R_X)}, s{S_T0} offen")
        A(f"v_and_b32 v{a}, 31, {l}"); A(f"v_lshlrev_b32 v{a}, 10, v{a}"); A(f"v_mov_b32 v{b}, {OOB}"); A(f"v_cmp_gt_u32 vcc, 32, {l}"); A(f"v_cndmask_b32 v{a}, v{b}, v{a}, vcc")
        A(f"buffer_load_dword a{A_JUNK}, v{a}, {sr(R_X)}, s{S_T0} offen offset:256")
        return L
    def touch_setup_w(self):
        l=f"v{V_L}"; L=[]; A=lambda x: L.append(mk(x))
        A(f"v_lshlrev_b32 v{V_TCH}, 7, {l}"); A(f"v_mov_b32 v{V_T}, {OOB}"); A(f"v_cmp_gt_u32 vcc, 16, {l}"); A(f"v_cndmask_b32 v{V_TCH}, v{V_T}, v{V_TCH}, vcc")
        A(f"s_lshr_b32 s{S_TW}, s2, 3"); A(f"s_lshl_b32 s{S_TW}, s{S_TW}, 2"); A(f"s_add_u32 s{S_TW}, s{S_TW}, s{S_W}"); A(f"s_mul_i32 s{S_TW}, s{S_TW}, {112*128}")
        for k,v in enumerate((f"s{P_WD}",f"s{P_WD+1}",1792*1024,"0x20000")): A(f"s_mov_b32 s{R_T+k}, {v}")
        return L
    def touch_setup_c(self):
        L=[]; A=lambda x: L.append(mk(x))
        A(f"s_lshr_b32 s{S_TW}, s2, 3"); A(f"s_lshl_b32 s{S_TW}, s{S_TW}, 2"); A(f"s_add_u32 s{S_TW}, s{S_TW}, s{S_W}")
        A(f"s_cmp_lt_u32 s{S_TW}, 64")
        A(f"s_cselect_b32 s{R_T2}, s{P_CRE}, s{P_CIM}"); A(f"s_cselect_b32 s{R_T2+1}, s{P_CRE+1}, s{P_CIM+1}"); A(f"s_mov_b32 s{R_T2+2}, {512*1024}"); A(f"s_mov_b32 s{R_T2+3}, 0x20000")
        A(f"s_and_b32 s{S_TW}, s{S_TW}, 63"); A(f"s_lshl_b32 s{S_TW}, s{S_TW}, 13")
        return L
    def touch_one(self, R):
        return [mk(f"buffer_load_dword a{A_JUNK}, v{V_TCH}, {sr(R)}, s{S_TW} offen"), mk(f"s_add_u32 s{S_TW}, s{S_TW}, 2048")]
    def touch_a(self):
        l=f"v{V_L}"; a,b=V_T,V_T+1; L=[]; A=lambda x: L.append(mk(x))
        A(f"v_lshlrev_b32 v{a}, 7, {l}"); A(f"v_mov_b32 v{b}, {OOB}"); A(f"v_cmp_gt_u32 vcc, 44, {l}"); A(f"v_cndmask_b32 v{a}, v{b}, v{a}, vcc")
        A(f"s_mul_i32 s{S_T0}, s{S_CB}, {44*128}"); A(f"s_add_u32 s{S_T1}, s{S_T0}, s{S_A0+1}"); A(f"s_add_u32 s{S_T0}, s{S_T0}, s{S_A0}")
        A(f"buffer_load_dword v{V_JUNK}, v{a}, {sr(R_WS)}, s{S_T0} offen sc1")
        A(f"buffer_load_dword v{V_JUNK}, v{a}, {sr(R_WS)}, s{S_T1} offen sc1")
        return L

    def code_prefetch(self):
        p=self.p
        p.I(f"s_getpc_b64 s[{R_T2}:{R_T2+1}]\nL_pc:")
        p.I(f"s_mov_b32 s{R_T2+2}, L_codeend-L_pc\ns_mov_b32 s{R_T2+3}, 0x20000")
        p.I(f"s_bfe_u32 s{S_T0}, s2, 0x30003\ns_lshl_b32 s{S_T0}, s{S_T0}, 12\nv_lshlrev_b32 v{V_T}, 4, v0")
        p.I(f"buffer_load_dwordx4 a[252:255], v{V_T}, {sr(R_T2)}, s{S_T0} offen")

    def flag_op(self, op, idx_sgpr_expr_items, valsrc, R=R_DBG):
        L=[mk(x) for x in idx_sgpr_expr_items]
        L+=[mk(f"s_cmp_eq_u32 s{S_W}, 0"), mk(f"s_cselect_b32 s{S_T0}, s{S_T0}, {OOB}"),
            mk(f"v_mov_b32 v{V_U+6}, {OOB}"), mk(f"v_mov_b32 v{V_U+7}, s{S_T0}"), mk(f"v_cmp_eq_u32 vcc, 0, v{V_L}"),
            mk(f"v_cndmask_b32 v{V_U+6}, v{V_U+6}, v{V_U+7}, vcc"), mk(f"v_mov_b32 v{V_U+7}, {valsrc}"),
            mk(f"buffer_atomic_{op} v{V_U+7}, v{V_U+6}, {sr(R)}, 0 offen sc1")]
        return L

    @staticmethod
    def cfma(dst, c, x, add):
        return [mk(f"v_pk_fma_f32 {vr(dst,2)}, {vr(c,2)}, {vr(x,2)}, {vr(add,2)} op_sel:[0,0,0] op_sel_hi:[0,1,1]"),
                mk(f"v_pk_fma_f32 {vr(dst,2)}, {vr(c,2)}, {vr(x,2)}, {vr(dst,2)} op_sel:[1,1,0] op_sel_hi:[1,0,1] neg_lo:[1,0,0]")]
    @staticmethod
    def scan_step(nre, nim, lam, hre, him, ure, uim):
        return [mk(f"v_pk_fma_f32 {vr(nre,2)}, {vr(lam,2)}, {vr(hre,2)}, {vr(ure,2)} op_sel:[0,0,0] op_sel_hi:[0,1,1]"),
                mk(f"v_pk_fma_f32 {vr(nim,2)}, {vr(lam,2)}, {vr(him,2)}, {vr(uim,2)} op_sel:[0,0,0] op_sel_hi:[0,1,1]"),
                mk(f"v_pk_fma_f32 {vr(nre,2)}, {vr(lam,2)}, {vr(him,2)}, {vr(nre,2)} op_sel:[1,0,0] op_sel_hi:[1,1,1] neg_lo:[1,0,0] neg_hi:[1,0,0]"),
                mk(f"v_pk_fma_f32 {vr(nim,2)}, {vr(lam,2)}, {vr(hre,2)}, {vr(nim,2)} op_sel:[1,0,0] op_sel_hi:[1,1,1]")]

    def pass1(self):
        lam=V_U; l8=26
        L=[mk(f"v_accvgpr_read_b32 v{lam}, a{A_K}"), mk(f"v_accvgpr_read_b32 v{lam+1}, a{A_K+1}"),
           mk(f"v_accvgpr_read_b32 v{l8}, a{A_K+12}"), mk(f"v_accvgpr_read_b32 v{l8+1}, a{A_K+13}")]
        L+=[mk(f"v_lshrrev_b32 v{V_U+2}, 5, v{V_L}"), mk(f"s_lshl_b32 s{S_T0}, s{S_W}, 1"), mk(f"v_add_u32 v{V_U+2}, s{S_T0}, v{V_U+2}"), mk(f"v_lshlrev_b32 v{V_U+2}, 8, v{V_U+2}"),
            mk(f"v_and_b32 v{V_U+3}, 31, v{V_L}"), mk(f"v_lshlrev_b32 v{V_U+3}, 3, v{V_U+3}"), mk(f"v_add_u32 v{V_U+3}, {L_EX}, v{V_U+3}"), mk(f"v_add_u32 v{V_U+2}, v{V_U+2}, v{V_U+3}")]
        e=[(232,234),(236,238)]
        cr,ci=V_SRE,V_SIM
        for i in range(1,8):
            nr,ni=e[i&1]
            L+=self.scan_step(nr,ni,lam,cr,ci,V_SRE+2*i,V_SIM+2*i)
            cr,ci=nr,ni
        L+=[mk(f"v_fma_f32 v28, v{l8}, v{cr}, v{cr+1}"), mk(f"v_fma_f32 v29, v{l8}, v{ci}, v{ci+1}"),
            mk(f"v_fma_f32 v28, -v{l8+1}, v{ci}, v28"), mk(f"v_fma_f32 v29, v{l8+1}, v{cr}, v29"),
            mk(f"v_accvgpr_write_b32 a{A_K+14}, v{cr}"), mk(f"v_accvgpr_write_b32 a{A_K+15}, v{ci}")]
        w=mk(f"ds_write_b64 v{V_U+2}, v[28:29]"); L.append(w)
        return L,w

    def exchange(self):
        ER=V_U+3
        l16=V_U
        L=[mk(f"v_accvgpr_read_b32 v{l16}, a{A_K+2}"), mk(f"v_accvgpr_read_b32 v{l16+1}, a{A_K+3}")]
        P,N=26,28; S2=V_U+4
        rd=[mk(f"ds_read_b64 {vr(P,2)}, v{ER}")]+[mk(f"ds_read_b64 {vr(232+2*(k-1),2)}, v{ER} offset:{256*k}") for k in range(1,8)]
        L+=rd
        L+=[mk(f"v_mov_b32 v{S2}, 0"), mk(f"v_mov_b32 v{S2+1}, 0"), mk(f"s_lshl_b32 s{S_GT}, s{S_W}, 1"), mk(f"s_add_u32 s{S_PO}, s{S_GT}, 1"), Wait(lgkm=rd[:2])]
        for k in range(1,8):
            L+=[mk(f"s_cmp_eq_u32 s{S_GT}, {k}"), mk(f"s_cselect_b32 s{S_M0}, -1, 0"), mk(f"s_cmp_eq_u32 s{S_PO}, {k}"), mk(f"s_cselect_b32 s{S_M0+1}, -1, 0"), Wait(lgkm=rd[k]),
                mk(f"v_cndmask_b32 v{S2}, v{S2}, v{P}, s[{S_M0}:{S_M0+1}]"), mk(f"v_cndmask_b32 v{S2+1}, v{S2+1}, v{P+1}, s[{S_M0}:{S_M0+1}]")]
            L+=self.cfma(N,l16,P,232+2*(k-1))
            P,N=N,P
        L+=[mk(f"v_accvgpr_write_b32 a{A_KS+10}, v{S2}"), mk(f"v_accvgpr_write_b32 a{A_KS+11}, v{S2+1}"),
            mk(f"v_accvgpr_mov_b32 a{A_KS+2}, a{A_K+14}"), mk(f"v_accvgpr_mov_b32 a{A_KS+3}, a{A_K+15}")]
        Er,Ei=30,31
        L+=[mk(f"s_lshl_b32 s{S_T0}, s{S_C}, 12"), mk(f"s_lshl_b32 s{S_T1}, s{S_J}, 8"), mk(f"s_add_u32 s{S_T0}, s{S_T0}, s{S_T1}"), mk(f"s_add_u32 s{S_T0}, s{S_T0}, {WS_E}"),
            mk(f"s_cmp_eq_u32 s{S_W}, 0"), mk(f"s_cselect_b32 s{S_T0}, s{S_T0}, {OOB}"),
            mk(f"v_lshlrev_b32 v{Er}, 3, v{V_L}"), mk(f"v_add_u32 v{Er}, s{S_T0}, v{Er}"), mk(f"v_mov_b32 v{Ei}, {OOB}"), mk(f"v_cmp_gt_u32 vcc, 32, v{V_L}"),
            mk(f"v_cndmask_b32 v{Er}, v{Ei}, v{Er}, vcc")]
        st=mk(f"buffer_store_dwordx2 {vr(P,2)}, v{Er}, {sr(R_WS)}, 0 offen sc1"); L.append(st)
        return L,st

    def poll_issue(self, vdst, off_items, R=R_DBG, w0only=False, off2=None):
        L=[mk(x) for x in off_items]
        if w0only:
            L+=[mk(f"s_cmp_eq_u32 s{S_W}, 0"), mk(f"s_cselect_b32 s{S_T0}, s{S_T0}, {OOB}")]
            if off2: L+=[mk(f"s_cselect_b32 s{S_T1}, s{S_T1}, {OOB}")]
        L+=[mk(f"v_mov_b32 v{vdst+1}, {OOB}"), mk(f"v_mov_b32 v{V_U+7}, s{S_T0}"), mk(f"v_cmp_eq_u32 vcc, 0, v{V_L}"), mk(f"v_cndmask_b32 v{vdst+1}, v{vdst+1}, v{V_U+7}, vcc")]
        if off2:
            L+=[mk(f"v_mov_b32 v{V_U+7}, s{S_T1}"), mk(f"v_cmp_eq_u32 vcc, 1, v{V_L}"), mk(f"v_cndmask_b32 v{vdst+1}, v{vdst+1}, v{V_U+7}, vcc")]
        t=mk(f"buffer_load_dword v{vdst}, v{vdst+1}, {sr(R)}, 0 offen sc1"); L.append(t)
        return L,t
    def poll_check(self, name, vdst, tok, cond_items, R=R_DBG, w0only=False, two=False, sleep=1):
        sid={"g":20,"e":24,"a":28}[name]
        rl=[f"v_readlane_b32 s{S_T0}, v{vdst}, 0"]+([f"v_readlane_b32 s{S_T1}, v{vdst}, 1"] if two else [])
        L=self.stamp(sid)+([mk(f"s_mov_b32 s{S_CNT}, 0")] if self.o.get("stamps") else [])+[Wait(vm=tok)]+self.stamp(sid+1)
        if w0only: L+=[mk(f"s_cmp_lg_u32 s{S_W}, 0"), mk(f"s_cbranch_scc1 L_back_{name}")]
        L+=[mk(x) for x in rl]+[mk(x) for x in cond_items]
        L+=[mk(f"s_cbranch_scc0 L_slow_{name}"), mk(f"L_back_{name}:")]+self.stamp(sid+2)+self.note(sid+3,S_CNT)
        S=[f"L_slow_{name}:", f"s_mov_b32 s{S_CNT}, 0", f"L_loop_{name}:"]+([f"s_sleep {sleep}"] if sleep else [])+[
           f"buffer_load_dword v{vdst}, v{vdst+1}, {sr(R)}, 0 offen sc1", "s_waitcnt vmcnt(0)"]+rl+["s_nop 1",
           f"s_add_u32 s{S_CNT}, s{S_CNT}, 1", f"s_cmp_gt_u32 s{S_CNT}, 100000", f"s_cbranch_scc1 L_back_{name}"]
        S+=cond_items+[f"s_cbranch_scc1 L_back_{name}", f"s_branch L_loop_{name}"]
        self.slow+=S
        return L

    def g_loads(self):
        L=[]
        T=V_T
        L+=[mk(f"v_bfe_u32 v{T}, v{V_L}, 2, 1"), mk(f"v_lshlrev_b32 v{T}, 4, v{T}"), mk(f"v_bfe_u32 v{T+1}, v{V_L}, 3, 2"), mk(f"v_lshlrev_b32 v{T+1}, 2, v{T+1}"),
            mk(f"v_add_u32 v{T}, v{T}, v{T+1}"), mk(f"v_and_b32 v{T+1}, 3, v{V_L}"), mk(f"v_add_u32 v{T}, v{T}, v{T+1}"), mk(f"v_lshlrev_b32 v{T}, 2, v{T}"),
            mk(f"s_lshl_b32 s{S_T0}, s{S_C}, 2"), mk(f"s_add_u32 s{S_T0}, s{S_T0}, s{S_W}"), mk(f"s_lshl_b32 s{S_T0}, s{S_T0}, 7"), mk(f"s_add_u32 s{S_T0}, s{S_T0}, {WS_G}")]
        t0=mk(f"buffer_load_dword v14, v{T}, {sr(R_WS)}, s{S_T0} offen sc1"); L.append(t0)
        L+=[mk(f"v_lshrrev_b32 v{T+1}, 5, v{V_L}"), mk(f"v_lshlrev_b32 v{T+1}, 6, v{T+1}")]
        toks=[t0]
        for i,r in enumerate((2,6,10,18)):
            t=mk(f"buffer_load_dwordx4 {vr(r,4)}, v{T+1}, {sr(R_WS)}, s{S_T0} offen offset:{16*i} sc1"); L.append(t); toks.append(t)
        return L,toks
    GREG=[2,3,4,5,6,7,8,9,10,11,12,13,18,19,20,21]

    EREG=[36,38,40,42,44,46,52,54,56,58,60,62,68,70,72]
    def e_loads(self):
        T=V_T
        L=[mk(f"s_add_u32 s{R_T2}, s{P_WS}, {WS_E}"), mk(f"s_addc_u32 s{R_T2+1}, s{P_WS+1}, 0"), mk(f"s_mov_b32 s{R_T2+2}, 65536"), mk(f"s_mov_b32 s{R_T2+3}, 0x20000"),
           mk(f"v_and_b32 v{T+2}, 31, v{V_L}"), mk(f"v_lshlrev_b32 v{T+2}, 3, v{T+2}"), mk(f"s_lshl_b32 s{S_T1}, s{S_J}, 8"), mk(f"s_lshl_b32 s{S_T0}, s{S_C}, 12"),
           mk(f"s_add_u32 s{S_T0}, s{S_T0}, s{S_T1}"), mk(f"s_sub_u32 s{S_T0}, s{S_T0}, 4096"), mk(f"v_add_u32 v{T+2}, s{S_T0}, v{T+2}")]
        toks=[]
        for m in range(15):
            a=T+2+(m&1); b=T+2+((m+1)&1)
            t=mk(f"buffer_load_dwordx2 {vr(self.EREG[m],2)}, v{a}, {sr(R_T2)}, 0 offen sc1"); L.append(t); toks.append(t)
            if m<14: L.append(mk(f"v_subrev_u32 v{b}, 4096, v{a}"))
        return L,toks

    def ffn_epilogue(self, gtok):
        pre=[]; st=[]
        KC=V_WF; IR=V_WF+2; T=V_WF+4
        k0=-2.0*0.7978845608028654*self.LOG2E
        pre+=[Wait(vm=gtok), mk(f"v_sub_f32 v{IR}, 1.0, v14"), mk(self.fconst(S_T0,k0*0.044715)), mk(f"v_cvt_pk_bf16_f32 v{IR}, v{IR}, v{IR}"), mk(f"v_mov_b32 v{KC}, s{S_T0}"),
             mk(f"v_lshlrev_b32 v{IR}, 16, v{IR}"), mk(self.fconst(S_T0,k0)), mk(f"v_rcp_f32 v{IR}, v{IR}"), mk(f"v_mov_b32 v{KC+1}, s{S_T0}"),
             mk(self.fconst(S_T0,1e30)), mk(f"v_min_f32 v{IR}, s{S_T0}, v{IR}")]
        pre+=[mk(f"s_lshl_b32 s{S_AO}, s{S_C}, 2"), mk(f"s_add_u32 s{S_AO}, s{S_AO}, s{S_W}"), mk(f"s_mul_i32 s{S_AO}, s{S_AO}, 176"), mk(f"s_mul_i32 s{S_T0}, s{S_J}, 11"),
            mk(f"s_add_u32 s{S_AO}, s{S_AO}, s{S_T0}"), mk(f"s_lshl_b32 s{S_AO}, s{S_AO}, 10"), mk(f"v_lshlrev_b32 v{V_AO}, 4, v{V_L}")]
        tiles=[]
        for i in range(7):
            L=[]
            a=V_ACC+16*i
            o=T+16*(i&1)
            Z,Pd=o,o+8
            pr=[(a,a+4),(a+2,a+6),(a+8,a+12),(a+10,a+14)]
            for e,(g,u) in enumerate(pr): L.append(mk(f"v_pk_mul_f32 {vr(Z+2*e,2)}, {vr(g,2)}, {vr(g,2)}"))
            for e,(g,u) in enumerate(pr): L.append(mk(f"v_pk_fma_f32 {vr(Z+2*e,2)}, {vr(Z+2*e,2)}, {vr(KC,2)}, {vr(KC,2)} op_sel:[0,0,1] op_sel_hi:[1,0,1]"))
            for e,(g,u) in enumerate(pr): L.append(mk(f"v_pk_mul_f32 {vr(Z+2*e,2)}, {vr(g,2)}, {vr(Z+2*e,2)}"))
            for e,(g,u) in enumerate(pr):
                L.append(mk(f"v_exp_f32 v{Z+2*e}, v{Z+2*e}")); L.append(mk(f"v_exp_f32 v{Z+2*e+1}, v{Z+2*e+1}")); L.append(mk(f"v_pk_mul_f32 {vr(Pd+2*e,2)}, {vr(g,2)}, {vr(u,2)}"))
            for e in range(4): L.append(mk(f"v_pk_fma_f32 {vr(Z+2*e,2)}, {vr(Z+2*e,2)}, {vr(IR,2)}, {vr(IR,2)} op_sel:[0,0,0] op_sel_hi:[1,0,0]"))
            for e in range(8): L.append(mk(f"v_rcp_f32 v{Z+e}, v{Z+e}"))
            for e in range(4): L.append(mk(f"v_pk_mul_f32 {vr(Pd+2*e,2)}, {vr(Pd+2*e,2)}, {vr(Z+2*e,2)}"))
            for e in range(4): L.append(mk(f"v_cvt_pk_bf16_f32 v{a+e}, v{Pd+2*e}, v{Pd+2*e+1}"))
            tiles.append(L)
        S=[]
        for i in range(7):
            t=mk(f"buffer_store_dwordx4 {vr(V_ACC+16*i,4)}, v{V_AO}, {sr(R_WS)}, s{S_AO} offen offset:{1024*(i&3)} sc1"); st.append(t)
            S.append(([mk(f"s_add_u32 s{S_AO}, s{S_AO}, 4096")] if i==4 else [])+[t])
        return pre,tiles,S,st

    def ssm_epilogue(self, etok, gtok, tbase_items):
        L=[]; st=[]
        LAM,Q,S2=176,178,180
        H,N=182,184
        rd=lambda v,a: mk(f"v_accvgpr_read_b32 v{v}, a{a}")
        L+=[rd(Q,A_KS+4), rd(Q+1,A_KS+5), rd(LAM,A_KS), rd(LAM+1,A_KS+1), rd(S2,A_KS+8), rd(S2+1,A_KS+9), Wait(vm=etok)]
        cur=self.EREG[14]
        for m in range(13,-1,-1):
            L+=self.cfma(N,Q,cur,self.EREG[m]); cur=N; H,N=N,H
        Hin=cur
        W,X=186,188
        L+=[rd(Q,A_KS+6), rd(Q+1,A_KS+7), rd(W,A_KS+10), rd(W+1,A_KS+11)]
        L+=self.cfma(X,Q,Hin,W)
        L+=[rd(Q,A_KS+12), rd(Q+1,A_KS+13), rd(W,A_KS+2), rd(W+1,A_KS+3)]
        L+=self.cfma(190,Q,X,W)
        HR,HI,NR,NI=192,194,196,198
        L+=[mk(f"v_mov_b32 v{HR}, v{X}"), mk(f"v_mov_b32 v{HR+1}, v190"), mk(f"v_mov_b32 v{HI}, v{X+1}"), mk(f"v_mov_b32 v{HI+1}, v191"), Wait(vm=gtok)]
        PK=214
        OR,OI=200,202
        for i in range(8):
            g=self.GREG[2*i]
            L+=self.scan_step(NR,NI,LAM,HR,HI,V_SRE+2*i,V_SIM+2*i)
            HR,HI,NR,NI=NR,NI,HR,HI
            L+=[mk(f"v_pk_mul_f32 {vr(OR,2)}, {vr(S2,2)}, {vr(HR,2)} op_sel:[0,0] op_sel_hi:[0,1]"), mk(f"v_pk_mul_f32 {vr(OI,2)}, {vr(S2,2)}, {vr(HI,2)} op_sel:[0,0] op_sel_hi:[0,1]"),
                mk(f"v_pk_fma_f32 {vr(OR,2)}, {vr(S2,2)}, {vr(HI,2)}, {vr(OR,2)} op_sel:[1,0,0] op_sel_hi:[1,1,1] neg_lo:[1,0,0] neg_hi:[1,0,0]"),
                mk(f"v_pk_fma_f32 {vr(OI,2)}, {vr(S2,2)}, {vr(HR,2)}, {vr(OI,2)} op_sel:[1,0,0] op_sel_hi:[1,1,1]"),
                mk(f"v_pk_mul_f32 {vr(OR,2)}, {vr(g,2)}, {vr(OR,2)}"), mk(f"v_pk_mul_f32 {vr(OI,2)}, {vr(g,2)}, {vr(OI,2)} neg_lo:[1,0] neg_hi:[1,0]"),
                mk(f"v_cvt_pk_bf16_f32 v{PK+i}, v{OR}, v{OR+1}"), mk(f"v_cvt_pk_bf16_f32 v{PK+8+i}, v{OI}, v{OI+1}")]
        TW,TR0,TR1=204,205,206
        L+=tbase_items
        n_=207
        L+=[mk(f"v_and_b32 v{n_}, 31, v{V_L}"), mk(f"v_lshlrev_b32 v{TW}, 6, v{n_}"), mk(f"v_bfe_u32 v{n_+1}, v{V_L}, 1, 2"),
            mk(f"v_lshrrev_b32 v{n_+2}, 5, v{V_L}"), mk(f"v_lshlrev_b32 v{n_+2}, 1, v{n_+2}"),
            mk(f"v_xor_b32 v{n_+2}, v{n_+2}, v{n_+1}"),
            mk(f"v_lshlrev_b32 v{n_+3}, 4, v{n_+2}"), mk(f"v_xor_b32 v{n_+2}, 1, v{n_+2}"), mk(f"v_lshlrev_b32 v{n_+2}, 4, v{n_+2}"),
            mk(f"v_add_u32 v{TW}, s{S_T0}, v{TW}"), mk(f"v_add_u32 v{n_+2}, v{TW}, v{n_+2}"), mk(f"v_add_u32 v{TW}, v{TW}, v{n_+3}")]
        wr=[]
        for m in range(2):
            wr.append(mk(f"ds_write_b128 v{TW}, {vr(PK+8*m,4)} offset:{2048*m}")); wr.append(mk(f"ds_write_b128 v{n_+2}, {vr(PK+8*m+4,4)} offset:{2048*m}"))
        L+=wr
        a=n_+4
        L+=[mk(f"v_lshrrev_b32 v{a}, 5, v{V_L}"), mk(f"v_lshlrev_b32 v{a}, 3, v{a}"), mk(f"v_bfe_u32 v{a+1}, v{V_L}, 2, 2"), mk(f"v_add_u32 v{a}, v{a}, v{a+1}"), mk(f"v_lshlrev_b32 v{a}, 6, v{a}"),
            mk(f"v_and_b32 v{a+1}, 1, v{V_L}"), mk(f"v_lshlrev_b32 v{a+1}, 1, v{a+1}"), mk(f"v_bfe_u32 v{a+2}, v{V_L}, 4, 1"), mk(f"v_add_u32 v{a+1}, v{a+1}, v{a+2}"),
            mk(f"v_bfe_u32 v{a+2}, v{V_L}, 3, 1"), mk(f"v_xor_b32 v{a+1}, v{a+1}, v{a+2}"),
            mk(f"v_bfe_u32 v{a+2}, v{V_L}, 1, 1"), mk(f"v_lshlrev_b32 v{a+2}, 3, v{a+2}"), mk(f"v_add_u32 v{a}, v{a}, v{a+2}"), mk(f"v_add_u32 v{a}, s{S_T0}, v{a}"),
            mk(f"v_lshlrev_b32 v{a+2}, 4, v{a+1}"), mk(f"v_add_u32 v{TR0}, v{a}, v{a+2}"),
            mk(f"v_xor_b32 v{a+1}, 2, v{a+1}"), mk(f"v_lshlrev_b32 v{a+2}, 4, v{a+1}"), mk(f"v_add_u32 v{TR1}, v{a}, v{a+2}"), mk(f"v_add_u32 v{TR1}, 256, v{TR1}")]
        L+=[Wait(lgkm=wr)]
        OUT=V_SRE
        rd=[]
        for b in range(4):
            m,mu=b>>1,b&1
            rd.append(mk(f"ds_read_b64_tr_b16 {vr(OUT+4*b,2)}, v{TR0} offset:{2048*m+1024*mu}")); rd.append(mk(f"ds_read_b64_tr_b16 {vr(OUT+4*b+2,2)}, v{TR1} offset:{2048*m+1024*mu}"))
        L+=rd
        L+=[mk(f"s_add_u32 s{S_AO}, s{S_AO}, 3072")]
        for b in range(4):
            t=mk(f"buffer_store_dwordx4 {vr(OUT+4*b,4)}, v{V_AO}, {sr(R_WS)}, s{S_AO} offen offset:{1024*b} sc1")
            L+=[Wait(lgkm=rd[2*b:2*b+2]), t]; st.append(t)
        self.t_reads=rd
        return L,st

    def copy_consts(self):
        return [mk(f"v_accvgpr_mov_b32 a{A_KS+i}, a{A_K+i}") for i in (0,1,4,5,6,7,8,9,12,13)]

    def blk_areg(self,b): return 64+8*b
    def p3_patterns1(self):
        l=f"v{V_L}"; a,b,c=V_T,30,31
        L=[]; A=lambda x: L.append(mk(x))
        A(f"s_mul_i32 s{S_RG}, s{S_W}, {REGION}")
        A(f"v_lshrrev_b32 v{a}, 3, {l}"); A(f"v_lshlrev_b32 v{a}, 10, v{a}"); A(f"v_bfe_u32 v{b}, {l}, 4, 1"); A(f"v_lshlrev_b32 v{b}, 2, v{b}"); A(f"v_and_b32 v{c}, 7, {l}")
        A(f"v_xor_b32 v{b}, v{b}, v{c}"); A(f"v_lshlrev_b32 v{b}, 4, v{b}"); A(f"v_add_u32 v{V_FD}, v{a}, v{b}"); A(f"v_add_u32 v{V_FD+1}, 7168, v{V_FD}")
        A(f"v_lshrrev_b32 v{a}, 5, {l}"); A(f"v_lshlrev_b32 v{a}, 2, v{a}"); A(f"v_bfe_u32 v{b}, {l}, 2, 2"); A(f"v_add_u32 v{a}, v{a}, v{b}"); A(f"v_lshlrev_b32 v{a}, 7, v{a}")
        A(f"v_bfe_u32 v{b}, {l}, 4, 1"); A(f"v_lshlrev_b32 v{b}, 5, v{b}"); A(f"v_add_u32 v{a}, v{a}, v{b}"); A(f"v_and_b32 v{b}, 3, {l}"); A(f"v_lshlrev_b32 v{b}, 3, v{b}"); A(f"v_add_u32 v{a}, v{a}, v{b}")
        A(f"v_add_u32 v{a}, s{S_RG}, v{a}"); A(f"v_bfe_u32 v{b}, {l}, 3, 1"); A(f"v_lshlrev_b32 v{b}, 6, v{b}"); A(f"s_and_b32 s{S_T3}, s{S_W}, 1"); A(f"s_lshl_b32 s{S_T3}, s{S_T3}, 6"); A(f"v_xor_b32 v{b}, s{S_T3}, v{b}"); A(f"v_add_u32 v{V_FR}, v{a}, v{b}"); A(f"v_xor_b32 v{b}, 64, v{b}"); A(f"v_add_u32 v{V_FR+1}, v{a}, v{b}")
        A(f"s_mul_i32 s{S_FO}, s{S_W}, {448*1024}"); A(f"s_lshl_b32 s{S_T3}, s{S_CB}, 7"); A(f"s_add_u32 s{S_FO}, s{S_FO}, s{S_T3}")
        for k,v in enumerate((f"s{P_WD}",f"s{P_WD+1}",1792*1024,"0x20000")): A(f"s_mov_b32 s{R_T+k}, {v}")
        return L
    def p3_patterns2(self):
        l=f"v{V_L}"; a,b,c=V_T,30,31
        L=[]; A=lambda x: L.append(mk(x))
        A(f"v_lshrrev_b32 v{a}, 3, {l}"); A(f"v_lshlrev_b32 v{a}, 10, v{a}"); A(f"v_and_b32 v{c}, 7, {l}")
        A(f"v_lshrrev_b32 v{b}, 4, {l}"); A(f"v_xor_b32 v{b}, v{b}, v{c}"); A(f"v_xor_b32 v{c}, 4, v{b}"); A(f"v_lshlrev_b32 v{b}, 4, v{b}"); A(f"v_lshlrev_b32 v{c}, 4, v{c}")
        for q in range(4):
            A(f"v_add_u32 v{V_CD+q}, v{a}, v{b if q%2==0 else c}")
            if q: A(f"v_add_u32 v{V_CD+q}, {7168*q}, v{V_CD+q}")
        A(f"v_and_b32 v{a}, 31, {l}"); A(f"v_lshlrev_b32 v{a}, 7, v{a}"); A(f"v_add_u32 v{a}, s{S_RG}, v{a}"); A(f"v_bfe_u32 v{b}, {l}, 1, 3"); A(f"v_lshrrev_b32 v{c}, 5, {l}"); A(f"v_xor_b32 v{b}, v{b}, v{c}")
        for s in range(4):
            A(f"v_xor_b32 v{c}, {2*s}, v{b}"); A(f"v_lshlrev_b32 v{c}, 4, v{c}"); A(f"v_add_u32 v{V_CR[s]}, v{a}, v{c}")
        A(f"s_lshl_b32 s{S_CO}, s{S_CB}, 16"); A(f"s_lshl_b32 s{S_T0}, s{S_W}, 8"); A(f"s_add_u32 s{S_CO}, s{S_CO}, s{S_T0}")
        A(f"s_and_b32 s{S_T0}, s{S_W}, 1"); A(f"s_lshl_b32 s{S_T0}, s{S_T0}, 15"); A(f"s_xor_b32 s{S_CO1}, s{S_T0}, 0x8000"); A(f"s_add_u32 s{S_CO1}, s{S_CO1}, s{S_CO}"); A(f"s_add_u32 s{S_CO}, s{S_CO}, s{S_T0}")
        for reg,ptr,size in ((R_B,P_CRE,512*1024),(R_W,P_CIM,512*1024)):
            A(f"s_mov_b32 s{reg}, s{ptr}"); A(f"s_mov_b32 s{reg+1}, s{ptr+1}"); A(f"s_mov_b32 s{reg+2}, {size}"); A(f"s_mov_b32 s{reg+3}, 0x20000")
        return L
    def p3_rebase_after(self, rd2):
        return [Wait(lgkm=sum(rd2.values(),[]))]+self.p3_rebase()
    def p3_rebase(self):
        return [mk(f"s_sub_u32 s{S_T0}, s{S_RG}, s{S_TB}"), mk(f"v_add_u32 v{V_FR}, s{S_T0}, v{V_FR}"), mk(f"v_add_u32 v{V_FR+1}, s{S_T0}, v{V_FR+1}")]
    def p3_dma_f(self, b, slot, tail=False):
        L=[mk(f"s_add_u32 m0, s{S_TB if tail else S_RG}, {slot*2048}"), mk(f"s_add_u32 s{S_PO}, s{S_FO}, {b*16*1024}")]
        t=[mk(f"buffer_load_dwordx4 v{V_FD+i}, {sr(R_T)}, s{S_PO} offen offset:{1024*i} lds") for i in range(2)]
        if b in self.o.get("skip_f",()): t=[mk("s_nop 0"),mk("s_nop 0")]
        return L+t,t
    def p3_dma_c(self, k):
        mat,ph,ct=k>>2,(k>>1)&1,k&1
        L=[mk(f"s_add_u32 m0, s{S_RG}, {k*4096}"), mk(f"s_add_u32 s{S_PO}, s{S_CO1 if ct else S_CO}, {ph*128}")]
        t=[mk(f"buffer_load_dwordx4 v{V_CD+q}, {sr(R_W if mat else R_B)}, s{S_PO} offen offset:{1024*q} lds") for q in range(4)]
        if k in self.o.get("skip_c",()): t=[mk("s_nop 0") for q in range(4)]
        return L+t,t
    def p3_rd_f(self, slot, dst, agpr):
        R=ar if agpr else vr
        return [mk(f"ds_read_b64_tr_b16 {R(dst+4*ct+2*q,2)}, v{V_FR+ct} offset:{slot*2048+1024*q}") for ct in range(2) for q in range(2)]
    def p3_rd_c(self, mat, ph, s, dst):
        return [mk(f"ds_read_b128 {vr(dst+4*ct,4)}, v{V_CR[s]} offset:{(4*mat+2*ph+ct)*4096}") for ct in range(2)]

    @staticmethod
    def cost(it):
        if isinstance(it,Wait): return 2
        if it.kind=="label": return 0
        if it.op in TRANS: return 8
        if it.kind=="vmem": return 12
        return 4
    def merge_time(self, stream, ev, t=0):
        out=[]; i=0
        for it in stream:
            sccuse = (not isinstance(it,Wait)) and (it.kind=="label" or it.op.startswith("s_cselect") or it.op.startswith("s_cbranch_scc") or it.op.startswith("s_addc"))
            while (not sccuse) and i<len(ev) and ev[i][0]<=t:
                for x in ev[i][1]:
                    out.append(x); t+=self.cost(x)
                i+=1
            out.append(it); t+=self.cost(it)
        return out,ev[i:],t

    def phase3(self, tok):
        p=self.p
        ACC=32; RING=96; D=self.o.get('ring',12); BJ=96+8*D
        order=[("f",b) for b in range(26)]+[("c",1,ph,s) for ph in range(2) for s in range(4)]+[("c",0,ph,s) for ph in range(2) for s in range(4)]+[("f",26),("f",27)]
        def krel(st):
            if st[0]=="f": return 11*(st[1]//7)+st[1]%7
            _,mat,ph,s=st
            return 11*(2*ph+(s>>1))+7+2*mat+(s&1)
        def aload(i):
            st=order[i]; r=RING+8*(i%D); k=krel(st)*1024
            L=[mk(f"s_add_u32 s{S_T2}, s{S_A0}, {k}"), mk(f"s_add_u32 s{S_T3}, s{S_A0+1}, {k}")]
            t=[mk(f"buffer_load_dwordx4 {vr(r+4*e,4)}, v{V_AO}, {sr(R_WS)}, s{S_T2+e} offen sc1") for e in range(2)]
            return [L[0],t[0],L[1],t[1]],t
        at={}
        for i in range(D):
            L,at[i]=aload(i); p.add(L)
        p.add(self.final_loads())
        xt=self.xterm_items()
        brd={}
        def bread(i):
            st=order[i]; dst=BJ+8*(i%3)
            if st[0]=="f":
                b=st[1]
                if b<24: return None
                slot={24:16,25:17,26:18,27:19}[b]
                return [Wait(vm=tok[("f",b)])]+self.p3_rd_f(slot,dst,False)
            _,mat,ph,s=st
            w=[Wait(vm=tok[("c",4*mat+2*ph+ct)]) for ct in range(2)]
            return w+self.p3_rd_c(mat,ph,s,dst)
        n=len(order)
        x0=self.o.get("xt0",13); xn=8
        xparts=split(xt,xn)
        for i in range(n):
            st=order[i]
            fill=[]
            if i+2<n:
                r=bread(i+2)
                if r: brd[i+2]=[x for x in r if not isinstance(x,Wait)]; fill+=r
            if x0<=i<x0+xn: fill+=xparts[i-x0]
            r=RING+8*(i%D)
            if st[0]=="f" and st[1]<24: B=lambda ct,b=st[1]: ar(self.blk_areg(b)+4*ct,4)
            else: B=lambda ct,i=i: vr(BJ+8*(i%3)+4*ct,4)
            mf=[]
            for tau in range(2):
                for ct in range(2):
                    a=ACC+16*(2*tau+ct)
                    mf.append(mk(f"v_mfma_f32_32x32x16_bf16 {vr(a,16)}, {vr(r+4*tau,4)}, {B(ct)}, {'0' if i==0 else vr(a,16)}"))
            p.wait(vm=at[i][0])
            if i in brd: p.wait(lgkm=brd[i])
            k=len(fill); f3=[fill[(k*q)//3:(k*(q+1))//3] for q in range(3)]
            p.add(mf[0]); p.add(f3[0]); p.add(mf[1]); p.add(f3[1])
            p.wait(vm=at[i][1])
            p.add(mf[2]); p.add(f3[2]); p.add(mf[3])
            if i+D<n:
                L,at[i+D]=aload(i+D); p.add(L)

    def a_base(self):
        L=[]; A=lambda x: L.append(mk(x))
        A(f"s_lshl_b32 s{S_A0}, s{S_C3}, 2"); A(f"s_lshl_b32 s{S_T0}, s{S_RH}, 1"); A(f"s_add_u32 s{S_A0}, s{S_A0}, s{S_T0}"); A(f"s_mul_i32 s{S_A0}, s{S_A0}, 176")
        A(f"s_mul_i32 s{S_T0}, s{S_W}, 44"); A(f"s_add_u32 s{S_A0}, s{S_A0}, s{S_T0}"); A(f"s_lshl_b32 s{S_A0}, s{S_A0}, 10")
        A(f"s_lshr_b32 s{S_T0}, s{S_W}, 1"); A(f"s_mul_i32 s{S_T0}, s{S_T0}, {176*1024}"); A(f"s_xor_b32 s{S_T1}, s{S_T0}, {176*1024}")
        A(f"s_add_u32 s{S_A0+1}, s{S_A0}, s{S_T1}"); A(f"s_add_u32 s{S_A0}, s{S_A0}, s{S_T0}")
        return L

    @staticmethod
    def reg_of_row(rho): return 2*rho if rho<8 else 2*(rho-8)+1
    def final_loads(self):
        L=[]; A=lambda x: L.append(mk(x)) or L[-1]
        XV,GV,DV=2,216,18
        a=V_T
        A(f"s_lshl_b32 s{S_R0}, s{S_C3}, 7"); A(f"s_lshl_b32 s{S_T0}, s{S_RH}, 6"); A(f"s_add_u32 s{S_R0}, s{S_R0}, s{S_T0}"); A(f"s_lshr_b32 s{S_T0}, s{S_W}, 1"); A(f"s_lshl_b32 s{S_T0}, s{S_T0}, 5"); A(f"s_add_u32 s{S_R0}, s{S_R0}, s{S_T0}")
        A(f"s_lshl_b32 s{S_D0}, s{S_CB}, 6"); A(f"s_and_b32 s{S_T0}, s{S_W}, 1"); A(f"s_lshl_b32 s{S_T0}, s{S_T0}, 5"); A(f"s_add_u32 s{S_D0}, s{S_D0}, s{S_T0}")
        A(f"v_lshrrev_b32 v{a}, 5, v{V_L}"); A(f"v_lshlrev_b32 v{a+1}, 6, v{a}"); A(f"s_lshl_b32 s{S_T0}, s{S_R0}, 2"); A(f"s_add_u32 s{S_T0}, s{S_T0}, {WS_G}")
        toks=[]
        for i in range(4): toks.append(A(f"buffer_load_dwordx4 {vr(GV+4*i,4)}, v{a+1}, {sr(R_WS)}, s{S_T0} offen offset:{16*i} sc1"))
        for i,(v) in enumerate((P_DSK,P_DSK+1)): A(f"s_mov_b32 s{R_T2+i}, s{v}")
        A(f"s_mov_b32 s{R_T2+2}, 1024"); A(f"s_mov_b32 s{R_T2+3}, 0x20000")
        A(f"v_and_b32 v{a+2}, 31, v{V_L}"); A(f"v_add_u32 v{a+2}, s{S_D0}, v{a+2}")
        A(f"v_lshlrev_b32 v{V_OO}, 2, v{a+2}"); A(f"v_lshlrev_b32 v{a+2}, 1, v{a+2}")
        toks.append(A(f"buffer_load_ushort v{DV}, v{a+2}, {sr(R_T2)}, 0 offen"))
        A(f"v_lshlrev_b32 v{a}, 14, v{a}"); A(f"v_add_u32 v{a+2}, v{a+2}, v{a}"); A(f"s_lshl_b32 s{S_T0}, s{S_R0}, 10")
        for rho in range(16):
            if rho and rho%4==0: A(f"s_add_u32 s{S_T0}, s{S_T0}, 4096")
            toks.append(A(f"buffer_load_ushort v{XV+self.reg_of_row(rho)}, v{a+2}, {sr(R_X)}, s{S_T0} offen offset:{1024*(rho%4)}"))
        A(f"v_lshl_add_u32 v{V_OO}, v{a}, 1, v{V_OO}")
        self.fin_toks=toks
        return L

    def xterm_items(self):
        XV,GV,DV=2,216,18
        L=[Wait(vm=self.fin_toks), mk(f"v_lshlrev_b32 v{DV}, 16, v{DV}")]
        for r in range(16): L.append(mk(f"v_lshlrev_b32 v{XV+r}, 16, v{XV+r}"))
        for r in range(0,16,2): L.append(mk(f"v_pk_mul_f32 {vr(XV+r,2)}, {vr(XV+r,2)}, {vr(DV,2)} op_sel:[0,0] op_sel_hi:[1,0]"))
        for r in range(0,16,2): L.append(mk(f"v_cvt_pk_bf16_f32 v{XV+r}, v{XV+r}, v{XV+r+1}"))
        for r in range(0,16,2): L+=[mk(f"v_and_b32 v{XV+r+1}, 0xffff0000, v{XV+r}"), mk(f"v_lshlrev_b32 v{XV+r}, 16, v{XV+r}")]
        for r in range(0,16,2): L.append(mk(f"v_pk_mul_f32 {vr(XV+r,2)}, {vr(XV+r,2)}, {vr(GV+r,2)}"))
        a=V_T
        L+=[mk(f"v_lshlrev_b32 v{a}, 4, v{V_L}")]
        for k in range(1,4):
            L+=[mk(f"s_xor_b32 s{S_T0}, s{S_W}, {k}"), mk(f"s_mul_i32 s{S_T0}, s{S_T0}, {REGION}"), mk(f"v_add_u32 v{a+k}, s{S_T0}, v{a}")]
        L+=[mk(f"v_add_u32 v{a}, s{S_RG}, v{a}")]
        for k,v in enumerate((f"s{P_OUT}",f"s{P_OUT+1}",2048*2048,"0x20000")): L.append(mk(f"s_mov_b32 s{R_T2+k}, {v}"))
        L+=[mk(f"s_lshl_b32 s{S_R0}, s{S_R0}, 11")]
        return L

    def final(self):
        p=self.p
        ACC=32; XV=2
        a=V_T
        wr=[]
        for k in range(1,4):
            for q in range(4): wr.append(p.I(f"ds_write_b128 v{a}, {vr(ACC+16*k+4*q,4)} offset:{(k-1)*4096+q*1024}"))
        for r in range(0,16,2): p.I(f"v_pk_add_f32 {vr(ACC+r,2)}, {vr(ACC+r,2)}, {vr(XV+r,2)}")
        p.wait(lgkm_all=True); p.I("s_barrier")
        rd=[]
        for k in range(1,4):
            for q in range(4): rd.append(p.I(f"ds_read_b128 {vr(96+16*(k-1)+4*q,4)}, v{a+k} offset:{(k-1)*4096+q*1024}"))
        for k in range(3):
            for q in range(4):
                p.wait(lgkm=rd[4*k+q])
                for r in (4*q,4*q+2): p.I(f"v_pk_add_f32 {vr(ACC+r,2)}, {vr(ACC+r,2)}, {vr(96+16*k+r,2)}")
        fl=self.o.get("out_flags","")
        for rho in range(16):
            if rho and rho%2==0: p.I(f"s_add_u32 s{S_R0}, s{S_R0}, 4096")
            p.I(f"buffer_store_dword v{ACC+self.reg_of_row(rho)}, v{V_OO}, {sr(R_T2)}, s{S_R0} offen offset:{2048*(rho%2)} {fl}")

    def stamp(self, idx):
        if not self.o.get("stamps"): return []
        only=self.o.get("only")
        if only is not None and idx not in only: return []
        L=[mk("s_memrealtime s[100:101]"), mk("s_waitcnt lgkmcnt(0)"), mk(f"v_writelane_b32 v{V_ST}, s100, {idx}")]
        if self.o.get("cyc"): L+=[mk("s_memtime s[100:101]"), mk("s_waitcnt lgkmcnt(0)"), mk(f"v_writelane_b32 v{V_ST}, s100, {idx+16}")]
        return L
    def note(self, idx, sreg):
        if not self.o.get("stamps"): return []
        return [mk("s_nop 0"), mk(f"v_writelane_b32 v{V_ST}, s{sreg}, {idx}")]
    def dump_stamps(self):
        if not self.o.get("stamps"): return
        p=self.p
        p.I(f"s_lshl_b32 s{S_T0}, s2, 2\ns_add_u32 s{S_T0}, s{S_T0}, s{S_W}\ns_lshl_b32 s{S_T0}, s{S_T0}, 8\ns_add_u32 s{S_T0}, s{S_T0}, {WS_DBG}")
        p.I(f"v_lshlrev_b32 v{V_T}, 2, v{V_L}")
        p.I(f"buffer_store_dword v{V_ST}, v{V_T}, {sr(R_WS)}, s{S_T0} offen")
        p.wait(vm_all=True)

    def dump_regs(self, regs, slot_base, agpr=False):
        p=self.p
        n=len(regs)
        p.I(f"s_lshl_b32 s{S_T0}, s2, 2\ns_add_u32 s{S_T0}, s{S_T0}, s{S_W}\ns_mul_i32 s{S_T0}, s{S_T0}, {n*256}\ns_add_u32 s{S_T0}, s{S_T0}, {slot_base}")
        p.I(f"v_lshlrev_b32 v{V_T}, 2, v{V_L}")
        for i,r in enumerate(regs):
            p.I(f"buffer_store_dword {r}, v{V_T}, {sr(R_WS)}, s{S_T0} offen")
            p.I(f"s_add_u32 s{S_T0}, s{S_T0}, 256")
        p.wait(vm_all=True)

    def finish(self):
        p=self.p
        p.I("s_endpgm")
        for x in self.slow: p.I(x)
        p.I("L_exit:\ns_endpgm\nL_codeend:")

    def text(self):
        items,npad,errs=finalize(self.p)
        for e in errs[:20]: print("ERR",e,file=sys.stderr)
        hdr=open("gated_mix__ssm_conv_s5__glu_gated_geglu__prompt.s.ref").read().split("; Override launch")[0]
        out=hdr+"; @launch grid=(256,1,1) block=(256,1,1) lds=163840\n"
        out+='.amdgcn_target "amdgcn-amd-amdhsa--gfx950"\n.text\n'
        out+=f".globl {KNAME}\n.p2align 8\n.type {KNAME},@function\n{KNAME}:\n"
        out+=emit(items)
        out+=f'''.section .rodata,"a"
.p2align 6
.amdhsa_kernel {KNAME}
  .amdhsa_next_free_vgpr 512
  .amdhsa_next_free_sgpr 102
  .amdhsa_accum_offset 256
  .amdhsa_group_segment_fixed_size 0
  .amdhsa_kernarg_size 136
  .amdhsa_user_sgpr_count 2
  .amdhsa_user_sgpr_kernarg_segment_ptr 1
  .amdhsa_system_sgpr_workgroup_id_x 1
.end_amdhsa_kernel
'''
        self.stats=dict(n=len(items),npad=npad,errs=len(errs))
        return out

def split(L,n):
    k=len(L); return [L[(k*i)//n:(k*(i+1))//n] for i in range(n)]

def build_full(opts=None, stop=None):
    g=Gen(opts=opts); p=g.p; o=g.o
    if o.get("stamps"): p.I(f"v_mov_b32 v{V_ST}, 0")
    p.add(g.stamp(0))
    g.prologue_a()
    ex={}; head={}
    def add(key,items): ex[key]=ex.get(key,[])+list(items)
    def addh(key,items): head[key]=head.get(key,[])+list(items)
    def late():
        G=g.gate_items(); K=g.const_items()
        for key,part in zip([("F",0,0),("F",0,1),("F",0,2),("F",0,3),("S",2,0)],split(G,5)): add(key,part)
        for key,part in zip([("S",2,1),("S",3,0),("S",3,1),("F",1,0)],split(K,4)): add(key,part)
        addh(("F",1,3),[Wait(vm=[g.g_store,g.c_store])])
        add(("F",1,3),g.flag_op("add",[f"s_lshl_b32 s{S_T0}, s{S_C}, 4"],"1"))
    g.late=late
    L1,w1=g.pass1(); n=len(L1)
    def late2():
        add(("F",3,0),L1[:12]); add(("F",3,1),L1[12:12+(n-12)//2]); add(("F",3,2),L1[12+(n-12)//2:])
        addh(("F",3,3),[Wait(lgkm=w1)])
        add(("F",6,0),g.p3_patterns1())
        L2,est=g.exchange()
        for key,part in zip([("F",3,3),("F",4,0),("F",4,1),("F",4,2)],split(L2,4)): add(key,part)
        add(("F",4,3),g.copy_consts())
        add(("F",5,2),[Wait(vm=est)]+g.flag_op("or",[f"s_lshl_b32 s{S_T0}, s{S_J}, 4", f"s_add_u32 s{S_T0}, s{S_T0}, 4", f"s_lshl_b32 s{S_K0}, 1, s{S_C}"],f"s{S_K0}"))
        Lp,tp=g.poll_issue(23,[f"s_lshl_b32 s{S_T0}, s{S_C}, 4", f"s_lshl_b32 s{S_T1}, s{S_C3}, 4"],w0only=True,off2=True)
        add(("F",4,0),Lp)
        addh(("F",4,3),g.poll_check("g",23,tp,[f"s_cmp_eq_u32 s{S_T0}, 16", f"s_cselect_b32 s{S_T1}, s{S_T1}, 0", f"s_cmp_eq_u32 s{S_T1}, 16"],w0only=True,two=True))
        Lg,gt=g.g_loads(); g.gt=gt
        for key,part in zip([("F",4,3),("F",5,0)],split(Lg,2)): add(key,part)
        if o.get("touch_p3",1):
            add(("F",1,0),g.touch_setup_w())
            wk=o.get("tw",[(1,1),(1,2),(2,1),(2,2),(3,1),(3,2),(4,1)]); ck=o.get("tc",[(4,2),(5,0),(5,1),(5,2)])
            for (a_,b_) in wk: add(("F",a_,b_),g.touch_one(R_T))
            add(("F",ck[0][0],ck[0][1]),g.touch_setup_c())
            for (a_,b_) in ck: add(("F",a_,b_),g.touch_one(R_T2))
        add(("F",6,2),g.p3_patterns2())
        Le0,te=g.poll_issue(30,[f"s_lshl_b32 s{S_T0}, s{S_J}, 4", f"s_add_u32 s{S_T0}, s{S_T0}, 4"])
        add(("F",7,0),Le0)
        Le1=g.poll_check("e",30,te,[f"s_lshl_b32 s{S_T1}, 1, s{S_C}", f"s_sub_u32 s{S_T1}, s{S_T1}, 1", f"s_and_b32 s{S_T0}, s{S_T0}, s{S_T1}", f"s_cmp_eq_u32 s{S_T0}, s{S_T1}"])
        Le2,et=g.e_loads(); g.et=et
        g.Le=Le1+Le2
    g.late2=late2
    g.ex=ex; g.extra_head=head; g.end_barrier=True
    if o.get("stamps"):
        def st():
            for key,idx in ((("S",0,0),2),(("F",0,0),3),(("S",2,0),4),(("S",4,0),5),(("S",6,0),6),(("F",4,0),7),(("F",7,3),8)):
                ex[key]=g.stamp(idx)+ex.get(key,[])
            if o.get("fine"):
                k=40
                for ch in range(3,8):
                    for st_ in range(4):
                        head[("F",ch,st_)]=g.stamp(k)+head.get(("F",ch,st_),[]); k+=1
        g.late3=st
    g.phase1(ex)
    p.add(g.stamp(9))
    tok={}
    rA=[]
    for b in range(16):
        L,tok[("f",b)]=g.p3_dma_f(b,b); rA+=L
    for b,slot in ((24,16),(25,17)):
        L,tok[("f",b)]=g.p3_dma_f(b,slot); rA+=L
    pre,tiles,Sf,sf=g.ffn_epilogue(g.gt[:1])
    Ls,ss=g.ssm_epilogue(g.et,g.gt[1:],[mk(f"s_add_u32 s{S_T0}, s{S_RG}, 36864")])
    dtA=o.get("dtA",26)
    ev=[(dtA*i,[x]) for i,x in enumerate(rA)]
    stream=pre+tiles[0]+tiles[1]+tiles[2]+g.Le+tiles[3]+tiles[4]+tiles[5]+tiles[6]
    merged,rest,t=g.merge_time(stream,ev)
    p.I("s_nop 7")
    p.add(merged)
    for _,x in rest: p.add(x)
    if o.get("fine"): p.add(g.stamp(62))
    if o.get("cyc"): p.add(g.stamp(1))
    rdA={}
    for b in range(16):
        if b%4==0: p.wait(vm=tok[("f",b+3)])
        rdA[b]=g.p3_rd_f(b,g.blk_areg(b),True); p.add(rdA[b])
    if o.get("fine"): p.add(g.stamp(63))
    rB=[]
    for b in range(16,24):
        L,tok[("f",b)]=g.p3_dma_f(b,b-16); rB+=([Wait(lgkm=rdA[b-16+3])] if b in (16,20) else [])+L
    for k in (4,5,6,7):
        L,tok[("c",k)]=g.p3_dma_c(k); rB+=[Wait(lgkm=rdA[2*k]+rdA[2*k+1])]+L
    ev=[(o.get("tB0",0)+o.get("dtB",16)*i,[x]) for i,x in enumerate(rB)]+[(o.get("tS0",0)+o.get("dtS",100)*i,x) for i,x in enumerate(Sf)]
    ev.sort(key=lambda e:e[0])
    merged,rest,t=g.merge_time(Ls,ev)
    out=[]; pend=[x for _,xs in rest for x in xs]
    for it in merged:
        if it in ss and pend:
            pass
        out.append(it)
    assert not any(x in pend for xs in Sf for x in xs), "FFN stores not flushed before SSM stores"
    p.add(out); p.add(pend)
    p.add(g.stamp(10))
    p.wait(vm=sf+ss); p.add(g.stamp(11)); p.I("s_barrier")
    p.add(g.flag_op("add",[f"s_lshl_b32 s{S_T0}, s{S_C}, 7", f"s_add_u32 s{S_T0}, s{S_T0}, {WS_CNT}", f"s_lshr_b32 s{S_K0}, s{S_J}, 2", f"s_lshl_b32 s{S_K0}, s{S_K0}, 3", f"s_lshl_b32 s{S_K0}, 1, s{S_K0}"],f"s{S_K0}",R=R_WS))
    Lq,tq=g.poll_issue(30,[f"s_lshl_b32 s{S_T0}, s{S_C3}, 7", f"s_add_u32 s{S_T0}, s{S_T0}, {WS_CNT}"],R=R_WS)
    if o.get("fine"): p.add(g.stamp(60))
    p.wait(vm=tok[("c",7)])
    rd=[]
    for b in range(16,24):
        r=g.p3_rd_f(b-16,g.blk_areg(b),True); rd.append(r); p.add(r)
    for k in range(4):
        L,tok[("c",k)]=g.p3_dma_c(k); p.wait(lgkm=rd[2*k]+rd[2*k+1]); p.add(L)
    if o.get("fine"): p.add(g.stamp(61))
    p.wait(lgkm=g.t_reads)
    for b,slot in ((26,18),(27,19)):
        L,tok[("f",b)]=g.p3_dma_f(b,slot); p.add(L)
    p.add(Lq)
    p.add(g.a_base())
    p.add(g.poll_check("a",30,tq,[f"s_lshl_b32 s{S_T1}, s{S_W}, 3", f"s_lshr_b32 s{S_T0}, s{S_T0}, s{S_T1}", f"s_and_b32 s{S_T0}, s{S_T0}, 0xff", f"s_cmp_eq_u32 s{S_T0}, 4"],R=R_WS,sleep=0))
    p.add(g.stamp(12))
    g.phase3(tok)
    p.add(g.stamp(13))
    g.final()
    p.add(g.stamp(14))
    if o.get("stamps"): p.wait(vm_all=True)
    p.add(g.stamp(15))
    g.dump_stamps()
    g.finish()
    return g

if __name__=="__main__":
    opts=eval(sys.argv[2]) if len(sys.argv)>2 else {}
    g=build_full(opts=opts); t=g.text(); open(sys.argv[1] if len(sys.argv)>1 else "full.s","w").write(t); print(g.stats)
```

```python
import sys
from asmb import *

KNAME="gated_mix__ssm_conv_s5__glu_gated_geglu__prompt_kernel"

WS_A=0; WS_E=0xB00000; WS_G=0xB10000; WS_CNT=0xB18000; WS_DBG=0xB20000; WS_SIZE=0x4000000
OOB=0x7ff00000
WSLOT=28928; WUP=14464
L_W=0; L_B=86784; L_X=119552; L_EX=152320; L_GL=154368
P_X,P_LRE,P_LIM,P_BRE,P_BIM,P_CRE,P_CIM,P_LDT=4,6,8,10,12,14,16,18
P_DSK,P_BX,P_WG,P_WU,P_WD,P_GW,P_OUT,P_DBG=20,22,24,26,28,30,32,34
P_WS=36
S_C,S_J,S_W,S_C3,S_RH,S_CB=38,39,40,41,42,43
R_X,R_B,R_W,R_WS,R_DBG,R_T,R_T2=44,48,52,56,60,64,68
S_XO,S_BO,S_WO=72,73,74
S_XROW,S_BROW,S_WROW=75,76,77
S_XM,S_BM,S_WM=78,79,80
S_T0,S_T1,S_T2,S_T3=81,82,83,84
S_GT=85
S_M0=86
S_CNT=88
S_K0=89
S_AO=91
V_AO=22
S_RG,S_FO,S_CO=92,93,94
S_TB,S_PO=95,3
S_A0=96
S_R0,S_D0=98,99
REGION=40960
V_FD=232
V_CD=234
V_FR=238
V_CR=[240,241,242,243]
V_OO=23
V_ST=247
A_JUNK=250
V_TCH=246
S_TW=95
S_CO1=95
V_JUNK=24
S_G0=64
A_P3=64
A_KS=48
V_TID,V_L=0,1
V_XG=2
V_BG=6
V_WG=8
V_WA,V_WB=15,16
V_BA=17
V_XA=21
V_T=25
V_ACC=32
V_SRE,V_SIM=144,160
V_WF=176
V_BF=232
V_U=248
A_X=0
A_BF=128
A_K=160

def srd(p, reg, ptr, size):
    p.I(f"s_mov_b32 s{reg}, s{ptr}\ns_mov_b32 s{reg+1}, s{ptr+1}\ns_mov_b32 s{reg+2}, {size}\ns_mov_b32 s{reg+3}, 0x20000")

def sr(r): return f"s[{r}:{r+3}]"
def vr(r,n): return f"v[{r}:{r+n-1}]" if n>1 else f"v{r}"
def ar(r,n): return f"a[{r}:{r+n-1}]" if n>1 else f"a{r}"

class Gen:
    def __init__(self, stop_after=None, opts=None):
        self.p=Prog(); self.stop=stop_after; self.o=opts or {}; self.slow=[]
    def prologue_a(self):
        p=self.p
        p.I("s_cmp_ge_u32 s2, 256\ns_cbranch_scc1 L_exit")
        p.I("s_load_dwordx16 s[4:19], s[0:1], 0"); p.I("s_load_dwordx16 s[20:35], s[0:1], 64"); p.I("s_load_dwordx2 s[36:37], s[0:1], 128")
        p.I(f"v_and_b32 v{V_L}, 63, v0\nv_lshrrev_b32 v{V_T}, 6, v0")
        p.I(f"s_lshr_b32 s{S_C}, s2, 4\ns_and_b32 s{S_J}, s2, 15")
        p.I(f"v_readfirstlane_b32 s{S_W}, v{V_T}")
        l=f"v{V_L}"; T=V_T
        p.I(f"v_lshrrev_b32 v{T}, 5, {l}\nv_lshlrev_b32 v{T}, 4, v{T}\nv_bfe_u32 v{T+1}, {l}, 3, 1\nv_lshl_add_u32 v{T}, v{T+1}, 3, v{T}\nv_bfe_u32 v{T+1}, {l}, 4, 1\nv_add_u32 v{T}, v{T}, v{T+1}\nv_lshlrev_b32 v{T}, 10, v{T}")
        p.I(f"v_and_b32 v{T+1}, 7, {l}\nv_lshrrev_b32 v{T+2}, 4, {l}\nv_xor_b32 v{T+3}, v{T+1}, v{T+2}\nv_xor_b32 v{T+4}, 4, v{T+3}")
        p.I(f"v_lshlrev_b32 v{T+3}, 4, v{T+3}\nv_lshlrev_b32 v{T+4}, 4, v{T+4}")
        for q in range(4):
            p.I(f"v_add_u32 v{V_XG+q}, v{T}, v{T+3+(q&1)}")
            if q: p.I(f"v_add_u32 v{V_XG+q}, {1024*q}, v{V_XG+q}")
        p.I(f"v_lshrrev_b32 v{T}, 3, {l}\nv_lshlrev_b32 v{T}, 10, v{T}")
        p.I(f"v_add_u32 v{V_BG}, v{T}, v{T+3}\nv_add_u32 v{V_BG+1}, v{T}, v{T+4}\nv_add_u32 v{V_BG+1}, {7*1024}, v{V_BG+1}")
        p.I(f"s_lshl_b32 s{S_T0}, s{S_W}, 12\ns_add_u32 s{S_XM}, s{S_T0}, {L_X}")
        p.I(f"s_lshl_b32 s{S_T1}, s{S_C}, 2\ns_add_u32 s{S_T1}, s{S_T1}, s{S_W}\ns_lshl_b32 s{S_XROW}, s{S_T1}, 15")
        p.I(f"s_and_b32 s{S_T1}, s{S_W}, 1\ns_lshr_b32 s{S_T2}, s{S_W}, 1")
        p.I(f"s_lshl_b32 s{S_T3}, s{S_J}, 1\ns_add_u32 s{S_T3}, s{S_T3}, s{S_T1}\ns_lshl_b32 s{S_BROW}, s{S_T3}, 14")
        p.I(f"s_lshl_b32 s{S_BM}, s{S_T2}, 12\ns_lshl_b32 s{S_T3}, s{S_T1}, 11\ns_add_u32 s{S_BM}, s{S_BM}, s{S_T3}\ns_add_u32 s{S_BM}, s{S_BM}, {L_B}")
        p.I(f"s_mul_i32 s{S_WROW}, s{S_T1}, {32*3584}\ns_mul_i32 s{S_T3}, s{S_J}, 224\ns_add_u32 s{S_WROW}, s{S_WROW}, s{S_T3}")
        p.I(f"s_mul_i32 s{S_WM}, s{S_T2}, {WUP}\ns_mul_i32 s{S_T3}, s{S_T1}, 7168\ns_add_u32 s{S_WM}, s{S_WM}, s{S_T3}")
        p.wait(lgkm_all=True)
        srd(p,R_X,P_X,2048*1024)
        p.I(f"s_cmp_eq_u32 s{S_T2}, 0")
        p.I(f"s_cselect_b32 s{R_B}, s{P_BRE}, s{P_BIM}\ns_cselect_b32 s{R_B+1}, s{P_BRE+1}, s{P_BIM+1}\ns_mov_b32 s{R_B+2}, {512*1024}\ns_mov_b32 s{R_B+3}, 0x20000")
        p.I(f"s_cselect_b32 s{R_W}, s{P_WG}, s{P_WU}\ns_cselect_b32 s{R_W+1}, s{P_WG+1}, s{P_WU+1}\ns_mov_b32 s{R_W+2}, {512*3584}\ns_mov_b32 s{R_W+3}, 0x20000")
    def prologue_b(self):
        p=self.p; l=f"v{V_L}"; T=V_T
        p.I(f"s_mov_b32 s{S_T0}, 4682\ns_mov_b32 s{S_T1}, 3584")
        for i in range(7):
            p.I(f"v_add_u32 v{T}, {64*i}, {l}\nv_mul_lo_u32 v{T+1}, v{T}, s{S_T0}\nv_lshrrev_b32 v{T+1}, 16, v{T+1}")
            p.I(f"v_mul_u32_u24 v{T+2}, 14, v{T+1}\nv_sub_u32 v{T+2}, v{T}, v{T+2}\nv_lshlrev_b32 v{T+2}, 4, v{T+2}")
            p.I(f"v_mul_lo_u32 v{T+1}, v{T+1}, s{S_T1}\nv_add_u32 v{V_WG+i}, v{T+1}, v{T+2}")
            if i&3: p.I(f"v_subrev_u32 v{V_WG+i}, {1024*(i&3)}, v{V_WG+i}")
    def prologue_c(self):
        p=self.p; l=f"v{V_L}"; T=V_T
        p.I(f"v_lshrrev_b32 v{T}, 5, {l}\nv_lshlrev_b32 v{T}, 3, v{T}\nv_bfe_u32 v{T+1}, {l}, 2, 2\nv_add_u32 v{T}, v{T}, v{T+1}\nv_mul_u32_u24 v{T}, 224, v{T}")
        p.I(f"v_bfe_u32 v{T+1}, {l}, 1, 1\nv_mul_u32_u24 v{T+1}, {WUP}, v{T+1}\nv_add_u32 v{T}, v{T}, v{T+1}")
        p.I(f"v_bfe_u32 v{T+1}, {l}, 4, 1\nv_lshlrev_b32 v{T+1}, 4, v{T+1}\nv_add_u32 v{T}, v{T}, v{T+1}")
        p.I(f"v_and_b32 v{T+1}, 1, {l}\nv_lshlrev_b32 v{T+1}, 3, v{T+1}\nv_add_u32 v{V_WA}, v{T}, v{T+1}\nv_add_u32 v{V_WB}, {2*WSLOT}, v{V_WA}")
        p.I(f"v_and_b32 v{T}, 31, {l}\nv_lshlrev_b32 v{T+1}, 7, v{T}\nv_bfe_u32 v{T+2}, {l}, 1, 3\nv_lshrrev_b32 v{T+3}, 5, {l}\nv_xor_b32 v{T+2}, v{T+2}, v{T+3}")
        p.I(f"s_lshl_b32 s{S_T0}, s{S_W}, 12\ns_add_u32 s{S_T0}, s{S_T0}, {L_X}")
        for s in range(4):
            p.I(f"v_xor_b32 v{T+3}, {2*s}, v{T+2}\nv_lshlrev_b32 v{T+3}, 4, v{T+3}\nv_add_u32 v{T+3}, v{T+1}, v{T+3}\nv_add_u32 v{V_BA+s}, {L_B}, v{T+3}\nv_add_u32 v{V_XA+s}, s{S_T0}, v{T+3}")
        srd(p,R_WS,P_WS,WS_SIZE); srd(p,R_DBG,P_DBG,256)
        p.I(f"s_lshr_b32 s{S_T0}, s2, 6\ns_lshl_b32 s{S_T0}, s{S_T0}, 2\ns_bfe_u32 s{S_T1}, s2, 0x20001\ns_add_u32 s{S_C3}, s{S_T0}, s{S_T1}")
        p.I(f"s_and_b32 s{S_RH}, s2, 1\ns_bfe_u32 s{S_CB}, s2, 0x30003")

    def dma_x(self, ch):
        slot=ch&1
        L=[mk(f"s_add_u32 m0, s{S_XM}, {slot*16384}"), mk(f"s_add_u32 s{S_XO}, s{S_XROW}, {ch*128}")]
        toks=[mk(f"buffer_load_dwordx4 v{V_XG+q}, {sr(R_X)}, s{S_XO} offen offset:{1024*q} lds") for q in range(4)]
        return L+toks, toks
    def dma_b(self, ch):
        slot=(ch>>1)&1
        L=[mk(f"s_add_u32 m0, s{S_BM}, {slot*16384+(ch&1)*8192}"), mk(f"s_add_u32 s{S_BO}, s{S_BROW}, {ch*128}")]
        toks=[mk(f"buffer_load_dwordx4 v{V_BG+i}, {sr(R_B)}, s{S_BO} offen offset:{1024*i} lds") for i in range(2)]
        return L+toks, toks
    def dma_w(self, ch):
        slot=ch%3
        L=[mk(f"s_add_u32 m0, s{S_WM}, {slot*WSLOT}"), mk(f"s_add_u32 s{S_WO}, s{S_WROW}, {ch*64*3584}")]
        toks=[]
        for i in range(7):
            if i==4: L.append(mk(f"s_add_u32 m0, s{S_WM}, {slot*WSLOT+4096}"))
            t=mk(f"buffer_load_dwordx4 v{V_WG+i}, {sr(R_W)}, s{S_WO} offen offset:{1024*(i&3)} lds"); toks.append(t); L.append(t)
        return L,toks
    def rd_x(self, ch):
        return [mk(f"ds_read_b128 {ar(A_X+16*ch+4*s,4)}, v{V_XA+s} offset:{(ch&1)*16384}") for s in range(4)]
    def rd_b(self, ch, d, bset):
        base=((ch>>1)&1)*16384+(ch&1)*8192
        L=[]
        for e in range(2):
            for m in range(2):
                L.append(mk(f"ds_read_b128 {ar(A_BF+16*bset+8*e+4*m,4)}, v{V_BA+2*d+e} offset:{base+4096*m}"))
        return L
    def rd_w(self, ch, s, wset):
        slot=ch%3; va=V_WB if slot==2 else V_WA; base=0 if slot==2 else slot*WSLOT
        L=[]
        for i in range(7):
            for q in range(2):
                d=V_WF+28*wset+4*i+2*q
                L.append(mk(f"ds_read_b64_tr_b16 {vr(d,2)}, v{va} offset:{base+(16*s+4*q)*224+32*i}"))
        return L
    def mf_s(self, ch, d, bset):
        L=[]
        for e in range(2):
            s=2*d+e
            x=ar(A_X+16*ch+4*s,4)
            first=(ch==0 and s==0)
            for m,a in enumerate((V_SRE,V_SIM)):
                L.append(mk(f"v_mfma_f32_32x32x16_bf16 {vr(a,16)}, {x}, {ar(A_BF+16*bset+8*e+4*m,4)}, {'0' if first else vr(a,16)}"))
        return L
    def mf_f(self, ch, s, wset):
        x=ar(A_X+16*ch+4*s,4)
        first=(ch==0 and s==0)
        return [mk(f"v_mfma_f32_32x32x16_bf16 {vr(V_ACC+16*i,16)}, {vr(V_WF+28*wset+4*i,4)}, {x}, {'0' if first else vr(V_ACC+16*i,16)}") for i in range(7)]

    def phase1(self, extra):
        p=self.p
        X={};B={};W={}
        def issue(lst):
            for kind,ch in lst:
                L,t={"x":self.dma_x,"b":self.dma_b,"w":self.dma_w}[kind](ch); p.add(L); {"x":X,"b":B,"w":W}[kind][ch]=t
        fs=lambda i: p.add(self.stamp(i)) if self.o.get("fine") else None
        fs(32)
        if self.o.get("touch_w",0): p.add(self.touch_w())
        issue([("x",0),("b",0)]); fs(33)
        self.small_loads()
        issue([("x",1),("b",1)]); fs(34)
        self.prologue_b(); fs(35)
        issue([("w",0)])
        if self.o.get("touch_x",0): p.add(self.touch_x())
        if not self.o.get("nocodepf"): self.code_prefetch()
        fs(36)
        self.prologue_c()
        self.late(); self.late2()
        if hasattr(self,"late3"): self.late3()
        if not self.o.get("cyc"): p.add(self.stamp(1))
        steps=[]
        for g in range(4):
            for ch in (2*g,2*g+1):
                for d in range(2): steps.append(("S",ch,d))
            for s in range(4): steps.append(("F",g,s))
        for ch in range(4,8):
            for s in range(4): steps.append(("F",ch,s))
        setof={}; cnt={"S":0,"F":0}
        for st in steps:
            setof[st]=cnt[st[0]]&1; cnt[st[0]]+=1
        reads={}
        for st in steps:
            k,ch,s=st
            reads[st]=self.rd_b(ch,s,setof[st]) if k=="S" else self.rd_w(ch,s,setof[st])
        xr={ch:self.rd_x(ch) for ch in range(8)}
        rfill={st:[] for st in steps}
        fill={st:[] for st in steps}
        head={st:[] for st in steps}
        for i,st in enumerate(steps[:-1]):
            nx=steps[i+1]
            if st[0]=="S" and nx[0]=="F":
                rfill[steps[i-1]]+=reads[nx][:6]; rfill[st]+=reads[nx][6:]
            else: rfill[st]=reads[nx]+rfill[st]
        p.wait(vm=X[0]+B[0]); p.I("s_barrier")
        p.add(xr[0][0:2]); p.add(reads[steps[0]][:2]); p.add(xr[0][2:]); p.add(reads[steps[0]][2:])
        L,B[2]=self.dma_b(2); fill[("S",0,0)]+=L
        L,B[3]=self.dma_b(3); fill[("S",1,0)]+=L
        L,W[1]=self.dma_w(1); fill[("S",1,1)]+=L[:6]; w1b=L[6:]
        head[("S",0,1)]+=[Wait(vm=X[1]+B[1]), mk("s_barrier")]
        rfill[("S",0,1)]=xr[1][0:2]+rfill[("S",0,1)]+xr[1][2:]
        L,X[2]=self.dma_x(2); fill[("S",0,1)]+=[Wait(lgkm=xr[0])]+L
        L,X[3]=self.dma_x(3); fill[("S",1,1)]+=[Wait(lgkm=xr[1])]+L
        head[("S",1,0)]+=[Wait(vm=W[0]), mk("s_barrier")]
        fill[("F",0,0)]+=w1b
        L,W[2]=self.dma_w(2); fill[("F",0,1)]+=L[:6]; fill[("F",0,2)]+=L[6:]
        for g in range(1,4):
            a,b=2*g,2*g+1
            rfill[("F",g-1,1)]+=[Wait(vm=X[a]+X[b])]+xr[a]+xr[b]
            last=("F",g-1,3)
            head[last]+=[Wait(vm=B[a]+B[b]+W[g], lgkm=reads[last]+xr[a]+xr[b]), mk("s_barrier")]
            if g<3:
                L,X[a+2]=self.dma_x(a+2); fill[last]+=L
                L,X[b+2]=self.dma_x(b+2); fill[("S",a,0)]+=L
                L,B[a+2]=self.dma_b(a+2); fill[("S",a,1)]+=L
                L,B[b+2]=self.dma_b(b+2); fill[("S",b,0)]+=L
            L,W[g+2]=self.dma_w(g+2); fill[("F",g,0)]+=L
        for ch in range(4,8):
            last=("F",ch-1,3)
            head[last]+=[Wait(vm=W[ch], lgkm=reads[last]), mk("s_barrier")]
            if ch+2<8:
                L,W[ch+2]=self.dma_w(ch+2); fill[last]+=L[:6]; fill[("F",ch,0)]+=L[6:]
        for k,v in getattr(self,"extra_head",{}).items(): head[k]=list(v)+head[k]
        if getattr(self,"end_barrier",False):
            last=("F",7,3); head[last]+=[Wait(lgkm=reads[last]), mk("s_barrier")]
        self.steps=steps
        for k,v in extra.items():
            assert k in fill, k
            fill[k]+=v
        for st in steps:
            k,ch,s=st
            mf=self.mf_s(ch,s,setof[st]) if k=="S" else self.mf_f(ch,s,setof[st])
            p.add(head[st])
            r=reads[st]; n=len(mf)
            slots=[[] for _ in range(n)]
            rf=rfill[st]; per=max(3 if k=="F" else 2, -(-len(rf)//n))
            for t,it in enumerate(rf): slots[min(t//per,n-1)].append(it)
            f=fill[st]
            for t,it in enumerate(f): slots[min((t*n)//max(len(f),1),n-1)].append(it)
            for m,ins in enumerate(mf):
                if k=="S":
                    if m==0: p.wait(lgkm=r[0:2]+[xr[ch][2*s]])
                    if m==2: p.wait(lgkm=r[2:4]+[xr[ch][2*s+1]])
                else:
                    if m==0: p.wait(lgkm=r[0:6]+[xr[ch][s]])
                    if m==3: p.wait(lgkm=r[6:14])
                p.add(ins)
                p.add(slots[m])

    LOG2E=1.4426950408889634
    def fconst(self, sreg, val):
        import struct
        return f"s_mov_b32 s{sreg}, 0x{struct.unpack('<I',struct.pack('<f',val))[0]:08x}"

    def small_loads(self):
        p=self.p; l=f"v{V_L}"
        srd(p,R_T,P_GW,1024)
        p.I(f"v_lshlrev_b32 v{V_AO}, 4, {l}")
        p.I(f"s_lshl_b32 s{S_T0}, s{S_C}, 7\ns_lshl_b32 s{S_T1}, s{S_J}, 3\ns_add_u32 s{S_T0}, s{S_T0}, s{S_T1}\ns_lshl_b32 s{S_T1}, s{S_W}, 1\ns_add_u32 s{S_GT}, s{S_T0}, s{S_T1}")
        p.I(f"s_lshl_b32 s{S_T0}, s{S_GT}, 10")
        X0,X1,GW=232,236,240
        self.gl=[p.I(f"buffer_load_dwordx4 {vr(X0,4)}, v{V_AO}, {sr(R_X)}, s{S_T0} offen"),
                 p.I(f"buffer_load_dwordx4 {vr(X1,4)}, v{V_AO}, {sr(R_X)}, s{S_T0} offen offset:1024"),
                 p.I(f"buffer_load_dwordx4 {vr(GW,4)}, v{V_AO}, {sr(R_T)}, 0 offen")]
        p.I(f"v_and_b32 v{V_T}, 31, {l}\ns_lshl_b32 s{S_T1}, s{S_J}, 6\nv_lshlrev_b32 v{V_T}, 1, v{V_T}\nv_add_u32 v{V_T}, s{S_T1}, v{V_T}")
        self.kl=[]
        for i,ptr in enumerate((P_LRE,P_LIM,P_LDT)):
            srd(p,R_T2,ptr,1024)
            self.kl.append(p.I(f"buffer_load_ushort v{244+i}, v{V_T}, {sr(R_T2)}, 0 offen"))

    def gate_items(self):
        l=f"v{V_L}"; L=[]; A=lambda x: L.append(mk(x))
        X0,X1,GW=232,236,240
        A0,A1=248,249; u=250
        L.append(Wait(vm=self.gl))
        for i in range(4):
            A(f"v_lshlrev_b32 v{u+2}, 16, v{GW+i}"); A(f"v_and_b32 v{u+3}, 0xffff0000, v{GW+i}")
            for X,Ac in ((X0,A0),(X1,A1)):
                A(f"v_lshlrev_b32 v{u}, 16, v{X+i}"); A(f"v_and_b32 v{u+1}, 0xffff0000, v{X+i}"); A(f"v_mul_f32 v{u}, v{u}, v{u+2}"); A(f"v_mul_f32 v{u+1}, v{u+1}, v{u+3}")
                A(f"v_cvt_pk_bf16_f32 v{X+i}, v{u}, v{u+1}"); A(f"v_lshlrev_b32 v{u}, 16, v{X+i}"); A(f"v_and_b32 v{u+1}, 0xffff0000, v{X+i}")
                if i==0: A(f"v_add_f32 v{Ac}, v{u}, v{u+1}")
                else: A(f"v_add_f32 v{Ac}, v{Ac}, v{u}"); A(f"v_add_f32 v{Ac}, v{Ac}, v{u+1}")
        for sh in (8,4,2,1):
            for Ac in (A0,A1): A(f"v_add_f32_dpp v{Ac}, v{Ac}, v{Ac} row_ror:{sh} row_mask:0xf bank_mask:0xf")
        for Ac,sb in ((A0,S_G0),(A1,S_G0+4)):
            for q in range(4): A(f"v_readlane_b32 s{sb+q}, v{Ac}, {16*q}")
        for Ac,sb in ((A0,S_G0),(A1,S_G0+4)):
            A(f"v_mov_b32 v{Ac}, s{sb}"); A(f"v_add_f32 v{Ac}, s{sb+1}, v{Ac}"); A(f"v_add_f32 v{Ac}, s{sb+2}, v{Ac}"); A(f"v_add_f32 v{Ac}, s{sb+3}, v{Ac}")
        A(f"v_cmp_eq_u32 vcc, 1, {l}"); A(f"v_cndmask_b32 v{A0}, v{A0}, v{A1}, vcc")
        A(f"v_cvt_pk_bf16_f32 v{A0}, v{A0}, v{A0}"); A(f"v_lshlrev_b32 v{A0}, 16, v{A0}")
        A(self.fconst(S_G0,-self.LOG2E))
        A(f"v_mul_f32 v{A0}, s{S_G0}, v{A0}"); A(f"v_exp_f32 v{A0}, v{A0}"); A(f"v_add_f32 v{A0}, 1.0, v{A0}"); A(f"v_rcp_f32 v{A0}, v{A0}")
        A(f"v_cvt_pk_bf16_f32 v{A0}, v{A0}, v{A0}"); A(f"v_lshlrev_b32 v{A0}, 16, v{A0}")
        A(f"v_lshlrev_b32 v{u}, 3, {l}"); A(f"s_lshl_b32 s{S_G0}, s{S_C}, 7"); A(f"s_lshr_b32 s{S_G0+1}, s{S_J}, 1"); A(f"s_lshl_b32 s{S_G0+1}, s{S_G0+1}, 4"); A(f"s_add_u32 s{S_G0}, s{S_G0}, s{S_G0+1}")
        A(f"s_lshl_b32 s{S_G0+1}, s{S_W}, 2"); A(f"s_add_u32 s{S_G0}, s{S_G0}, s{S_G0+1}"); A(f"s_and_b32 s{S_G0+1}, s{S_J}, 1"); A(f"s_add_u32 s{S_G0}, s{S_G0}, s{S_G0+1}")
        A(f"s_lshl_b32 s{S_G0}, s{S_G0}, 2"); A(f"s_add_u32 s{S_G0}, s{S_G0}, {WS_G}"); A(f"v_add_u32 v{u}, s{S_G0}, v{u}")
        A(f"v_mov_b32 v{u+1}, {OOB}"); A(f"v_cmp_gt_u32 vcc, 2, {l}"); A(f"v_cndmask_b32 v{u}, v{u+1}, v{u}, vcc")
        A(f"buffer_store_dword v{A0}, v{u}, {sr(R_WS)}, 0 offen sc1"); self.g_store=L[-1]
        A(f"s_lshl_b32 s{S_G0}, s{S_C}, 7"); A(f"s_add_u32 s{S_G0}, s{S_G0}, {WS_CNT}"); A(f"s_or_b32 s{S_G0+1}, s{S_J}, s{S_W}"); A(f"s_cmp_eq_u32 s{S_G0+1}, 0"); A(f"s_cselect_b32 s{S_G0}, s{S_G0}, {OOB}")
        A(f"v_mov_b32 v{u}, {OOB}"); A(f"v_mov_b32 v{u+1}, s{S_G0}"); A(f"v_cmp_eq_u32 vcc, 0, {l}"); A(f"v_cndmask_b32 v{u}, v{u}, v{u+1}, vcc"); A(f"v_mov_b32 v{u+1}, 0")
        if self.o.get("clr_atomic",0): A(f"buffer_atomic_and v{u+1}, v{u}, {sr(R_WS)}, 0 offen sc1")
        else: A(f"buffer_store_dword v{u+1}, v{u}, {sr(R_WS)}, 0 offen sc1")
        self.c_store=L[-1]
        return L

    def const_items(self):
        l=f"v{V_L}"; L=[]; A=lambda x: L.append(mk(x))
        LR,LI,DT=244,245,246
        AE,AN,SG,M,AG=232,233,234,235,236
        R=238
        C,S=238,239
        L.append(Wait(vm=self.kl))
        A(f"v_lshlrev_b32 v{LR}, 16, v{LR}"); A(f"v_lshlrev_b32 v{LI}, 16, v{LI}"); A(f"v_lshlrev_b32 v{DT}, 16, v{DT}")
        A(self.fconst(S_G0,self.LOG2E)); A(self.fconst(S_G0+1,0.15915494309189535)); A(self.fconst(S_G0+2,16.0)); A(self.fconst(S_G0+3,128.0))
        A(f"v_mul_f32 v{DT}, s{S_G0}, v{DT}"); A(f"v_exp_f32 v{DT}, v{DT}"); A(f"v_lshrrev_b32 v{SG}, 5, {l}"); A(f"v_cvt_pk_bf16_f32 v{DT}, v{DT}, v{DT}"); A(f"v_lshlrev_b32 v{DT}, 16, v{DT}")
        A(f"v_mul_f32 v{AE}, v{DT}, v{LR}"); A(f"v_mul_f32 v{AN}, v{DT}, v{LI}"); A(f"v_mul_f32 v{AE}, s{S_G0}, v{AE}"); A(f"v_mul_f32 v{AN}, s{S_G0+1}, v{AN}")
        A(f"s_lshl_b32 s{S_G0+4}, s{S_W}, 1"); A(f"v_add_u32 v{SG}, s{S_G0+4}, v{SG}"); A(f"v_lshlrev_b32 v{SG}, 4, v{SG}"); A(f"v_cvt_f32_u32 v{SG}, v{SG}")
        def cexp(k, mul, keep=None):
            if mul is None: A(f"v_mov_b32 v{M}, v{AE}"); A(f"v_mov_b32 v{AG}, v{AN}")
            else: A(f"v_mul_f32 v{M}, {mul}, v{AE}"); A(f"v_mul_f32 v{AG}, {mul}, v{AN}")
            A(f"v_exp_f32 v{M}, v{M}"); A(f"v_fract_f32 v{AG}, v{AG}"); A(f"v_cos_f32 v{C}, v{AG}"); A(f"v_sin_f32 v{S}, v{AG}"); A("s_nop 0")
            A(f"v_mul_f32 v{C}, v{M}, v{C}"); A(f"v_mul_f32 v{S}, v{M}, v{S}")
            A(f"v_accvgpr_write_b32 a{A_K+k}, v{C}"); A(f"v_accvgpr_write_b32 a{A_K+k+1}, v{S}")
        A(self.fconst(S_G0+5,8.0))
        cexp(2,f"s{S_G0+2}"); cexp(4,f"s{S_G0+3}"); cexp(6,f"v{SG}"); cexp(12,f"s{S_G0+5}"); cexp(0,None)
        NR,DEN,u2=235,236,240
        A(f"v_add_f32 v{NR}, -1.0, v{C}"); A(f"v_mul_f32 v{DEN}, v{LR}, v{LR}"); A(f"v_fmac_f32 v{DEN}, v{LI}, v{LI}"); A(f"v_rcp_f32 v{DEN}, v{DEN}")
        A(f"v_mul_f32 v{u2}, v{NR}, v{LR}"); A(f"v_fmac_f32 v{u2}, v{S}, v{LI}"); A(f"v_mul_f32 v{u2+1}, v{S}, v{LR}"); A(f"v_fma_f32 v{u2+1}, -v{NR}, v{LI}, v{u2+1}")
        A(f"v_add_f32 v{DEN}, v{DEN}, v{DEN}"); A(f"v_mul_f32 v{u2}, v{u2}, v{DEN}"); A(f"v_mul_f32 v{u2+1}, v{u2+1}, v{DEN}")
        A(f"v_accvgpr_write_b32 a{A_K+8}, v{u2}"); A(f"v_accvgpr_write_b32 a{A_K+9}, v{u2+1}")
        return L

    def touch(self, items_addr, R, soff, vreg):
        return items_addr+[mk(f"buffer_load_dword a{A_JUNK}, v{vreg}, {sr(R)}, {soff} offen")]
    def touch_w(self):
        l=f"v{V_L}"; a,b=V_T,V_T+1; L=[]; A=lambda x: L.append(mk(x))
        A(f"v_lshrrev_b32 v{a}, 2, {l}"); A(f"v_mul_u32_u24 v{a}, 3584, v{a}"); A(f"v_and_b32 v{b}, 3, {l}"); A(f"v_lshlrev_b32 v{b}, 7, v{b}"); A(f"v_add_u32 v{a}, v{a}, v{b}")
        A(f"s_lshl_b32 s{S_T0}, s{S_C}, 1"); A(f"s_and_b32 s{S_T1}, s{S_W}, 1"); A(f"s_add_u32 s{S_T0}, s{S_T0}, s{S_T1}"); A(f"s_mul_i32 s{S_T0}, s{S_T0}, {16*3584}")
        A(f"s_mul_i32 s{S_T1}, s{S_J}, 224"); A(f"s_and_b32 s{S_T1}, s{S_T1}, 0xffffff80"); A(f"s_add_u32 s{S_T0}, s{S_T0}, s{S_T1}")
        A(f"buffer_load_dword a{A_JUNK}, v{a}, {sr(R_W)}, s{S_T0} offen")
        A(f"v_and_b32 v{a}, 7, {l}"); A(f"v_lshlrev_b32 v{a}, 7, v{a}")
        A(f"s_lshl_b32 s{S_T0}, s{S_J}, 4"); A(f"s_add_u32 s{S_T0}, s{S_T0}, s{S_C}"); A(f"s_lshl_b32 s{S_T0}, s{S_T0}, 1"); A(f"s_and_b32 s{S_T1}, s{S_W}, 1"); A(f"s_add_u32 s{S_T0}, s{S_T0}, s{S_T1}"); A(f"s_lshl_b32 s{S_T0}, s{S_T0}, 10")
        A(f"buffer_load_dword a{A_JUNK}, v{a}, {sr(R_B)}, s{S_T0} offen")
        return L
    def touch_x(self):
        l=f"v{V_L}"; a,b=V_T,V_T+1; L=[]; A=lambda x: L.append(mk(x))
        A(f"v_and_b32 v{a}, 31, {l}"); A(f"v_lshlrev_b32 v{a}, 10, v{a}"); A(f"v_lshrrev_b32 v{b}, 5, {l}"); A(f"v_lshlrev_b32 v{b}, 7, v{b}"); A(f"v_add_u32 v{a}, v{a}, v{b}")
        A(f"s_lshr_b32 s{S_T0}, s{S_J}, 3"); A(f"s_mul_i32 s{S_T0}, s{S_T0}, 384"); A(f"s_add_u32 s{S_T0}, s{S_T0}, 256"); A(f"s_add_u32 s{S_T0}, s{S_T0}, s{S_XROW}")
        A(f"buffer_load_dword a{A_JUNK}, v{a}, {sr(R_X)}, s{S_T0} offen")
        A(f"v_and_b32 v{a}, 31, {l}"); A(f"v_lshlrev_b32 v{a}, 10, v{a}"); A(f"v_mov_b32 v{b}, {OOB}"); A(f"v_cmp_gt_u32 vcc, 32, {l}"); A(f"v_cndmask_b32 v{a}, v{b}, v{a}, vcc")
        A(f"buffer_load_dword a{A_JUNK}, v{a}, {sr(R_X)}, s{S_T0} offen offset:256")
        return L
    def touch_setup_w(self):
        l=f"v{V_L}"; L=[]; A=lambda x: L.append(mk(x))
        A(f"v_lshlrev_b32 v{V_TCH}, 7, {l}"); A(f"v_mov_b32 v{V_T}, {OOB}"); A(f"v_cmp_gt_u32 vcc, 16, {l}"); A(f"v_cndmask_b32 v{V_TCH}, v{V_T}, v{V_TCH}, vcc")
        A(f"s_lshr_b32 s{S_TW}, s2, 3"); A(f"s_lshl_b32 s{S_TW}, s{S_TW}, 2"); A(f"s_add_u32 s{S_TW}, s{S_TW}, s{S_W}"); A(f"s_mul_i32 s{S_TW}, s{S_TW}, {112*128}")
        for k,v in enumerate((f"s{P_WD}",f"s{P_WD+1}",1792*1024,"0x20000")): A(f"s_mov_b32 s{R_T+k}, {v}")
        return L
    def touch_setup_c(self):
        L=[]; A=lambda x: L.append(mk(x))
        A(f"s_lshr_b32 s{S_TW}, s2, 3"); A(f"s_lshl_b32 s{S_TW}, s{S_TW}, 2"); A(f"s_add_u32 s{S_TW}, s{S_TW}, s{S_W}")
        A(f"s_cmp_lt_u32 s{S_TW}, 64")
        A(f"s_cselect_b32 s{R_T2}, s{P_CRE}, s{P_CIM}"); A(f"s_cselect_b32 s{R_T2+1}, s{P_CRE+1}, s{P_CIM+1}"); A(f"s_mov_b32 s{R_T2+2}, {512*1024}"); A(f"s_mov_b32 s{R_T2+3}, 0x20000")
        A(f"s_and_b32 s{S_TW}, s{S_TW}, 63"); A(f"s_lshl_b32 s{S_TW}, s{S_TW}, 13")
        return L
    def touch_one(self, R):
        return [mk(f"buffer_load_dword a{A_JUNK}, v{V_TCH}, {sr(R)}, s{S_TW} offen"), mk(f"s_add_u32 s{S_TW}, s{S_TW}, 2048")]
    def touch_a(self):
        l=f"v{V_L}"; a,b=V_T,V_T+1; L=[]; A=lambda x: L.append(mk(x))
        A(f"v_lshlrev_b32 v{a}, 7, {l}"); A(f"v_mov_b32 v{b}, {OOB}"); A(f"v_cmp_gt_u32 vcc, 44, {l}"); A(f"v_cndmask_b32 v{a}, v{b}, v{a}, vcc")
        A(f"s_mul_i32 s{S_T0}, s{S_CB}, {44*128}"); A(f"s_add_u32 s{S_T1}, s{S_T0}, s{S_A0+1}"); A(f"s_add_u32 s{S_T0}, s{S_T0}, s{S_A0}")
        A(f"buffer_load_dword v{V_JUNK}, v{a}, {sr(R_WS)}, s{S_T0} offen sc1")
        A(f"buffer_load_dword v{V_JUNK}, v{a}, {sr(R_WS)}, s{S_T1} offen sc1")
        return L

    def code_prefetch(self):
        p=self.p
        p.I(f"s_getpc_b64 s[{R_T2}:{R_T2+1}]\nL_pc:")
        p.I(f"s_mov_b32 s{R_T2+2}, L_codeend-L_pc\ns_mov_b32 s{R_T2+3}, 0x20000")
        p.I(f"s_bfe_u32 s{S_T0}, s2, 0x30003\ns_lshl_b32 s{S_T0}, s{S_T0}, 12\nv_lshlrev_b32 v{V_T}, 4, v0")
        p.I(f"buffer_load_dwordx4 a[252:255], v{V_T}, {sr(R_T2)}, s{S_T0} offen")

    def flag_op(self, op, idx_sgpr_expr_items, valsrc, R=R_DBG):
        L=[mk(x) for x in idx_sgpr_expr_items]
        L+=[mk(f"s_cmp_eq_u32 s{S_W}, 0"), mk(f"s_cselect_b32 s{S_T0}, s{S_T0}, {OOB}"),
            mk(f"v_mov_b32 v{V_U+6}, {OOB}"), mk(f"v_mov_b32 v{V_U+7}, s{S_T0}"), mk(f"v_cmp_eq_u32 vcc, 0, v{V_L}"),
            mk(f"v_cndmask_b32 v{V_U+6}, v{V_U+6}, v{V_U+7}, vcc"), mk(f"v_mov_b32 v{V_U+7}, {valsrc}"),
            mk(f"buffer_atomic_{op} v{V_U+7}, v{V_U+6}, {sr(R)}, 0 offen sc1")]
        return L

    @staticmethod
    def cfma(dst, c, x, add):
        return [mk(f"v_pk_fma_f32 {vr(dst,2)}, {vr(c,2)}, {vr(x,2)}, {vr(add,2)} op_sel:[0,0,0] op_sel_hi:[0,1,1]"),
                mk(f"v_pk_fma_f32 {vr(dst,2)}, {vr(c,2)}, {vr(x,2)}, {vr(dst,2)} op_sel:[1,1,0] op_sel_hi:[1,0,1] neg_lo:[1,0,0]")]
    @staticmethod
    def scan_step(nre, nim, lam, hre, him, ure, uim):
        return [mk(f"v_pk_fma_f32 {vr(nre,2)}, {vr(lam,2)}, {vr(hre,2)}, {vr(ure,2)} op_sel:[0,0,0] op_sel_hi:[0,1,1]"),
                mk(f"v_pk_fma_f32 {vr(nim,2)}, {vr(lam,2)}, {vr(him,2)}, {vr(uim,2)} op_sel:[0,0,0] op_sel_hi:[0,1,1]"),
                mk(f"v_pk_fma_f32 {vr(nre,2)}, {vr(lam,2)}, {vr(him,2)}, {vr(nre,2)} op_sel:[1,0,0] op_sel_hi:[1,1,1] neg_lo:[1,0,0] neg_hi:[1,0,0]"),
                mk(f"v_pk_fma_f32 {vr(nim,2)}, {vr(lam,2)}, {vr(hre,2)}, {vr(nim,2)} op_sel:[1,0,0] op_sel_hi:[1,1,1]")]

    def pass1(self):
        lam=V_U; l8=26
        L=[mk(f"v_accvgpr_read_b32 v{lam}, a{A_K}"), mk(f"v_accvgpr_read_b32 v{lam+1}, a{A_K+1}"),
           mk(f"v_accvgpr_read_b32 v{l8}, a{A_K+12}"), mk(f"v_accvgpr_read_b32 v{l8+1}, a{A_K+13}")]
        L+=[mk(f"v_lshrrev_b32 v{V_U+2}, 5, v{V_L}"), mk(f"s_lshl_b32 s{S_T0}, s{S_W}, 1"), mk(f"v_add_u32 v{V_U+2}, s{S_T0}, v{V_U+2}"), mk(f"v_lshlrev_b32 v{V_U+2}, 8, v{V_U+2}"),
            mk(f"v_and_b32 v{V_U+3}, 31, v{V_L}"), mk(f"v_lshlrev_b32 v{V_U+3}, 3, v{V_U+3}"), mk(f"v_add_u32 v{V_U+3}, {L_EX}, v{V_U+3}"), mk(f"v_add_u32 v{V_U+2}, v{V_U+2}, v{V_U+3}")]
        e=[(232,234),(236,238)]
        cr,ci=V_SRE,V_SIM
        for i in range(1,8):
            nr,ni=e[i&1]
            L+=self.scan_step(nr,ni,lam,cr,ci,V_SRE+2*i,V_SIM+2*i)
            cr,ci=nr,ni
        L+=[mk(f"v_fma_f32 v28, v{l8}, v{cr}, v{cr+1}"), mk(f"v_fma_f32 v29, v{l8}, v{ci}, v{ci+1}"),
            mk(f"v_fma_f32 v28, -v{l8+1}, v{ci}, v28"), mk(f"v_fma_f32 v29, v{l8+1}, v{cr}, v29"),
            mk(f"v_accvgpr_write_b32 a{A_K+14}, v{cr}"), mk(f"v_accvgpr_write_b32 a{A_K+15}, v{ci}")]
        w=mk(f"ds_write_b64 v{V_U+2}, v[28:29]"); L.append(w)
        return L,w

    def exchange(self):
        ER=V_U+3
        l16=V_U
        L=[mk(f"v_accvgpr_read_b32 v{l16}, a{A_K+2}"), mk(f"v_accvgpr_read_b32 v{l16+1}, a{A_K+3}")]
        P,N=26,28; S2=V_U+4
        rd=[mk(f"ds_read_b64 {vr(P,2)}, v{ER}")]+[mk(f"ds_read_b64 {vr(232+2*(k-1),2)}, v{ER} offset:{256*k}") for k in range(1,8)]
        L+=rd
        L+=[mk(f"v_mov_b32 v{S2}, 0"), mk(f"v_mov_b32 v{S2+1}, 0"), mk(f"s_lshl_b32 s{S_GT}, s{S_W}, 1"), mk(f"s_add_u32 s{S_PO}, s{S_GT}, 1"), Wait(lgkm=rd[:2])]
        for k in range(1,8):
            L+=[mk(f"s_cmp_eq_u32 s{S_GT}, {k}"), mk(f"s_cselect_b32 s{S_M0}, -1, 0"), mk(f"s_cmp_eq_u32 s{S_PO}, {k}"), mk(f"s_cselect_b32 s{S_M0+1}, -1, 0"), Wait(lgkm=rd[k]),
                mk(f"v_cndmask_b32 v{S2}, v{S2}, v{P}, s[{S_M0}:{S_M0+1}]"), mk(f"v_cndmask_b32 v{S2+1}, v{S2+1}, v{P+1}, s[{S_M0}:{S_M0+1}]")]
            L+=self.cfma(N,l16,P,232+2*(k-1))
            P,N=N,P
        L+=[mk(f"v_accvgpr_write_b32 a{A_KS+10}, v{S2}"), mk(f"v_accvgpr_write_b32 a{A_KS+11}, v{S2+1}"),
            mk(f"v_accvgpr_mov_b32 a{A_KS+2}, a{A_K+14}"), mk(f"v_accvgpr_mov_b32 a{A_KS+3}, a{A_K+15}")]
        Er,Ei=30,31
        L+=[mk(f"s_lshl_b32 s{S_T0}, s{S_C}, 12"), mk(f"s_lshl_b32 s{S_T1}, s{S_J}, 8"), mk(f"s_add_u32 s{S_T0}, s{S_T0}, s{S_T1}"), mk(f"s_add_u32 s{S_T0}, s{S_T0}, {WS_E}"),
            mk(f"s_cmp_eq_u32 s{S_W}, 0"), mk(f"s_cselect_b32 s{S_T0}, s{S_T0}, {OOB}"),
            mk(f"v_lshlrev_b32 v{Er}, 3, v{V_L}"), mk(f"v_add_u32 v{Er}, s{S_T0}, v{Er}"), mk(f"v_mov_b32 v{Ei}, {OOB}"), mk(f"v_cmp_gt_u32 vcc, 32, v{V_L}"),
            mk(f"v_cndmask_b32 v{Er}, v{Ei}, v{Er}, vcc")]
        st=mk(f"buffer_store_dwordx2 {vr(P,2)}, v{Er}, {sr(R_WS)}, 0 offen sc1"); L.append(st)
        return L,st

    def poll_issue(self, vdst, off_items, R=R_DBG, w0only=False, off2=None):
        L=[mk(x) for x in off_items]
        if w0only:
            L+=[mk(f"s_cmp_eq_u32 s{S_W}, 0"), mk(f"s_cselect_b32 s{S_T0}, s{S_T0}, {OOB}")]
            if off2: L+=[mk(f"s_cselect_b32 s{S_T1}, s{S_T1}, {OOB}")]
        L+=[mk(f"v_mov_b32 v{vdst+1}, {OOB}"), mk(f"v_mov_b32 v{V_U+7}, s{S_T0}"), mk(f"v_cmp_eq_u32 vcc, 0, v{V_L}"), mk(f"v_cndmask_b32 v{vdst+1}, v{vdst+1}, v{V_U+7}, vcc")]
        if off2:
            L+=[mk(f"v_mov_b32 v{V_U+7}, s{S_T1}"), mk(f"v_cmp_eq_u32 vcc, 1, v{V_L}"), mk(f"v_cndmask_b32 v{vdst+1}, v{vdst+1}, v{V_U+7}, vcc")]
        t=mk(f"buffer_load_dword v{vdst}, v{vdst+1}, {sr(R)}, 0 offen sc1"); L.append(t)
        return L,t
    def poll_check(self, name, vdst, tok, cond_items, R=R_DBG, w0only=False, two=False, sleep=1):
        sid={"g":20,"e":24,"a":28}[name]
        rl=[f"v_readlane_b32 s{S_T0}, v{vdst}, 0"]+([f"v_readlane_b32 s{S_T1}, v{vdst}, 1"] if two else [])
        L=self.stamp(sid)+([mk(f"s_mov_b32 s{S_CNT}, 0")] if self.o.get("stamps") else [])+[Wait(vm=tok)]+self.stamp(sid+1)
        if w0only: L+=[mk(f"s_cmp_lg_u32 s{S_W}, 0"), mk(f"s_cbranch_scc1 L_back_{name}")]
        L+=[mk(x) for x in rl]+[mk(x) for x in cond_items]
        L+=[mk(f"s_cbranch_scc0 L_slow_{name}"), mk(f"L_back_{name}:")]+self.stamp(sid+2)+self.note(sid+3,S_CNT)
        S=[f"L_slow_{name}:", f"s_mov_b32 s{S_CNT}, 0", f"L_loop_{name}:"]+([f"s_sleep {sleep}"] if sleep else [])+[
           f"buffer_load_dword v{vdst}, v{vdst+1}, {sr(R)}, 0 offen sc1", "s_waitcnt vmcnt(0)"]+rl+["s_nop 1",
           f"s_add_u32 s{S_CNT}, s{S_CNT}, 1", f"s_cmp_gt_u32 s{S_CNT}, 100000", f"s_cbranch_scc1 L_back_{name}"]
        S+=cond_items+[f"s_cbranch_scc1 L_back_{name}", f"s_branch L_loop_{name}"]
        self.slow+=S
        return L

    def g_loads(self):
        L=[]
        T=V_T
        L+=[mk(f"v_bfe_u32 v{T}, v{V_L}, 2, 1"), mk(f"v_lshlrev_b32 v{T}, 4, v{T}"), mk(f"v_bfe_u32 v{T+1}, v{V_L}, 3, 2"), mk(f"v_lshlrev_b32 v{T+1}, 2, v{T+1}"),
            mk(f"v_add_u32 v{T}, v{T}, v{T+1}"), mk(f"v_and_b32 v{T+1}, 3, v{V_L}"), mk(f"v_add_u32 v{T}, v{T}, v{T+1}"), mk(f"v_lshlrev_b32 v{T}, 2, v{T}"),
            mk(f"s_lshl_b32 s{S_T0}, s{S_C}, 2"), mk(f"s_add_u32 s{S_T0}, s{S_T0}, s{S_W}"), mk(f"s_lshl_b32 s{S_T0}, s{S_T0}, 7"), mk(f"s_add_u32 s{S_T0}, s{S_T0}, {WS_G}")]
        t0=mk(f"buffer_load_dword v14, v{T}, {sr(R_WS)}, s{S_T0} offen sc1"); L.append(t0)
        L+=[mk(f"v_lshrrev_b32 v{T+1}, 5, v{V_L}"), mk(f"v_lshlrev_b32 v{T+1}, 6, v{T+1}")]
        toks=[t0]
        for i,r in enumerate((2,6,10,18)):
            t=mk(f"buffer_load_dwordx4 {vr(r,4)}, v{T+1}, {sr(R_WS)}, s{S_T0} offen offset:{16*i} sc1"); L.append(t); toks.append(t)
        return L,toks
    GREG=[2,3,4,5,6,7,8,9,10,11,12,13,18,19,20,21]

    EREG=[36,38,40,42,44,46,52,54,56,58,60,62,68,70,72]
    def e_loads(self):
        T=V_T
        L=[mk(f"s_add_u32 s{R_T2}, s{P_WS}, {WS_E}"), mk(f"s_addc_u32 s{R_T2+1}, s{P_WS+1}, 0"), mk(f"s_mov_b32 s{R_T2+2}, 65536"), mk(f"s_mov_b32 s{R_T2+3}, 0x20000"),
           mk(f"v_and_b32 v{T+2}, 31, v{V_L}"), mk(f"v_lshlrev_b32 v{T+2}, 3, v{T+2}"), mk(f"s_lshl_b32 s{S_T1}, s{S_J}, 8"), mk(f"s_lshl_b32 s{S_T0}, s{S_C}, 12"),
           mk(f"s_add_u32 s{S_T0}, s{S_T0}, s{S_T1}"), mk(f"s_sub_u32 s{S_T0}, s{S_T0}, 4096"), mk(f"v_add_u32 v{T+2}, s{S_T0}, v{T+2}")]
        toks=[]
        for m in range(15):
            a=T+2+(m&1); b=T+2+((m+1)&1)
            t=mk(f"buffer_load_dwordx2 {ar(2*m,2)}, v{a}, {sr(R_T2)}, 0 offen sc1"); L.append(t); toks.append(t)
            if m<14: L.append(mk(f"v_subrev_u32 v{b}, 4096, v{a}"))
        return L,toks

    def ffn_epilogue(self, gtok):
        pre=[]; st=[]
        KC=V_WF; IR=V_WF+2; T=V_WF+4
        k0=-2.0*0.7978845608028654*self.LOG2E
        pre+=[Wait(vm=gtok), mk(f"v_sub_f32 v{IR}, 1.0, v14"), mk(self.fconst(S_T0,k0*0.044715)), mk(f"v_cvt_pk_bf16_f32 v{IR}, v{IR}, v{IR}"), mk(f"v_mov_b32 v{KC}, s{S_T0}"),
             mk(f"v_lshlrev_b32 v{IR}, 16, v{IR}"), mk(self.fconst(S_T0,k0)), mk(f"v_rcp_f32 v{IR}, v{IR}"), mk(f"v_mov_b32 v{KC+1}, s{S_T0}"),
             mk(self.fconst(S_T0,1e30)), mk(f"v_min_f32 v{IR}, s{S_T0}, v{IR}")]
        pre+=[mk(f"s_lshl_b32 s{S_AO}, s{S_C}, 2"), mk(f"s_add_u32 s{S_AO}, s{S_AO}, s{S_W}"), mk(f"s_mul_i32 s{S_AO}, s{S_AO}, 176"), mk(f"s_mul_i32 s{S_T0}, s{S_J}, 11"),
            mk(f"s_add_u32 s{S_AO}, s{S_AO}, s{S_T0}"), mk(f"s_lshl_b32 s{S_AO}, s{S_AO}, 10"), mk(f"v_lshlrev_b32 v{V_AO}, 4, v{V_L}")]
        tiles=[]
        for i in range(7):
            L=[]
            a=V_ACC+16*i
            o=T+16*(i&1)
            Z,Pd=o,o+8
            pr=[(a,a+4),(a+2,a+6),(a+8,a+12),(a+10,a+14)]
            for e,(g,u) in enumerate(pr): L.append(mk(f"v_pk_mul_f32 {vr(Z+2*e,2)}, {vr(g,2)}, {vr(g,2)}"))
            for e,(g,u) in enumerate(pr): L.append(mk(f"v_pk_fma_f32 {vr(Z+2*e,2)}, {vr(Z+2*e,2)}, {vr(KC,2)}, {vr(KC,2)} op_sel:[0,0,1] op_sel_hi:[1,0,1]"))
            for e,(g,u) in enumerate(pr): L.append(mk(f"v_pk_mul_f32 {vr(Z+2*e,2)}, {vr(g,2)}, {vr(Z+2*e,2)}"))
            for e,(g,u) in enumerate(pr):
                L.append(mk(f"v_exp_f32 v{Z+2*e}, v{Z+2*e}")); L.append(mk(f"v_exp_f32 v{Z+2*e+1}, v{Z+2*e+1}")); L.append(mk(f"v_pk_mul_f32 {vr(Pd+2*e,2)}, {vr(g,2)}, {vr(u,2)}"))
            for e in range(4): L.append(mk(f"v_pk_fma_f32 {vr(Z+2*e,2)}, {vr(Z+2*e,2)}, {vr(IR,2)}, {vr(IR,2)} op_sel:[0,0,0] op_sel_hi:[1,0,0]"))
            for e in range(8): L.append(mk(f"v_rcp_f32 v{Z+e}, v{Z+e}"))
            for e in range(4): L.append(mk(f"v_pk_mul_f32 {vr(Pd+2*e,2)}, {vr(Pd+2*e,2)}, {vr(Z+2*e,2)}"))
            for e in range(4): L.append(mk(f"v_cvt_pk_bf16_f32 v{a+e}, v{Pd+2*e}, v{Pd+2*e+1}"))
            tiles.append(L)
        S=[]
        for i in range(7):
            t=mk(f"buffer_store_dwordx4 {vr(V_ACC+16*i,4)}, v{V_AO}, {sr(R_WS)}, s{S_AO} offen offset:{1024*(i&3)} sc1"); st.append(t)
            S.append(([mk(f"s_add_u32 s{S_AO}, s{S_AO}, 4096")] if i==4 else [])+[t])
        return pre,tiles,S,st

    def ssm_epilogue(self, etok, gtok, tbase_items):
        L=[]; st=[]
        LAM,Q,S2=176,178,180
        H,N=182,184
        rd=lambda v,a: mk(f"v_accvgpr_read_b32 v{v}, a{a}")
        L+=[rd(Q,A_KS+4), rd(Q+1,A_KS+5), rd(LAM,A_KS), rd(LAM+1,A_KS+1), rd(S2,A_KS+8), rd(S2+1,A_KS+9), Wait(vm=etok)]
        L+=[rd(H,28), rd(H+1,29)]
        cur=H
        EB=[204,206]
        for m in range(13,-1,-1):
            e=EB[m&1]
            L+=[rd(e,2*m), rd(e+1,2*m+1)]
            L+=self.cfma(N,Q,cur,e); cur=N; H,N=N,H
        Hin=cur
        W,X=186,188
        L+=[rd(Q,A_KS+6), rd(Q+1,A_KS+7), rd(W,A_KS+10), rd(W+1,A_KS+11)]
        L+=self.cfma(X,Q,Hin,W)
        L+=[rd(Q,A_KS+12), rd(Q+1,A_KS+13), rd(W,A_KS+2), rd(W+1,A_KS+3)]
        L+=self.cfma(190,Q,X,W)
        HR,HI,NR,NI=192,194,196,198
        L+=[mk(f"v_mov_b32 v{HR}, v{X}"), mk(f"v_mov_b32 v{HR+1}, v190"), mk(f"v_mov_b32 v{HI}, v{X+1}"), mk(f"v_mov_b32 v{HI+1}, v191"), Wait(vm=gtok)]
        PK=214
        OR,OI=200,202
        for i in range(8):
            g=self.GREG[2*i]
            L+=self.scan_step(NR,NI,LAM,HR,HI,V_SRE+2*i,V_SIM+2*i)
            HR,HI,NR,NI=NR,NI,HR,HI
            L+=[mk(f"v_pk_mul_f32 {vr(OR,2)}, {vr(S2,2)}, {vr(HR,2)} op_sel:[0,0] op_sel_hi:[0,1]"), mk(f"v_pk_mul_f32 {vr(OI,2)}, {vr(S2,2)}, {vr(HI,2)} op_sel:[0,0] op_sel_hi:[0,1]"),
                mk(f"v_pk_fma_f32 {vr(OR,2)}, {vr(S2,2)}, {vr(HI,2)}, {vr(OR,2)} op_sel:[1,0,0] op_sel_hi:[1,1,1] neg_lo:[1,0,0] neg_hi:[1,0,0]"),
                mk(f"v_pk_fma_f32 {vr(OI,2)}, {vr(S2,2)}, {vr(HR,2)}, {vr(OI,2)} op_sel:[1,0,0] op_sel_hi:[1,1,1]"),
                mk(f"v_pk_mul_f32 {vr(OR,2)}, {vr(g,2)}, {vr(OR,2)}"), mk(f"v_pk_mul_f32 {vr(OI,2)}, {vr(g,2)}, {vr(OI,2)} neg_lo:[1,0] neg_hi:[1,0]"),
                mk(f"v_cvt_pk_bf16_f32 v{PK+i}, v{OR}, v{OR+1}"), mk(f"v_cvt_pk_bf16_f32 v{PK+8+i}, v{OI}, v{OI+1}")]
        TW,TR0,TR1=204,205,206
        L+=tbase_items
        n_=207
        L+=[mk(f"v_and_b32 v{n_}, 31, v{V_L}"), mk(f"v_lshlrev_b32 v{TW}, 6, v{n_}"), mk(f"v_bfe_u32 v{n_+1}, v{V_L}, 1, 2"),
            mk(f"v_lshrrev_b32 v{n_+2}, 5, v{V_L}"), mk(f"v_lshlrev_b32 v{n_+2}, 1, v{n_+2}"),
            mk(f"v_xor_b32 v{n_+2}, v{n_+2}, v{n_+1}"),
            mk(f"v_lshlrev_b32 v{n_+3}, 4, v{n_+2}"), mk(f"v_xor_b32 v{n_+2}, 1, v{n_+2}"), mk(f"v_lshlrev_b32 v{n_+2}, 4, v{n_+2}"),
            mk(f"v_add_u32 v{TW}, s{S_T0}, v{TW}"), mk(f"v_add_u32 v{n_+2}, v{TW}, v{n_+2}"), mk(f"v_add_u32 v{TW}, v{TW}, v{n_+3}")]
        wr=[]
        for m in range(2):
            wr.append(mk(f"ds_write_b128 v{TW}, {vr(PK+8*m,4)} offset:{2048*m}")); wr.append(mk(f"ds_write_b128 v{n_+2}, {vr(PK+8*m+4,4)} offset:{2048*m}"))
        L+=wr
        a=n_+4
        L+=[mk(f"v_lshrrev_b32 v{a}, 5, v{V_L}"), mk(f"v_lshlrev_b32 v{a}, 3, v{a}"), mk(f"v_bfe_u32 v{a+1}, v{V_L}, 2, 2"), mk(f"v_add_u32 v{a}, v{a}, v{a+1}"), mk(f"v_lshlrev_b32 v{a}, 6, v{a}"),
            mk(f"v_and_b32 v{a+1}, 1, v{V_L}"), mk(f"v_lshlrev_b32 v{a+1}, 1, v{a+1}"), mk(f"v_bfe_u32 v{a+2}, v{V_L}, 4, 1"), mk(f"v_add_u32 v{a+1}, v{a+1}, v{a+2}"),
            mk(f"v_bfe_u32 v{a+2}, v{V_L}, 3, 1"), mk(f"v_xor_b32 v{a+1}, v{a+1}, v{a+2}"),
            mk(f"v_bfe_u32 v{a+2}, v{V_L}, 1, 1"), mk(f"v_lshlrev_b32 v{a+2}, 3, v{a+2}"), mk(f"v_add_u32 v{a}, v{a}, v{a+2}"), mk(f"v_add_u32 v{a}, s{S_T0}, v{a}"),
            mk(f"v_lshlrev_b32 v{a+2}, 4, v{a+1}"), mk(f"v_add_u32 v{TR0}, v{a}, v{a+2}"),
            mk(f"v_xor_b32 v{a+1}, 2, v{a+1}"), mk(f"v_lshlrev_b32 v{a+2}, 4, v{a+1}"), mk(f"v_add_u32 v{TR1}, v{a}, v{a+2}"), mk(f"v_add_u32 v{TR1}, 256, v{TR1}")]
        L+=[Wait(lgkm=wr)]
        OUT=V_SRE
        rd=[]
        for b in range(4):
            m,mu=b>>1,b&1
            rd.append(mk(f"ds_read_b64_tr_b16 {vr(OUT+4*b,2)}, v{TR0} offset:{2048*m+1024*mu}")); rd.append(mk(f"ds_read_b64_tr_b16 {vr(OUT+4*b+2,2)}, v{TR1} offset:{2048*m+1024*mu}"))
        L+=rd
        L+=[mk(f"s_add_u32 s{S_AO}, s{S_AO}, 3072")]
        for b in range(4):
            t=mk(f"buffer_store_dwordx4 {vr(OUT+4*b,4)}, v{V_AO}, {sr(R_WS)}, s{S_AO} offen offset:{1024*b} sc1")
            L+=[Wait(lgkm=rd[2*b:2*b+2]), t]; st.append(t)
        self.t_reads=rd
        return L,st

    def copy_consts(self):
        return [mk(f"v_accvgpr_mov_b32 a{A_KS+i}, a{A_K+i}") for i in (0,1,4,5,6,7,8,9,12,13)]

    def blk_areg(self,b): return 64+8*b
    def p3_patterns1(self):
        l=f"v{V_L}"; a,b,c=V_T,30,31
        L=[]; A=lambda x: L.append(mk(x))
        A(f"s_mul_i32 s{S_RG}, s{S_W}, {REGION}")
        A(f"v_lshrrev_b32 v{a}, 3, {l}"); A(f"v_lshlrev_b32 v{a}, 10, v{a}"); A(f"v_bfe_u32 v{b}, {l}, 4, 1"); A(f"v_lshlrev_b32 v{b}, 2, v{b}"); A(f"v_and_b32 v{c}, 7, {l}")
        A(f"v_xor_b32 v{b}, v{b}, v{c}"); A(f"v_lshlrev_b32 v{b}, 4, v{b}"); A(f"v_add_u32 v{V_FD}, v{a}, v{b}"); A(f"v_add_u32 v{V_FD+1}, 7168, v{V_FD}")
        A(f"v_lshrrev_b32 v{a}, 5, {l}"); A(f"v_lshlrev_b32 v{a}, 2, v{a}"); A(f"v_bfe_u32 v{b}, {l}, 2, 2"); A(f"v_add_u32 v{a}, v{a}, v{b}"); A(f"v_lshlrev_b32 v{a}, 7, v{a}")
        A(f"v_bfe_u32 v{b}, {l}, 4, 1"); A(f"v_lshlrev_b32 v{b}, 5, v{b}"); A(f"v_add_u32 v{a}, v{a}, v{b}"); A(f"v_and_b32 v{b}, 3, {l}"); A(f"v_lshlrev_b32 v{b}, 3, v{b}"); A(f"v_add_u32 v{a}, v{a}, v{b}")
        A(f"v_add_u32 v{a}, s{S_RG}, v{a}"); A(f"v_bfe_u32 v{b}, {l}, 3, 1"); A(f"v_lshlrev_b32 v{b}, 6, v{b}"); A(f"s_and_b32 s{S_T3}, s{S_W}, 1"); A(f"s_lshl_b32 s{S_T3}, s{S_T3}, 6"); A(f"v_xor_b32 v{b}, s{S_T3}, v{b}"); A(f"v_add_u32 v{V_FR}, v{a}, v{b}"); A(f"v_xor_b32 v{b}, 64, v{b}"); A(f"v_add_u32 v{V_FR+1}, v{a}, v{b}")
        A(f"s_mul_i32 s{S_FO}, s{S_W}, {448*1024}"); A(f"s_lshl_b32 s{S_T3}, s{S_CB}, 7"); A(f"s_add_u32 s{S_FO}, s{S_FO}, s{S_T3}")
        for k,v in enumerate((f"s{P_WD}",f"s{P_WD+1}",1792*1024,"0x20000")): A(f"s_mov_b32 s{R_T+k}, {v}")
        return L
    def p3_patterns2(self):
        l=f"v{V_L}"; a,b,c=V_T,30,31
        L=[]; A=lambda x: L.append(mk(x))
        A(f"v_lshrrev_b32 v{a}, 3, {l}"); A(f"v_lshlrev_b32 v{a}, 10, v{a}"); A(f"v_and_b32 v{c}, 7, {l}")
        A(f"v_lshrrev_b32 v{b}, 4, {l}"); A(f"v_xor_b32 v{b}, v{b}, v{c}"); A(f"v_xor_b32 v{c}, 4, v{b}"); A(f"v_lshlrev_b32 v{b}, 4, v{b}"); A(f"v_lshlrev_b32 v{c}, 4, v{c}")
        for q in range(4):
            A(f"v_add_u32 v{V_CD+q}, v{a}, v{b if q%2==0 else c}")
            if q: A(f"v_add_u32 v{V_CD+q}, {7168*q}, v{V_CD+q}")
        A(f"v_and_b32 v{a}, 31, {l}"); A(f"v_lshlrev_b32 v{a}, 7, v{a}"); A(f"v_add_u32 v{a}, s{S_RG}, v{a}"); A(f"v_bfe_u32 v{b}, {l}, 1, 3"); A(f"v_lshrrev_b32 v{c}, 5, {l}"); A(f"v_xor_b32 v{b}, v{b}, v{c}")
        for s in range(4):
            A(f"v_xor_b32 v{c}, {2*s}, v{b}"); A(f"v_lshlrev_b32 v{c}, 4, v{c}"); A(f"v_add_u32 v{V_CR[s]}, v{a}, v{c}")
        A(f"s_lshl_b32 s{S_CO}, s{S_CB}, 16"); A(f"s_lshl_b32 s{S_T0}, s{S_W}, 8"); A(f"s_add_u32 s{S_CO}, s{S_CO}, s{S_T0}")
        A(f"s_and_b32 s{S_T0}, s{S_W}, 1"); A(f"s_lshl_b32 s{S_T0}, s{S_T0}, 15"); A(f"s_xor_b32 s{S_CO1}, s{S_T0}, 0x8000"); A(f"s_add_u32 s{S_CO1}, s{S_CO1}, s{S_CO}"); A(f"s_add_u32 s{S_CO}, s{S_CO}, s{S_T0}")
        for reg,ptr,size in ((R_B,P_CRE,512*1024),(R_W,P_CIM,512*1024)):
            A(f"s_mov_b32 s{reg}, s{ptr}"); A(f"s_mov_b32 s{reg+1}, s{ptr+1}"); A(f"s_mov_b32 s{reg+2}, {size}"); A(f"s_mov_b32 s{reg+3}, 0x20000")
        return L
    def p3_rebase_after(self, rd2):
        return [Wait(lgkm=sum(rd2.values(),[]))]+self.p3_rebase()
    def p3_rebase(self):
        return [mk(f"s_sub_u32 s{S_T0}, s{S_RG}, s{S_TB}"), mk(f"v_add_u32 v{V_FR}, s{S_T0}, v{V_FR}"), mk(f"v_add_u32 v{V_FR+1}, s{S_T0}, v{V_FR+1}")]
    def p3_dma_f(self, b, slot, tail=False):
        L=[mk(f"s_add_u32 m0, s{S_TB if tail else S_RG}, {slot*2048}"), mk(f"s_add_u32 s{S_PO}, s{S_FO}, {b*16*1024}")]
        t=[mk(f"buffer_load_dwordx4 v{V_FD+i}, {sr(R_T)}, s{S_PO} offen offset:{1024*i} lds") for i in range(2)]
        if b in self.o.get("skip_f",()): t=[mk("s_nop 0"),mk("s_nop 0")]
        return L+t,t
    def p3_dma_c(self, k):
        mat,ph,ct=k>>2,(k>>1)&1,k&1
        L=[mk(f"s_add_u32 m0, s{S_RG}, {k*4096}"), mk(f"s_add_u32 s{S_PO}, s{S_CO1 if ct else S_CO}, {ph*128}")]
        t=[mk(f"buffer_load_dwordx4 v{V_CD+q}, {sr(R_W if mat else R_B)}, s{S_PO} offen offset:{1024*q} lds") for q in range(4)]
        if k in self.o.get("skip_c",()): t=[mk("s_nop 0") for q in range(4)]
        return L+t,t
    def p3_rd_f(self, slot, dst, agpr):
        R=ar if agpr else vr
        return [mk(f"ds_read_b64_tr_b16 {R(dst+4*ct+2*q,2)}, v{V_FR+ct} offset:{slot*2048+1024*q}") for ct in range(2) for q in range(2)]
    def p3_rd_c(self, mat, ph, s, dst):
        return [mk(f"ds_read_b128 {vr(dst+4*ct,4)}, v{V_CR[s]} offset:{(4*mat+2*ph+ct)*4096}") for ct in range(2)]

    @staticmethod
    def cost(it):
        if isinstance(it,Wait): return 2
        if it.kind=="label": return 0
        if it.op in TRANS: return 8
        if it.kind=="vmem": return 12
        return 4
    def merge_time(self, stream, ev, t=0):
        out=[]; i=0
        for it in stream:
            sccuse = (not isinstance(it,Wait)) and (it.kind=="label" or it.op.startswith("s_cselect") or it.op.startswith("s_cbranch_scc") or it.op.startswith("s_addc"))
            while (not sccuse) and i<len(ev) and ev[i][0]<=t:
                for x in ev[i][1]:
                    out.append(x); t+=self.cost(x)
                i+=1
            out.append(it); t+=self.cost(it)
        return out,ev[i:],t

    def phase3(self, tok):
        p=self.p
        ACC=32; RING=96; D=self.o.get('ring',12); BJ=96+8*D
        order=[("f",b) for b in range(24)]+[("c",0,1,s) for s in range(4)]+[("c",1,0,s) for s in range(4)]+[("c",1,1,s) for s in range(4)]+[("f",b) for b in range(24,28)]+[("c",0,0,s) for s in range(4)]
        pf={}
        first_use={0:8,1:12,2:16,3:20}
        rest=self.p3_rest; base=4-len(rest)
        for k,G in enumerate(rest):
            st0=self.o.get("pf0",0)+2*k
            a,b=split(G,2); pf[st0]=pf.get(st0,[])+a; pf[st0+1]=pf.get(st0+1,[])+b
            assert st0+1 < first_use[base+k]
        def krel(st):
            if st[0]=="f": return 11*(st[1]//7)+st[1]%7
            _,mat,ph,s=st
            return 11*(2*ph+(s>>1))+7+2*mat+(s&1)
        def aload(i):
            st=order[i]; r=RING+8*(i%D); k=krel(st)*1024
            L=[mk(f"s_add_u32 s{S_T2}, s{S_A0}, {k}"), mk(f"s_add_u32 s{S_T3}, s{S_A0+1}, {k}")]
            t=[mk(f"buffer_load_dwordx4 {vr(r+4*e,4)}, v{V_AO}, {sr(R_WS)}, s{S_T2+e} offen sc1") for e in range(2)]
            return [L[0],t[0],L[1],t[1]],t
        at={}
        for i in range(D):
            L,at[i]=aload(i); p.add(L)
        p.add(self.final_loads())
        xt=self.xterm_items()
        brd={}
        def bread(i):
            st=order[i]; dst=BJ+8*(i%3)
            if st[0]=="f":
                b=st[1]
                if b<24: return None
                slot=b-8
                return [Wait(vm=tok[("f",b)])]+self.p3_rd_f(slot,dst,False)
            _,mat,ph,s=st
            w=[Wait(vm=tok[("c",4*mat+2*ph+ct)]) for ct in range(2)]
            return w+self.p3_rd_c(mat,ph,s,dst)
        n=len(order)
        x0=self.o.get("xt0",13); xn=8
        xparts=split(xt,xn)
        for i in range(n):
            st=order[i]
            fill=[]
            if i+2<n:
                r=bread(i+2)
                if r: brd[i+2]=[x for x in r if not isinstance(x,Wait)]; fill+=r
            fill+=pf.get(i,[])
            if x0<=i<x0+xn: fill+=xparts[i-x0]
            r=RING+8*(i%D)
            if st[0]=="f" and st[1]<24: B=lambda ct,b=st[1]: ar(self.blk_areg(b)+4*ct,4)
            else: B=lambda ct,i=i: vr(BJ+8*(i%3)+4*ct,4)
            mf=[]
            for tau in range(2):
                for ct in range(2):
                    a=ACC+16*(2*tau+ct)
                    mf.append(mk(f"v_mfma_f32_32x32x16_bf16 {vr(a,16)}, {vr(r+4*tau,4)}, {B(ct)}, {'0' if i==0 else vr(a,16)}"))
            p.wait(vm=at[i][0])
            if i in brd: p.wait(lgkm=brd[i])
            k=len(fill); f3=[fill[(k*q)//3:(k*(q+1))//3] for q in range(3)]
            p.add(mf[0]); p.add(f3[0]); p.add(mf[1]); p.add(f3[1])
            p.wait(vm=at[i][1])
            p.add(mf[2]); p.add(f3[2]); p.add(mf[3])
            if i+D<n:
                L,at[i+D]=aload(i+D); p.add(L)

    def a_base(self):
        L=[]; A=lambda x: L.append(mk(x))
        A(f"s_lshl_b32 s{S_A0}, s{S_C3}, 2"); A(f"s_lshl_b32 s{S_T0}, s{S_RH}, 1"); A(f"s_add_u32 s{S_A0}, s{S_A0}, s{S_T0}"); A(f"s_mul_i32 s{S_A0}, s{S_A0}, 176")
        A(f"s_mul_i32 s{S_T0}, s{S_W}, 44"); A(f"s_add_u32 s{S_A0}, s{S_A0}, s{S_T0}"); A(f"s_lshl_b32 s{S_A0}, s{S_A0}, 10")
        A(f"s_lshr_b32 s{S_T0}, s{S_W}, 1"); A(f"s_mul_i32 s{S_T0}, s{S_T0}, {176*1024}"); A(f"s_xor_b32 s{S_T1}, s{S_T0}, {176*1024}")
        A(f"s_add_u32 s{S_A0+1}, s{S_A0}, s{S_T1}"); A(f"s_add_u32 s{S_A0}, s{S_A0}, s{S_T0}")
        return L

    @staticmethod
    def reg_of_row(rho): return 2*rho if rho<8 else 2*(rho-8)+1
    def final_loads(self):
        L=[]; A=lambda x: L.append(mk(x)) or L[-1]
        XV,GV,DV=2,216,18
        a=V_T
        A(f"s_lshl_b32 s{S_R0}, s{S_C3}, 7"); A(f"s_lshl_b32 s{S_T0}, s{S_RH}, 6"); A(f"s_add_u32 s{S_R0}, s{S_R0}, s{S_T0}"); A(f"s_lshr_b32 s{S_T0}, s{S_W}, 1"); A(f"s_lshl_b32 s{S_T0}, s{S_T0}, 5"); A(f"s_add_u32 s{S_R0}, s{S_R0}, s{S_T0}")
        A(f"s_lshl_b32 s{S_D0}, s{S_CB}, 6"); A(f"s_and_b32 s{S_T0}, s{S_W}, 1"); A(f"s_lshl_b32 s{S_T0}, s{S_T0}, 5"); A(f"s_add_u32 s{S_D0}, s{S_D0}, s{S_T0}")
        A(f"v_lshrrev_b32 v{a}, 5, v{V_L}"); A(f"v_lshlrev_b32 v{a+1}, 6, v{a}"); A(f"s_lshl_b32 s{S_T0}, s{S_R0}, 2"); A(f"s_add_u32 s{S_T0}, s{S_T0}, {WS_G}")
        toks=[]
        for i in range(4): toks.append(A(f"buffer_load_dwordx4 {vr(GV+4*i,4)}, v{a+1}, {sr(R_WS)}, s{S_T0} offen offset:{16*i} sc1"))
        for i,(v) in enumerate((P_DSK,P_DSK+1)): A(f"s_mov_b32 s{R_T2+i}, s{v}")
        A(f"s_mov_b32 s{R_T2+2}, 1024"); A(f"s_mov_b32 s{R_T2+3}, 0x20000")
        A(f"v_and_b32 v{a+2}, 31, v{V_L}"); A(f"v_add_u32 v{a+2}, s{S_D0}, v{a+2}")
        A(f"v_lshlrev_b32 v{V_OO}, 2, v{a+2}"); A(f"v_lshlrev_b32 v{a+2}, 1, v{a+2}")
        toks.append(A(f"buffer_load_ushort v{DV}, v{a+2}, {sr(R_T2)}, 0 offen"))
        A(f"v_lshlrev_b32 v{a}, 14, v{a}"); A(f"v_add_u32 v{a+2}, v{a+2}, v{a}"); A(f"s_lshl_b32 s{S_T0}, s{S_R0}, 10")
        for rho in range(16):
            if rho and rho%4==0: A(f"s_add_u32 s{S_T0}, s{S_T0}, 4096")
            toks.append(A(f"buffer_load_ushort v{XV+self.reg_of_row(rho)}, v{a+2}, {sr(R_X)}, s{S_T0} offen offset:{1024*(rho%4)}"))
        A(f"v_lshl_add_u32 v{V_OO}, v{a}, 1, v{V_OO}")
        self.fin_toks=toks
        return L

    def xterm_items(self):
        XV,GV,DV=2,216,18
        L=[Wait(vm=self.fin_toks), mk(f"v_lshlrev_b32 v{DV}, 16, v{DV}")]
        for r in range(16): L.append(mk(f"v_lshlrev_b32 v{XV+r}, 16, v{XV+r}"))
        for r in range(0,16,2): L.append(mk(f"v_pk_mul_f32 {vr(XV+r,2)}, {vr(XV+r,2)}, {vr(DV,2)} op_sel:[0,0] op_sel_hi:[1,0]"))
        for r in range(0,16,2): L.append(mk(f"v_cvt_pk_bf16_f32 v{XV+r}, v{XV+r}, v{XV+r+1}"))
        for r in range(0,16,2): L+=[mk(f"v_and_b32 v{XV+r+1}, 0xffff0000, v{XV+r}"), mk(f"v_lshlrev_b32 v{XV+r}, 16, v{XV+r}")]
        for r in range(0,16,2): L.append(mk(f"v_pk_mul_f32 {vr(XV+r,2)}, {vr(XV+r,2)}, {vr(GV+r,2)}"))
        a=V_T
        L+=[mk(f"v_lshlrev_b32 v{a}, 4, v{V_L}")]
        for k in range(1,4):
            L+=[mk(f"s_xor_b32 s{S_T0}, s{S_W}, {k}"), mk(f"s_mul_i32 s{S_T0}, s{S_T0}, {REGION}"), mk(f"v_add_u32 v{a+k}, s{S_T0}, v{a}")]
        L+=[mk(f"v_add_u32 v{a}, s{S_RG}, v{a}")]
        for k,v in enumerate((f"s{P_OUT}",f"s{P_OUT+1}",2048*2048,"0x20000")): L.append(mk(f"s_mov_b32 s{R_T2+k}, {v}"))
        L+=[mk(f"s_lshl_b32 s{S_R0}, s{S_R0}, 11")]
        return L

    def final(self):
        p=self.p
        ACC=32; XV=2
        a=V_T
        wr=[]
        for k in range(1,4):
            for q in range(4): wr.append(p.I(f"ds_write_b128 v{a}, {vr(ACC+16*k+4*q,4)} offset:{(k-1)*4096+q*1024}"))
        for r in range(0,16,2): p.I(f"v_pk_add_f32 {vr(ACC+r,2)}, {vr(ACC+r,2)}, {vr(XV+r,2)}")
        p.wait(lgkm_all=True); p.I("s_barrier")
        rd=[]
        for k in range(1,4):
            for q in range(4): rd.append(p.I(f"ds_read_b128 {vr(96+16*(k-1)+4*q,4)}, v{a+k} offset:{(k-1)*4096+q*1024}"))
        for k in range(3):
            for q in range(4):
                p.wait(lgkm=rd[4*k+q])
                for r in (4*q,4*q+2): p.I(f"v_pk_add_f32 {vr(ACC+r,2)}, {vr(ACC+r,2)}, {vr(96+16*k+r,2)}")
        fl=self.o.get("out_flags","")
        for rho in range(16):
            if rho and rho%2==0: p.I(f"s_add_u32 s{S_R0}, s{S_R0}, 4096")
            p.I(f"buffer_store_dword v{ACC+self.reg_of_row(rho)}, v{V_OO}, {sr(R_T2)}, s{S_R0} offen offset:{2048*(rho%2)} {fl}")

    def stamp(self, idx):
        if not self.o.get("stamps"): return []
        only=self.o.get("only")
        if only is not None and idx not in only: return []
        L=[mk("s_memrealtime s[100:101]"), mk("s_waitcnt lgkmcnt(0)"), mk(f"v_writelane_b32 v{V_ST}, s100, {idx}")]
        if self.o.get("cyc"): L+=[mk("s_memtime s[100:101]"), mk("s_waitcnt lgkmcnt(0)"), mk(f"v_writelane_b32 v{V_ST}, s100, {idx+16}")]
        return L
    def note(self, idx, sreg):
        if not self.o.get("stamps"): return []
        return [mk("s_nop 0"), mk(f"v_writelane_b32 v{V_ST}, s{sreg}, {idx}")]
    def dump_stamps(self):
        if not self.o.get("stamps"): return
        p=self.p
        p.I(f"s_lshl_b32 s{S_T0}, s2, 2\ns_add_u32 s{S_T0}, s{S_T0}, s{S_W}\ns_lshl_b32 s{S_T0}, s{S_T0}, 8\ns_add_u32 s{S_T0}, s{S_T0}, {WS_DBG}")
        p.I(f"v_lshlrev_b32 v{V_T}, 2, v{V_L}")
        p.I(f"buffer_store_dword v{V_ST}, v{V_T}, {sr(R_WS)}, s{S_T0} offen")
        p.wait(vm_all=True)

    def dump_regs(self, regs, slot_base, agpr=False):
        p=self.p
        n=len(regs)
        p.I(f"s_lshl_b32 s{S_T0}, s2, 2\ns_add_u32 s{S_T0}, s{S_T0}, s{S_W}\ns_mul_i32 s{S_T0}, s{S_T0}, {n*256}\ns_add_u32 s{S_T0}, s{S_T0}, {slot_base}")
        p.I(f"v_lshlrev_b32 v{V_T}, 2, v{V_L}")
        for i,r in enumerate(regs):
            p.I(f"buffer_store_dword {r}, v{V_T}, {sr(R_WS)}, s{S_T0} offen")
            p.I(f"s_add_u32 s{S_T0}, s{S_T0}, 256")
        p.wait(vm_all=True)

    def finish(self):
        p=self.p
        p.I("s_endpgm")
        for x in self.slow: p.I(x)
        p.I("L_exit:\ns_endpgm\nL_codeend:")

    def text(self):
        items,npad,errs=finalize(self.p)
        for e in errs[:20]: print("ERR",e,file=sys.stderr)
        hdr=open("gated_mix__ssm_conv_s5__glu_gated_geglu__prompt.s.ref").read().split("; Override launch")[0]
        out=hdr+"; @launch grid=(256,1,1) block=(256,1,1) lds=163840\n"
        out+='.amdgcn_target "amdgcn-amd-amdhsa--gfx950"\n.text\n'
        out+=f".globl {KNAME}\n.p2align 8\n.type {KNAME},@function\n{KNAME}:\n"
        out+=emit(items)
        out+=f'''.section .rodata,"a"
.p2align 6
.amdhsa_kernel {KNAME}
  .amdhsa_next_free_vgpr 512
  .amdhsa_next_free_sgpr 102
  .amdhsa_accum_offset 256
  .amdhsa_group_segment_fixed_size 0
  .amdhsa_kernarg_size 136
  .amdhsa_user_sgpr_count 2
  .amdhsa_user_sgpr_kernarg_segment_ptr 1
  .amdhsa_system_sgpr_workgroup_id_x 1
.end_amdhsa_kernel
'''
        self.stats=dict(n=len(items),npad=npad,errs=len(errs))
        return out

def split(L,n):
    k=len(L); return [L[(k*i)//n:(k*(i+1))//n] for i in range(n)]

def build_full(opts=None, stop=None):
    g=Gen(opts=opts); p=g.p; o=g.o
    if o.get("stamps"): p.I(f"v_mov_b32 v{V_ST}, 0")
    p.add(g.stamp(0))
    g.prologue_a()
    ex={}; head={}
    def add(key,items): ex[key]=ex.get(key,[])+list(items)
    def addh(key,items): head[key]=head.get(key,[])+list(items)
    def late():
        G=g.gate_items(); K=g.const_items()
        for key,part in zip([("F",0,0),("F",0,1),("F",0,2),("F",0,3),("S",2,0)],split(G,5)): add(key,part)
        for key,part in zip([("S",2,1),("S",3,0),("S",3,1),("F",1,0)],split(K,4)): add(key,part)
        addh(("F",1,3),[Wait(vm=[g.g_store,g.c_store])])
        add(("F",1,3),g.flag_op("add",[f"s_lshl_b32 s{S_T0}, s{S_C}, 4"],"1"))
    g.late=late
    L1,w1=g.pass1(); n=len(L1)
    def late2():
        add(("F",3,0),L1[:12]); add(("F",3,1),L1[12:12+(n-12)//2]); add(("F",3,2),L1[12+(n-12)//2:])
        addh(("F",3,3),[Wait(lgkm=w1)])
        add(("F",6,0),g.p3_patterns1())
        L2,est=g.exchange()
        for key,part in zip([("F",3,3),("F",4,0),("F",4,1),("F",4,2)],split(L2,4)): add(key,part)
        add(("F",4,3),g.copy_consts())
        add(("F",5,2),[Wait(vm=est)]+g.flag_op("or",[f"s_lshl_b32 s{S_T0}, s{S_J}, 4", f"s_add_u32 s{S_T0}, s{S_T0}, 4", f"s_lshl_b32 s{S_K0}, 1, s{S_C}"],f"s{S_K0}"))
        Lp,tp=g.poll_issue(23,[f"s_lshl_b32 s{S_T0}, s{S_C}, 4", f"s_lshl_b32 s{S_T1}, s{S_C3}, 4"],w0only=True,off2=True)
        add(("F",4,0),Lp)
        addh(("F",4,3),g.poll_check("g",23,tp,[f"s_cmp_eq_u32 s{S_T0}, 16", f"s_cselect_b32 s{S_T1}, s{S_T1}, 0", f"s_cmp_eq_u32 s{S_T1}, 16"],w0only=True,two=True))
        Lg,gt=g.g_loads(); g.gt=gt
        for key,part in zip([("F",4,3),("F",5,0)],split(Lg,2)): add(key,part)
        if o.get("touch_p3",1):
            add(("F",1,0),g.touch_setup_w())
            wk=o.get("tw",[(1,1),(1,2),(2,1),(2,2),(3,1),(3,2),(4,1)]); ck=o.get("tc",[(4,2),(5,0),(5,1),(5,2)])
            for (a_,b_) in wk: add(("F",a_,b_),g.touch_one(R_T))
            add(("F",ck[0][0],ck[0][1]),g.touch_setup_c())
            for (a_,b_) in ck: add(("F",a_,b_),g.touch_one(R_T2))
        add(("F",6,2),g.p3_patterns2())
        Le0,te=g.poll_issue(30,[f"s_lshl_b32 s{S_T0}, s{S_J}, 4", f"s_add_u32 s{S_T0}, s{S_T0}, 4"])
        add(("F",6,3),Le0)
        Le1=g.poll_check("e",30,te,[f"s_lshl_b32 s{S_T1}, 1, s{S_C}", f"s_sub_u32 s{S_T1}, s{S_T1}, 1", f"s_and_b32 s{S_T0}, s{S_T0}, s{S_T1}", f"s_cmp_eq_u32 s{S_T0}, s{S_T1}"])
        Le2,et=g.e_loads(); g.et=et
        addh(("F",7,2),Le1)
        for key,part in zip([("F",7,2),("F",7,3)],split(Le2,2)): add(key,part)
    g.late2=late2
    g.ex=ex; g.extra_head=head; g.end_barrier=True
    if o.get("stamps"):
        def st():
            for key,idx in ((("S",0,0),2),(("F",0,0),3),(("S",2,0),4),(("S",4,0),5),(("S",6,0),6),(("F",4,0),7),(("F",7,3),8)):
                ex[key]=g.stamp(idx)+ex.get(key,[])
            if o.get("fine"):
                k=40
                for ch in range(3,8):
                    for st_ in range(4):
                        head[("F",ch,st_)]=g.stamp(k)+head.get(("F",ch,st_),[]); k+=1
        g.late3=st
    g.phase1(ex)
    p.add(g.stamp(9))
    tok={}
    pre,tiles,Sf,sf=g.ffn_epilogue(g.gt[:1])
    Ls,ss=g.ssm_epilogue(g.et,g.gt[1:],[mk(f"s_add_u32 s{S_T0}, s{S_RG}, 36864")])
    p.I("s_nop 7")
    p.add(pre)
    for i in range(7):
        p.add(tiles[i]); p.add(Sf[i])
    if o.get("cyc"): p.add(g.stamp(1))
    p.add(Ls)
    p.add(g.stamp(10))
    p.wait(vm=sf+ss); p.add(g.stamp(11)); p.I("s_barrier")
    p.add(g.flag_op("add",[f"s_lshl_b32 s{S_T0}, s{S_C}, 7", f"s_add_u32 s{S_T0}, s{S_T0}, {WS_CNT}", f"s_lshr_b32 s{S_K0}, s{S_J}, 2", f"s_lshl_b32 s{S_K0}, s{S_K0}, 3", f"s_lshl_b32 s{S_K0}, 1, s{S_K0}"],f"s{S_K0}",R=R_WS))
    if o.get("fine"): p.add(g.stamp(60))
    p.wait(lgkm=g.t_reads)
    for b in range(20):
        L,tok[("f",b)]=g.p3_dma_f(b,b); p.add(L)
    Lq,tq=g.poll_issue(30,[f"s_lshl_b32 s{S_T0}, s{S_C3}, 7", f"s_add_u32 s{S_T0}, s{S_T0}, {WS_CNT}"],R=R_WS)
    def group(gi):
        bs=range(4*gi,4*gi+4); L=[Wait(vm=tok[("f",4*gi+3)])]; rd=[]
        for b in bs:
            r=g.p3_rd_f(b if b<20 else b-20,g.blk_areg(b),True); rd+=r; L+=r
        L.append(Wait(lgkm=rd))
        if gi==0:
            for b in range(20,24):
                l,tok[("f",b)]=g.p3_dma_f(b,b-20); L+=l
        elif gi in (1,2,3):
            for k in (2*gi,2*gi+1):
                l,tok[("c",k)]=g.p3_dma_c(k); L+=l
        elif gi==5:
            for k in (0,1):
                l,tok[("c",k)]=g.p3_dma_c(k); L+=l
        return L
    G0=group(0); G1=group(1); G2=group(2); G3=group(3)
    G4=[Wait(vm=tok[("f",19)])]; rd4=[]
    for b in range(16,20):
        r=g.p3_rd_f(b,g.blk_areg(b),True); rd4+=r; G4+=r
    G4.append(Wait(lgkm=rd4))
    for b in range(24,28):
        l,tok[("f",b)]=g.p3_dma_f(b,b-8); G4+=l
    G5=group(5)
    p.add(G0)
    p.add(Lq)
    p.add(g.a_base())
    p.add(G1)
    npre=o.get("npre",2)
    rest=[G2,G3,G4,G5]
    for x in rest[:npre-2+0] if npre>2 else []: p.add(x)
    rest=rest[max(npre-2,0):]
    if o.get("fine"): p.add(g.stamp(61))
    p.add(g.poll_check("a",30,tq,[f"s_lshl_b32 s{S_T1}, s{S_W}, 3", f"s_lshr_b32 s{S_T0}, s{S_T0}, s{S_T1}", f"s_and_b32 s{S_T0}, s{S_T0}, 0xff", f"s_cmp_eq_u32 s{S_T0}, 4"],R=R_WS,sleep=0))
    g.p3_rest=rest
    p.add(g.stamp(12))
    g.phase3(tok)
    p.add(g.stamp(13))
    g.final()
    p.add(g.stamp(14))
    if o.get("stamps"): p.wait(vm_all=True)
    p.add(g.stamp(15))
    g.dump_stamps()
    g.finish()
    return g

if __name__=="__main__":
    opts=eval(sys.argv[2]) if len(sys.argv)>2 else {}
    g=build_full(opts=opts); t=g.text(); open(sys.argv[1] if len(sys.argv)>1 else "full.s","w").write(t); print(g.stats)
```

```python
import re

TRANS = ("v_exp_f32","v_log_f32","v_rcp_f32","v_rsq_f32","v_sqrt_f32","v_sin_f32","v_cos_f32","v_rcp_iflag_f32")

def _regs(tok):
    tok = tok.strip()
    neg = tok.lstrip("-")
    if neg.startswith("abs(") or neg.startswith("|"):
        neg = neg.replace("abs(","").replace(")","").replace("|","")
    tok = neg
    m = re.fullmatch(r"([vas])(\d+)", tok)
    if m: return [(m.group(1), int(m.group(2)))]
    m = re.fullmatch(r"([vas])\[(\d+):(\d+)\]", tok)
    if m: return [(m.group(1), i) for i in range(int(m.group(2)), int(m.group(3))+1)]
    if tok == "vcc": return [("s","vcc_lo"),("s","vcc_hi")]
    if tok in ("vcc_lo","vcc_hi","m0"): return [("s",tok)]
    if tok == "exec": return [("s","exec_lo"),("s","exec_hi")]
    if tok in ("exec_lo","exec_hi"): return [("s",tok)]
    return []

def _split_ops(s):
    out=[]; depth=0; cur=""
    for ch in s:
        if ch in "[(": depth+=1
        if ch in "])": depth-=1
        if ch=="," and depth==0: out.append(cur.strip()); cur=""
        else: cur+=ch
    if cur.strip(): out.append(cur.strip())
    return out

class Inst:
    __slots__=("text","op","kind","rd","wr","tok","waits","meta","ws","srcC","data")
    def __init__(self, text, kind=None, **meta):
        self.text=text; self.meta=meta; self.tok=None; self.waits=None; self.srcC=[]; self.data=[]
        self.rd=[]; self.wr=[]
        t=text.split(";")[0].strip()
        if t.endswith(":") or t=="" :
            self.op="label"; self.kind="label"; self.ws=0; return
        parts=t.split(None,1); op=parts[0]; self.op=op
        rest=parts[1] if len(parts)>1 else ""
        ops=_split_ops(rest)
        mods=""
        if ops:
            last=ops[-1].split()
            ops[-1]=last[0]; mods=" ".join(last[1:])
        self.ws=1
        R=lambda i: _regs(ops[i]) if i<len(ops) else []
        if op=="s_nop":
            self.kind="nop"; self.ws=int(ops[0],0)+1
        elif op in("s_waitcnt",):
            self.kind="wait"
        elif op=="s_barrier": self.kind="barrier"
        elif op.startswith("s_cbranch") or op=="s_branch" or op=="s_endpgm" or op=="s_sleep" or op=="s_setprio":
            self.kind="ctrl"
        elif op.startswith("s_load") or op in("s_memtime","s_memrealtime"):
            self.kind="smem"; self.wr=R(0); self.rd=R(1) if op.startswith("s_load") else []
        elif op.startswith("s_cmp") or op.startswith("s_bitcmp"):
            self.kind="salu"
            for i in range(len(ops)): self.rd+=R(i)
        elif op.startswith("s_"):
            self.kind="salu"; self.wr=R(0)
            for i in range(1,len(ops)): self.rd+=R(i)
            if "saveexec" in op: self.wr+=_regs("exec"); self.rd+=_regs("exec")
            if op in("s_addk_i32","s_mulk_i32"): self.rd+=R(0)
        elif op.startswith("v_mfma"):
            self.kind="mfma"; self.wr=R(0); self.rd=R(1)+R(2); self.srcC=R(3)
        elif op.startswith("v_"):
            self.kind="valu"
            if op.startswith("v_cmp"):
                self.wr=R(0)
                for i in range(1,len(ops)): self.rd+=R(i)
                if op.startswith("v_cmpx"): self.wr+=_regs("exec")
            elif op.startswith("v_permlane"):
                self.wr=R(0)+R(1); self.rd=R(0)+R(1)
            elif "_co_" in op:
                self.wr=R(0)+R(1)
                for i in range(2,len(ops)): self.rd+=R(i)
            else:
                self.wr=R(0)
                for i in range(1,len(ops)): self.rd+=R(i)
                if op.startswith("v_fmac") or op.startswith("v_dot2c") or op.startswith("v_pk_fmac") or op=="v_writelane_b32": self.rd+=R(0)
                if op.startswith("v_cndmask") and len(ops)==3: self.rd+=_regs("vcc")
                if "dpp" in op or "row_" in mods or "quad_perm" in mods or "wave_" in mods:
                    self.meta["dpp"]=True
                    self.rd+=R(0)
        elif op.startswith("ds_"):
            self.kind="ds"
            if op.startswith("ds_read") or op.startswith("ds_bpermute") or op.startswith("ds_swizzle"):
                self.wr=R(0)
                for i in range(1,len(ops)): self.rd+=R(i)
            else:
                for i in range(len(ops)): self.rd+=R(i)
                self.data=R(1)
        elif op.startswith("buffer_") or op.startswith("global_"):
            self.kind="vmem"
            lds = ("lds" in mods.split()) or ("_lds_" in op)
            self.meta["lds"]=lds
            if op in("buffer_wbl2","buffer_inv"):
                pass
            elif "load" in op and not lds:
                self.wr=R(0)
                for i in range(1,len(ops)): self.rd+=R(i)
            elif "load" in op and lds:
                for i in range(len(ops)): self.rd+=R(i)
                self.rd+=[("s","m0")]
            elif "atomic" in op:
                for i in range(len(ops)): self.rd+=R(i)
                if "sc0" in mods.split():
                    self.wr=R(0)
            else:
                for i in range(len(ops)): self.rd+=R(i)
                self.data = R(0) if op.startswith("buffer_") else R(1)
        else:
            raise ValueError("unknown op "+text)

class Wait:
    def __init__(self, vm=None, lgkm=None, vm_all=False, lgkm_all=False):
        self.vm=vm; self.lgkm=lgkm; self.vm_all=vm_all; self.lgkm_all=lgkm_all

class Prog:
    def __init__(self):
        self.items=[]
    def I(self, text, **meta):
        out=None
        for line in text.strip().split("\n"):
            line=line.strip()
            if not line: continue
            out=Inst(line, **meta); self.items.append(out)
        return out
    def add(self, item):
        if isinstance(item,(list,tuple)):
            for x in item: self.add(x)
        elif isinstance(item,str): self.I(item)
        else: self.items.append(item)
        return item
    def wait(self, vm=None, lgkm=None, vm_all=False, lgkm_all=False):
        self.items.append(Wait(vm,lgkm,vm_all,lgkm_all))

def mk(text, **meta): return Inst(text, **meta)

def resolve_waits(items):
    out=[]; vmq=[]; lgq=[]; done=set()
    for it in items:
        if isinstance(it,Wait):
            parts=[]
            def need(x): return [t for t in (x if isinstance(x,(list,tuple)) else [x]) if t.kind!="nop"]
            if it.vm_all: n=0
            elif it.vm is not None:
                idx=[vmq.index(t) for t in need(it.vm) if t in vmq]
                for t in need(it.vm):
                    assert (t in vmq) or (id(t) in done), "wait on vm token not issued yet: "+t.text
                n = len(vmq)-1-max(idx) if idx else None
            else: n=None
            if n is not None:
                n=min(n,63); k=len(vmq)-n
                if k>0 or it.vm_all:
                    for t in vmq[:max(k,0)]: done.add(id(t))
                    vmq=vmq[max(k,0):]
                    parts.append(f"vmcnt({n})")
            if it.lgkm_all: m=0
            elif it.lgkm is not None:
                idx=[lgq.index(t) for t in need(it.lgkm) if t in lgq]
                for t in need(it.lgkm):
                    assert (t in lgq) or (id(t) in done), "wait on lgkm token not issued yet: "+t.text
                m = len(lgq)-1-max(idx) if idx else None
                if m is not None and any(x.kind=="smem" for x in lgq): m=0
            else: m=None
            if m is not None:
                m=min(m,15); k=len(lgq)-m
                if k>0 or it.lgkm_all:
                    for t in lgq[:max(k,0)]: done.add(id(t))
                    lgq=lgq[max(k,0):]
                    parts.append(f"lgkmcnt({m})")
            if parts:
                w=Inst("s_waitcnt "+" ".join(parts)); w.meta["auto"]=True; out.append(w)
            continue
        if it.kind=="wait":
            m=re.search(r"vmcnt\((\d+)\)",it.text)
            if m:
                n=int(m.group(1)); k=len(vmq)-n
                if k>0:
                    for t in vmq[:k]: done.add(id(t))
                    vmq=vmq[k:]
            m=re.search(r"lgkmcnt\((\d+)\)",it.text)
            if m:
                n=int(m.group(1)); k=len(lgq)-n
                if k>0:
                    for t in lgq[:k]: done.add(id(t))
                    lgq=lgq[k:]
        if it.kind=="vmem": vmq.append(it)
        if it.kind in("ds","smem"): lgq.append(it)
        out.append(it)
    return out

def check_pending(items):
    vmq=[]; lgq=[]; errs=[]
    def pend():
        d={}
        for t in vmq+lgq:
            for r in t.wr: d[r]=t
        return d
    for it in items:
        if it.kind=="wait":
            m=re.search(r"vmcnt\((\d+)\)",it.text)
            if m:
                n=int(m.group(1)); vmq=vmq[max(len(vmq)-n,0):] if n else []
            m=re.search(r"lgkmcnt\((\d+)\)",it.text)
            if m:
                n=int(m.group(1))
                if any(x.kind=="smem" for x in lgq) and n>0: pass
                else: lgq=lgq[max(len(lgq)-n,0):] if n else []
            continue
        if it.kind in("label","nop","barrier","ctrl"): continue
        p=pend()
        for r in list(it.rd)+list(it.srcC)+list(it.wr):
            if r in p and not it.meta.get("allow_pending") and not (it.kind=="vmem" and p[r].kind=="vmem" and r in it.wr and r in (("a",250),("a",190),("v",24))):
                errs.append(f"PENDING {r} from [{p[r].text}] touched by [{it.text}]")
        if it.kind=="vmem": vmq.append(it)
        if it.kind in("ds","smem"): lgq.append(it)
    return errs

def mfma_passes(op):
    if "32x32x16" in op: return 8
    if "16x16x32" in op: return 4
    raise ValueError(op)

def pad_hazards(items, verbose=False):
    out=[]
    hist=[]
    pos=0
    def isv(r): return r[0] in "va"
    npad=0
    for it in items:
        if it.kind=="label":
            out.append(it); continue
        need=0
        rds=set(it.rd)|set(it.srcC); wrs=set(it.wr)
        for (p,ppos) in reversed(hist):
            dist=pos-ppos-p.ws
            if dist>=20: break
            req=0
            pw=set(p.wr)
            if p.kind=="valu":
                vw={r for r in pw if isv(r)}; sw={r for r in pw if r[0]=="s"}
                if it.kind=="mfma" and vw & rds: req=max(req,2)
                if it.kind=="valu":
                    if p.op in TRANS and (vw & rds): req=max(req,1)
                    if it.meta.get("dpp") and (vw & rds): req=max(req,2)
                    if it.op.startswith("v_permlane") and (vw & rds): req=max(req,2)
                    if it.op.startswith("v_readfirstlane") or it.op.startswith("v_readlane"):
                        if vw & rds: req=max(req,1)
                        if sw & rds: req=max(req,4)
                    if sw & rds: req=max(req,2)
                    if p.meta.get("opsel") and (vw & (rds|wrs)): req=max(req,1)
                if it.kind=="vmem" and (sw & rds): req=max(req,5)
                if it.kind in("salu",) and (sw & rds): req=max(req,1)
                if it.kind=="mfma" and any(r[1] in("exec_lo","exec_hi") for r in sw): req=max(req,4)
            if p.kind=="mfma":
                np_=mfma_passes(p.op); big={8:12,4:8}[np_]; ov={8:10,4:6}[np_]; war={8:7,4:3}[np_]
                if it.kind=="mfma":
                    if pw & set(it.rd): req=max(req,big)
                    if pw & set(it.srcC):
                        if not (it.srcC==p.wr and mfma_passes(it.op)==np_): req=max(req,ov)
                    elif pw & wrs: req=max(req,big)
                elif it.kind in("valu","vmem","ds"):
                    if pw & (rds|wrs): req=max(req,big)
                    if it.kind=="valu" and (set(p.srcC) & wrs): req=max(req,war)
            if p.kind in("vmem",) and p.data and len(p.data)>=3:
                if set(p.data) & wrs:
                    req=max(req, 2 if it.kind=="valu" else 1)
            if p.kind=="ds" and p.data and len(p.data)>=3 and (set(p.data)&wrs) and it.kind=="valu":
                req=max(req,2)
            if p.kind=="salu" and ("s","m0") in pw and it.kind=="vmem" and it.meta.get("lds"): req=max(req,1)
            if req>dist: need=max(need,req-dist)
        while need>0:
            n=min(need,16); nop=Inst(f"s_nop {n-1}"); out.append(nop); hist.append((nop,pos)); pos+=nop.ws; need-=n; npad+=1
        out.append(it); hist.append((it,pos)); pos+=it.ws
        if len(hist)>64: hist=hist[-40:]
    return out,npad

def check_srd(items):
    last={}; errs=[]
    for it in items:
        if it.kind in("label",): continue
        if it.kind=="vmem" and it.op.startswith("buffer_") and it.op not in("buffer_wbl2","buffer_inv"):
            m=re.search(r"s\[(\d+):(\d+)\]", it.text)
            a=int(m.group(1))
            for k in range(4):
                w=last.get(a+k)
                if w is None: errs.append(f"SRD word s{a+k} never written: {it.text}"); continue
                ops=_split_ops(w.text.split(None,1)[1])
                if k<2:
                    ok = w.op=="s_getpc_b64" or (w.op in("s_add_u32","s_addc_u32") and re.fullmatch(r"s(36|37)",ops[1]) is not None) or (w.op in("s_mov_b32","s_cselect_b32") and all(re.fullmatch(r"s(\d+)",o) and 4<=int(o[1:])<=37 and (int(o[1:])%2)==k for o in ops[1:]))
                elif k==2: ok = w.op=="s_mov_b32" and not re.fullmatch(r"s\d+",ops[1])
                else: ok = w.op=="s_mov_b32" and ops[1]=="0x20000"
                if not ok: errs.append(f"SRD word s{a+k} bad writer [{w.text}] for [{it.text}]")
        for r in it.wr:
            if r[0]=="s" and isinstance(r[1],int):
                last[r[1]]=it
                if it.kind!="smem" and 4<=r[1]<=37 and r[1] not in (6,7,8,9,18,19,30,31): errs.append(f"pointer register s{r[1]} overwritten by [{it.text}]")
    return errs

def check_slow_labels(items):
    errs=[]
    for i,it in enumerate(items):
        if it.kind=="ctrl" and "L_slow_" in it.text:
            name=it.text.split("L_slow_")[1].strip()
            nx=items[i+1]
            if not (nx.kind=="label" and nx.text.strip()==f"L_back_{name}:"): errs.append(f"slow-path return label does not follow [{it.text}] but [{nx.text}]")
    return errs

_SCC_WR=("s_cmp","s_bitcmp","s_add_","s_addc","s_sub_","s_subb","s_and_","s_or_","s_xor_","s_lshl","s_lshr","s_ashr","s_bfe","s_andn2","s_orn2","s_not","s_min","s_max","s_addk","s_abs")
def check_scc(items):
    errs=[]; last=None
    for it in items:
        if it.kind=="label":
            continue
        if it.op.startswith("s_cselect") or it.op.startswith("s_cbranch_scc"):
            if last is None or not last.op.startswith("s_cmp"): errs.append(f"SCC consumer [{it.text}] sees writer [{last.text if last else None}]")
        if it.op.startswith("s_addc"):
            if last is None or not last.op.startswith("s_add_u32"): errs.append(f"SCC consumer [{it.text}] sees writer [{last.text if last else None}]")
        if any(it.op.startswith(x) for x in _SCC_WR): last=it
    return errs

def finalize(prog):
    items=resolve_waits(prog.items)
    items,npad=pad_hazards(items)
    errs=check_pending(items)+check_srd(items)+check_slow_labels(items)+check_scc(items)
    return items,npad,errs

def emit(items):
    L=[]
    for it in items:
        L.append(it.text if it.kind=="label" else "    "+it.text)
    return "\n".join(L)+"\n"

def interleave(backbone, fillers, start=0, end=None, per=None):
    n=len(backbone); end=n if end is None else end
    slots=[[] for _ in range(n)]
    m=len(fillers); span=end-start
    for i,f in enumerate(fillers):
        k=start+(i*span)//max(m,1)
        slots[min(k,n-1)].append(f)
    out=[]
    for b,s in zip(backbone,slots):
        out.append(b); out+=s
    return out
```

```python
import sys
from asmb import *

KNAME="gated_mix__ssm_conv_s5__glu_gated_geglu__prompt_kernel"

WS_A=0; WS_E=0xB00000; WS_G=0xB10000; WS_CNT=0xB18000; WS_DBG=0xB20000; WS_SIZE=0x4000000
OOB=0x7ff00000
WSLOT=28928; WUP=14464
L_W=0; L_B=86784; L_X=119552; L_EX=152320; L_GL=154368
P_X,P_LRE,P_LIM,P_BRE,P_BIM,P_CRE,P_CIM,P_LDT=4,6,8,10,12,14,16,18
P_DSK,P_BX,P_WG,P_WU,P_WD,P_GW,P_OUT,P_DBG=20,22,24,26,28,30,32,34
P_WS=36
S_C,S_J,S_W,S_C3,S_RH,S_CB=38,39,40,41,42,43
R_X,R_B,R_W,R_WS,R_DBG,R_T,R_T2=44,48,52,56,60,64,68
S_XO,S_BO,S_WO=72,73,74
S_XROW,S_BROW,S_WROW=75,76,77
S_XM,S_BM,S_WM=78,79,80
S_T0,S_T1,S_T2,S_T3=81,82,83,84
S_GT=85
S_M0=86
S_CNT=88
S_K0=89
S_AO=91
V_AO=22
S_RG,S_FO,S_CO=92,93,94
S_TB,S_PO=95,3
S_A0=96
S_R0,S_D0=98,99
REGION=40960
V_FD=232
V_CD=234
V_FR=238
V_CR=[240,241,242,243]
V_OO=23
V_ST=247
A_JUNK=250
V_TCH=0
S_TW=95
S_CO1=95
V_JUNK=24
SGT=[6,7,8,9,18,19,30,31]
A_P3=64
A_KS=48
V_TID,V_L=0,1
V_XG=2
V_BG=6
V_WG=8
V_WA,V_WB=15,16
V_BA=17
V_XA=21
V_T=25
V_ACC=32
V_SRE,V_SIM=144,160
V_WF=176
V_BF=232
V_U=248
A_X=0
A_BF=128
A_K=160

def srd(p, reg, ptr, size):
    p.I(f"s_mov_b32 s{reg}, s{ptr}\ns_mov_b32 s{reg+1}, s{ptr+1}\ns_mov_b32 s{reg+2}, {size}\ns_mov_b32 s{reg+3}, 0x20000")

def sr(r): return f"s[{r}:{r+3}]"
def vr(r,n): return f"v[{r}:{r+n-1}]" if n>1 else f"v{r}"
def ar(r,n): return f"a[{r}:{r+n-1}]" if n>1 else f"a{r}"

class Gen:
    def __init__(self, stop_after=None, opts=None):
        self.p=Prog(); self.stop=stop_after; self.o=opts or {}; self.slow=[]
    def prologue_a(self):
        p=self.p
        p.I("s_cmp_ge_u32 s2, 256\ns_cbranch_scc1 L_exit")
        p.I("s_load_dwordx16 s[4:19], s[0:1], 0"); p.I("s_load_dwordx16 s[20:35], s[0:1], 64"); p.I("s_load_dwordx2 s[36:37], s[0:1], 128")
        p.I(f"v_and_b32 v{V_L}, 63, v0\nv_lshrrev_b32 v{V_T}, 6, v0")
        p.I(f"s_lshr_b32 s{S_C}, s2, 4\ns_and_b32 s{S_J}, s2, 15")
        p.I(f"v_readfirstlane_b32 s{S_W}, v{V_T}")
        l=f"v{V_L}"; T=V_T
        p.I(f"v_lshrrev_b32 v{T}, 5, {l}\nv_lshlrev_b32 v{T}, 4, v{T}\nv_bfe_u32 v{T+1}, {l}, 3, 1\nv_lshl_add_u32 v{T}, v{T+1}, 3, v{T}\nv_bfe_u32 v{T+1}, {l}, 4, 1\nv_add_u32 v{T}, v{T}, v{T+1}\nv_lshlrev_b32 v{T}, 10, v{T}")
        p.I(f"v_and_b32 v{T+1}, 7, {l}\nv_lshrrev_b32 v{T+2}, 4, {l}\nv_xor_b32 v{T+3}, v{T+1}, v{T+2}\nv_xor_b32 v{T+4}, 4, v{T+3}")
        p.I(f"v_lshlrev_b32 v{T+3}, 4, v{T+3}\nv_lshlrev_b32 v{T+4}, 4, v{T+4}")
        for q in range(4):
            p.I(f"v_add_u32 v{V_XG+q}, v{T}, v{T+3+(q&1)}")
            if q: p.I(f"v_add_u32 v{V_XG+q}, {1024*q}, v{V_XG+q}")
        p.I(f"v_lshrrev_b32 v{T}, 3, {l}\nv_lshlrev_b32 v{T}, 10, v{T}")
        p.I(f"v_add_u32 v{V_BG}, v{T}, v{T+3}\nv_add_u32 v{V_BG+1}, v{T}, v{T+4}\nv_add_u32 v{V_BG+1}, {7*1024}, v{V_BG+1}")
        p.I(f"s_lshl_b32 s{S_T0}, s{S_W}, 12\ns_add_u32 s{S_XM}, s{S_T0}, {L_X}")
        p.I(f"s_lshl_b32 s{S_T1}, s{S_C}, 2\ns_add_u32 s{S_T1}, s{S_T1}, s{S_W}\ns_lshl_b32 s{S_XROW}, s{S_T1}, 15")
        p.I(f"s_and_b32 s{S_T1}, s{S_W}, 1\ns_lshr_b32 s{S_T2}, s{S_W}, 1")
        p.I(f"s_lshl_b32 s{S_T3}, s{S_J}, 1\ns_add_u32 s{S_T3}, s{S_T3}, s{S_T1}\ns_lshl_b32 s{S_BROW}, s{S_T3}, 14")
        p.I(f"s_lshl_b32 s{S_BM}, s{S_T2}, 12\ns_lshl_b32 s{S_T3}, s{S_T1}, 11\ns_add_u32 s{S_BM}, s{S_BM}, s{S_T3}\ns_add_u32 s{S_BM}, s{S_BM}, {L_B}")
        p.I(f"s_mul_i32 s{S_WROW}, s{S_T1}, {32*3584}\ns_mul_i32 s{S_T3}, s{S_J}, 224\ns_add_u32 s{S_WROW}, s{S_WROW}, s{S_T3}")
        p.I(f"s_mul_i32 s{S_WM}, s{S_T2}, {WUP}\ns_mul_i32 s{S_T3}, s{S_T1}, 7168\ns_add_u32 s{S_WM}, s{S_WM}, s{S_T3}")
        p.wait(lgkm_all=True)
        srd(p,R_X,P_X,2048*1024)
        p.I(f"s_cmp_eq_u32 s{S_T2}, 0")
        p.I(f"s_cselect_b32 s{R_B}, s{P_BRE}, s{P_BIM}\ns_cselect_b32 s{R_B+1}, s{P_BRE+1}, s{P_BIM+1}\ns_mov_b32 s{R_B+2}, {512*1024}\ns_mov_b32 s{R_B+3}, 0x20000")
        p.I(f"s_cselect_b32 s{R_W}, s{P_WG}, s{P_WU}\ns_cselect_b32 s{R_W+1}, s{P_WG+1}, s{P_WU+1}\ns_mov_b32 s{R_W+2}, {512*3584}\ns_mov_b32 s{R_W+3}, 0x20000")
    def prologue_b(self):
        p=self.p; l=f"v{V_L}"; T=V_T
        p.I(f"s_mov_b32 s{S_T0}, 4682\ns_mov_b32 s{S_T1}, 3584")
        for i in range(7):
            p.I(f"v_add_u32 v{T}, {64*i}, {l}\nv_mul_lo_u32 v{T+1}, v{T}, s{S_T0}\nv_lshrrev_b32 v{T+1}, 16, v{T+1}")
            p.I(f"v_mul_u32_u24 v{T+2}, 14, v{T+1}\nv_sub_u32 v{T+2}, v{T}, v{T+2}\nv_lshlrev_b32 v{T+2}, 4, v{T+2}")
            p.I(f"v_mul_lo_u32 v{T+1}, v{T+1}, s{S_T1}\nv_add_u32 v{V_WG+i}, v{T+1}, v{T+2}")
            if i&3: p.I(f"v_subrev_u32 v{V_WG+i}, {1024*(i&3)}, v{V_WG+i}")
    def prologue_c(self):
        p=self.p; l=f"v{V_L}"; T=V_T
        p.I(f"v_lshrrev_b32 v{T}, 5, {l}\nv_lshlrev_b32 v{T}, 3, v{T}\nv_bfe_u32 v{T+1}, {l}, 2, 2\nv_add_u32 v{T}, v{T}, v{T+1}\nv_mul_u32_u24 v{T}, 224, v{T}")
        p.I(f"v_bfe_u32 v{T+1}, {l}, 1, 1\nv_mul_u32_u24 v{T+1}, {WUP}, v{T+1}\nv_add_u32 v{T}, v{T}, v{T+1}")
        p.I(f"v_bfe_u32 v{T+1}, {l}, 4, 1\nv_lshlrev_b32 v{T+1}, 4, v{T+1}\nv_add_u32 v{T}, v{T}, v{T+1}")
        p.I(f"v_and_b32 v{T+1}, 1, {l}\nv_lshlrev_b32 v{T+1}, 3, v{T+1}\nv_add_u32 v{V_WA}, v{T}, v{T+1}\nv_add_u32 v{V_WB}, {2*WSLOT}, v{V_WA}")
        p.I(f"v_and_b32 v{T}, 31, {l}\nv_lshlrev_b32 v{T+1}, 7, v{T}\nv_bfe_u32 v{T+2}, {l}, 1, 3\nv_lshrrev_b32 v{T+3}, 5, {l}\nv_xor_b32 v{T+2}, v{T+2}, v{T+3}")
        p.I(f"s_lshl_b32 s{S_T0}, s{S_W}, 12\ns_add_u32 s{S_T0}, s{S_T0}, {L_X}")
        for s in range(4):
            p.I(f"v_xor_b32 v{T+3}, {2*s}, v{T+2}\nv_lshlrev_b32 v{T+3}, 4, v{T+3}\nv_add_u32 v{T+3}, v{T+1}, v{T+3}\nv_add_u32 v{V_BA+s}, {L_B}, v{T+3}\nv_add_u32 v{V_XA+s}, s{S_T0}, v{T+3}")
        srd(p,R_WS,P_WS,WS_SIZE); srd(p,R_DBG,P_DBG,256)
        p.I(f"s_lshr_b32 s{S_T0}, s2, 6\ns_lshl_b32 s{S_T0}, s{S_T0}, 2\ns_bfe_u32 s{S_T1}, s2, 0x20001\ns_add_u32 s{S_C3}, s{S_T0}, s{S_T1}")
        p.I(f"s_and_b32 s{S_RH}, s2, 1\ns_bfe_u32 s{S_CB}, s2, 0x30003")

    def dma_x(self, ch):
        slot=ch&1
        L=[mk(f"s_add_u32 m0, s{S_XM}, {slot*16384}"), mk(f"s_add_u32 s{S_XO}, s{S_XROW}, {ch*128}")]
        toks=[mk(f"buffer_load_dwordx4 v{V_XG+q}, {sr(R_X)}, s{S_XO} offen offset:{1024*q} lds") for q in range(4)]
        return L+toks, toks
    def dma_b(self, ch):
        slot=(ch>>1)&1
        L=[mk(f"s_add_u32 m0, s{S_BM}, {slot*16384+(ch&1)*8192}"), mk(f"s_add_u32 s{S_BO}, s{S_BROW}, {ch*128}")]
        toks=[mk(f"buffer_load_dwordx4 v{V_BG+i}, {sr(R_B)}, s{S_BO} offen offset:{1024*i} lds") for i in range(2)]
        return L+toks, toks
    def dma_w(self, ch):
        slot=ch%3
        L=[mk(f"s_add_u32 m0, s{S_WM}, {slot*WSLOT}"), mk(f"s_add_u32 s{S_WO}, s{S_WROW}, {ch*64*3584}")]
        toks=[]
        for i in range(7):
            if i==4: L.append(mk(f"s_add_u32 m0, s{S_WM}, {slot*WSLOT+4096}"))
            t=mk(f"buffer_load_dwordx4 v{V_WG+i}, {sr(R_W)}, s{S_WO} offen offset:{1024*(i&3)} lds"); toks.append(t); L.append(t)
        return L,toks
    def rd_x(self, ch):
        return [mk(f"ds_read_b128 {ar(A_X+16*ch+4*s,4)}, v{V_XA+s} offset:{(ch&1)*16384}") for s in range(4)]
    def rd_b(self, ch, d, bset):
        base=((ch>>1)&1)*16384+(ch&1)*8192
        L=[]
        for e in range(2):
            for m in range(2):
                L.append(mk(f"ds_read_b128 {ar(A_BF+16*bset+8*e+4*m,4)}, v{V_BA+2*d+e} offset:{base+4096*m}"))
        return L
    def rd_w(self, ch, s, wset):
        slot=ch%3; va=V_WB if slot==2 else V_WA; base=0 if slot==2 else slot*WSLOT
        L=[]
        for i in range(7):
            for q in range(2):
                d=V_WF+28*wset+4*i+2*q
                L.append(mk(f"ds_read_b64_tr_b16 {vr(d,2)}, v{va} offset:{base+(16*s+4*q)*224+32*i}"))
        return L
    def mf_s(self, ch, d, bset):
        L=[]
        for e in range(2):
            s=2*d+e
            x=ar(A_X+16*ch+4*s,4)
            first=(ch==0 and s==0)
            for m,a in enumerate((V_SRE,V_SIM)):
                L.append(mk(f"v_mfma_f32_32x32x16_bf16 {vr(a,16)}, {x}, {ar(A_BF+16*bset+8*e+4*m,4)}, {'0' if first else vr(a,16)}"))
        return L
    def mf_f(self, ch, s, wset):
        x=ar(A_X+16*ch+4*s,4)
        first=(ch==0 and s==0)
        return [mk(f"v_mfma_f32_32x32x16_bf16 {vr(V_ACC+16*i,16)}, {vr(V_WF+28*wset+4*i,4)}, {x}, {'0' if first else vr(V_ACC+16*i,16)}") for i in range(7)]

    def phase1(self, extra):
        p=self.p
        X={};B={};W={}
        def issue(lst):
            for kind,ch in lst:
                L,t={"x":self.dma_x,"b":self.dma_b,"w":self.dma_w}[kind](ch); p.add(L); {"x":X,"b":B,"w":W}[kind][ch]=t
        fs=lambda i: p.add(self.stamp(i)) if self.o.get("fine") else None
        fs(32)
        w0_late=self.o.get("w0_late",1)
        for tokn in self.o.get("pro","x0,b0,sm,x1,b1,pb,pc,cp,tw").split(","):
            if tokn[0] in "xbw" and tokn[1:].isdigit(): issue([(tokn[0],int(tokn[1:]))]); w0_late = 0 if tokn=="w0" else w0_late
            elif tokn=="sm": self.small_loads()
            elif tokn=="pb": self.prologue_b()
            elif tokn=="pc": self.prologue_c()
            elif tokn=="cp":
                if not self.o.get("nocodepf"): self.code_prefetch()
            elif tokn=="tw": p.add(self.touch_w())
            else: raise ValueError(tokn)
        fs(36)
        self.late(); self.late2()
        if hasattr(self,"late3"): self.late3()
        if not self.o.get("cyc"): p.add(self.stamp(1))
        steps=[]
        for g in range(4):
            for ch in (2*g,2*g+1):
                for d in range(2): steps.append(("S",ch,d))
            for s in range(4): steps.append(("F",g,s))
        for ch in range(4,8):
            for s in range(4): steps.append(("F",ch,s))
        setof={}; cnt={"S":0,"F":0}
        for st in steps:
            setof[st]=cnt[st[0]]&1; cnt[st[0]]+=1
        reads={}
        for st in steps:
            k,ch,s=st
            reads[st]=self.rd_b(ch,s,setof[st]) if k=="S" else self.rd_w(ch,s,setof[st])
        xr={ch:self.rd_x(ch) for ch in range(8)}
        rfill={st:[] for st in steps}
        fill={st:[] for st in steps}
        head={st:[] for st in steps}
        for i,st in enumerate(steps[:-1]):
            nx=steps[i+1]
            if st[0]=="S" and nx[0]=="F":
                rfill[steps[i-1]]+=reads[nx][:6]; rfill[st]+=reads[nx][6:]
            else: rfill[st]=reads[nx]+rfill[st]
        p.wait(vm=X[0]+B[0]); p.I("s_barrier")
        p.add(xr[0][0:2]); p.add(reads[steps[0]][:2]); p.add(xr[0][2:]); p.add(reads[steps[0]][2:])
        if w0_late:
            L,W[0]=self.dma_w(0); fill[("S",0,0)]+=L
        L,B[2]=self.dma_b(2); fill[("S",0,0)]+=L
        L,B[3]=self.dma_b(3); fill[("S",1,0)]+=L
        L,W[1]=self.dma_w(1); fill[("S",1,1)]+=L[:6]; w1b=L[6:]
        head[("S",0,1)]+=[Wait(vm=X[1]+B[1]), mk("s_barrier")]
        rfill[("S",0,1)]=xr[1][0:2]+rfill[("S",0,1)]+xr[1][2:]
        L,X[2]=self.dma_x(2); fill[("S",0,1)]+=[Wait(lgkm=xr[0])]+L
        L,X[3]=self.dma_x(3); fill[("S",1,1)]+=[Wait(lgkm=xr[1])]+L
        head[("S",1,0)]+=[Wait(vm=W[0]), mk("s_barrier")]
        fill[("F",0,0)]+=w1b
        L,W[2]=self.dma_w(2); fill[("F",0,1)]+=L[:6]; fill[("F",0,2)]+=L[6:]
        for g in range(1,4):
            a,b=2*g,2*g+1
            rfill[("F",g-1,1)]+=[Wait(vm=X[a]+X[b])]+xr[a]+xr[b]
            last=("F",g-1,3)
            head[last]+=[Wait(vm=B[a]+B[b]+W[g], lgkm=reads[last]+xr[a]+xr[b]), mk("s_barrier")]
            if g<3:
                L,X[a+2]=self.dma_x(a+2); fill[last]+=L
                L,X[b+2]=self.dma_x(b+2); fill[("S",a,0)]+=L
                L,B[a+2]=self.dma_b(a+2); fill[("S",a,1)]+=L
                L,B[b+2]=self.dma_b(b+2); fill[("S",b,0)]+=L
            L,W[g+2]=self.dma_w(g+2); fill[("F",g,0)]+=L
        for ch in range(4,8):
            last=("F",ch-1,3)
            head[last]+=[Wait(vm=W[ch], lgkm=reads[last]), mk("s_barrier")]
            if ch+2<8:
                L,W[ch+2]=self.dma_w(ch+2); fill[last]+=L[:6]; fill[("F",ch,0)]+=L[6:]
        for k,v in getattr(self,"extra_head",{}).items(): head[k]=list(v)+head[k]
        if getattr(self,"end_barrier",False):
            last=("F",7,3); head[last]+=[Wait(lgkm=reads[last]), mk("s_barrier")]
        self.steps=steps
        gap0={}; mfs={}; ng=0
        for st in steps:
            k,ch,s_=st
            mfs[st]=self.mf_s(ch,s_,setof[st]) if k=="S" else self.mf_f(ch,s_,setof[st])
            gap0[st]=ng; ng+=len(mfs[st])
        slots=[[] for _ in range(ng)]; free=[24.0]*ng
        cost=lambda it: sum(cost(x) for x in it) if isinstance(it,list) else (0 if isinstance(it,Wait) and False else self.cost2(it))
        def put(g,it): slots[g].append(it); free[g]-=cost(it)
        for st in steps:
            if gap0[st]>0: free[gap0[st]-1]-=sum(cost(x) for x in head[st])+4
        for st in steps:
            n=len(mfs[st]); rf=rfill[st]
            per=max(3 if st[0]=="F" else 2, -(-len(rf)//n))
            for t,it in enumerate(rf): put(gap0[st]+min(t//per,n-1),it)
        def atoms(items):
            out=[]
            for it in items:
                glue = out and (not isinstance(it,(Wait,list))) and (it.kind=="label" or it.op.startswith("s_cselect") or it.op.startswith("s_cbranch") or it.op.startswith("s_addc"))
                if glue: out[-1]=(out[-1] if isinstance(out[-1],list) else [out[-1]])+[it]
                else: out.append(it)
            return out
        def spread(items,g0,g1):
            at=atoms(items)
            C=sum(cost(x) for x in at)
            F=[max(free[g],0.0) for g in range(g0,g1)]
            tot=sum(F)
            if C>tot:
                ex_=(C-tot)/(g1-g0); F=[f+ex_ for f in F]; tot=C
            scale=C/tot if tot>0 else 1
            acc=0; g=g0; cap=F[0]*scale if scale<1 and self.o.get("even",0) else F[0]; last=g0
            cum=0
            for it in at:
                c=cost(it)
                while g<g1-1 and cum+c/2>cap:
                    g+=1; cap+=F[g-g0]*(scale if self.o.get("even",0) else 1)
                put(g,it); cum+=c; last=g
            return last
        endgap=lambda st: gap0[st]+len(mfs[st])
        lastg=0
        for st in steps:
            if fill[st]:
                g0=max(gap0[st],lastg); lastg=spread(fill[st],g0,max(endgap(st),g0+1))
        lastg=0
        for (items,a,b) in self.segs:
            g0=max(gap0[a],lastg); g1=max(endgap(b),g0+1)
            lastg=spread(items,g0,g1)
        for st in steps:
            k,ch,s=st
            p.add(head[st])
            r=reads[st]
            for m,ins in enumerate(mfs[st]):
                if k=="S":
                    if m==0: p.wait(lgkm=r[0:2]+[xr[ch][2*s]])
                    if m==2: p.wait(lgkm=r[2:4]+[xr[ch][2*s+1]])
                else:
                    if m==0: p.wait(lgkm=r[0:6]+[xr[ch][s]])
                    if m==3: p.wait(lgkm=r[6:14])
                p.add(ins)
                p.add(slots[gap0[st]+m])

    def cost2(self,it):
        if isinstance(it,Wait): return 4
        if it.kind=="label": return 0
        if it.op in TRANS: return 8
        if it.kind=="vmem": return self.o.get("vmcost",16)
        return 4

    LOG2E=1.4426950408889634
    def fconst(self, sreg, val):
        import struct
        return f"s_mov_b32 s{sreg}, 0x{struct.unpack('<I',struct.pack('<f',val))[0]:08x}"

    def small_loads(self):
        p=self.p; l=f"v{V_L}"
        srd(p,R_T,P_GW,1024)
        p.I(f"v_lshlrev_b32 v{V_AO}, 4, {l}")
        p.I(f"s_lshl_b32 s{S_T0}, s{S_C}, 7\ns_lshl_b32 s{S_T1}, s{S_J}, 3\ns_add_u32 s{S_T0}, s{S_T0}, s{S_T1}\ns_lshl_b32 s{S_T1}, s{S_W}, 1\ns_add_u32 s{S_GT}, s{S_T0}, s{S_T1}")
        p.I(f"s_lshl_b32 s{S_T0}, s{S_GT}, 10")
        X0,X1,GW=232,236,240
        self.gl=[p.I(f"buffer_load_dwordx4 {vr(X0,4)}, v{V_AO}, {sr(R_X)}, s{S_T0} offen"),
                 p.I(f"buffer_load_dwordx4 {vr(X1,4)}, v{V_AO}, {sr(R_X)}, s{S_T0} offen offset:1024"),
                 p.I(f"buffer_load_dwordx4 {vr(GW,4)}, v{V_AO}, {sr(R_T)}, 0 offen")]
        p.I(f"v_and_b32 v{V_T}, 31, {l}\ns_lshl_b32 s{S_T1}, s{S_J}, 6\nv_lshlrev_b32 v{V_T}, 1, v{V_T}\nv_add_u32 v{V_T}, s{S_T1}, v{V_T}")
        self.kl=[]
        for i,ptr in enumerate((P_LRE,P_LIM,P_LDT)):
            srd(p,R_T2,ptr,1024)
            self.kl.append(p.I(f"buffer_load_ushort v{244+i}, v{V_T}, {sr(R_T2)}, 0 offen"))

    def gate_items(self):
        l=f"v{V_L}"; L=[]; A=lambda x: L.append(mk(x))
        X0,X1,GW=232,236,240
        A0,A1=248,249; u=250
        L.append(Wait(vm=self.gl))
        for i in range(4):
            A(f"v_lshlrev_b32 v{u+2}, 16, v{GW+i}"); A(f"v_and_b32 v{u+3}, 0xffff0000, v{GW+i}")
            for X,Ac in ((X0,A0),(X1,A1)):
                A(f"v_lshlrev_b32 v{u}, 16, v{X+i}"); A(f"v_and_b32 v{u+1}, 0xffff0000, v{X+i}"); A(f"v_mul_f32 v{u}, v{u}, v{u+2}"); A(f"v_mul_f32 v{u+1}, v{u+1}, v{u+3}")
                A(f"v_cvt_pk_bf16_f32 v{X+i}, v{u}, v{u+1}"); A(f"v_lshlrev_b32 v{u}, 16, v{X+i}"); A(f"v_and_b32 v{u+1}, 0xffff0000, v{X+i}")
                if i==0: A(f"v_add_f32 v{Ac}, v{u}, v{u+1}")
                else: A(f"v_add_f32 v{Ac}, v{Ac}, v{u}"); A(f"v_add_f32 v{Ac}, v{Ac}, v{u+1}")
        for sh in (8,4,2,1):
            for Ac in (A0,A1): A(f"v_add_f32_dpp v{Ac}, v{Ac}, v{Ac} row_ror:{sh} row_mask:0xf bank_mask:0xf")
        for Ac,sb in ((A0,0),(A1,4)):
            for q in range(4): A(f"v_readlane_b32 s{SGT[sb+q]}, v{Ac}, {16*q}")
        for Ac,sb in ((A0,0),(A1,4)):
            A(f"v_mov_b32 v{Ac}, s{SGT[sb]}"); A(f"v_add_f32 v{Ac}, s{SGT[sb+1]}, v{Ac}"); A(f"v_add_f32 v{Ac}, s{SGT[sb+2]}, v{Ac}"); A(f"v_add_f32 v{Ac}, s{SGT[sb+3]}, v{Ac}")
        A(f"v_cmp_eq_u32 vcc, 1, {l}"); A(f"v_cndmask_b32 v{A0}, v{A0}, v{A1}, vcc")
        A(f"v_cvt_pk_bf16_f32 v{A0}, v{A0}, v{A0}"); A(f"v_lshlrev_b32 v{A0}, 16, v{A0}")
        A(self.fconst(SGT[0],-self.LOG2E))
        A(f"v_mul_f32 v{A0}, s{SGT[0]}, v{A0}"); A(f"v_exp_f32 v{A0}, v{A0}"); A(f"v_add_f32 v{A0}, 1.0, v{A0}"); A(f"v_rcp_f32 v{A0}, v{A0}")
        A(f"v_cvt_pk_bf16_f32 v{A0}, v{A0}, v{A0}"); A(f"v_lshlrev_b32 v{A0}, 16, v{A0}")
        A(f"v_lshlrev_b32 v{u}, 3, {l}"); A(f"s_lshl_b32 s{SGT[0]}, s{S_C}, 7"); A(f"s_lshr_b32 s{SGT[1]}, s{S_J}, 1"); A(f"s_lshl_b32 s{SGT[1]}, s{SGT[1]}, 4"); A(f"s_add_u32 s{SGT[0]}, s{SGT[0]}, s{SGT[1]}")
        A(f"s_lshl_b32 s{SGT[1]}, s{S_W}, 2"); A(f"s_add_u32 s{SGT[0]}, s{SGT[0]}, s{SGT[1]}"); A(f"s_and_b32 s{SGT[1]}, s{S_J}, 1"); A(f"s_add_u32 s{SGT[0]}, s{SGT[0]}, s{SGT[1]}")
        A(f"s_lshl_b32 s{SGT[0]}, s{SGT[0]}, 2"); A(f"s_add_u32 s{SGT[0]}, s{SGT[0]}, {WS_G}"); A(f"v_add_u32 v{u}, s{SGT[0]}, v{u}")
        A(f"v_mov_b32 v{u+1}, {OOB}"); A(f"v_cmp_gt_u32 vcc, 2, {l}"); A(f"v_cndmask_b32 v{u}, v{u+1}, v{u}, vcc")
        A(f"buffer_store_dword v{A0}, v{u}, {sr(R_WS)}, 0 offen sc1"); self.g_store=L[-1]
        A(f"s_lshl_b32 s{SGT[0]}, s{S_C}, 7"); A(f"s_add_u32 s{SGT[0]}, s{SGT[0]}, {WS_CNT}"); A(f"s_or_b32 s{SGT[1]}, s{S_J}, s{S_W}"); A(f"s_cmp_eq_u32 s{SGT[1]}, 0"); A(f"s_cselect_b32 s{SGT[0]}, s{SGT[0]}, {OOB}")
        A(f"v_mov_b32 v{u}, {OOB}"); A(f"v_mov_b32 v{u+1}, s{SGT[0]}"); A(f"v_cmp_eq_u32 vcc, 0, {l}"); A(f"v_cndmask_b32 v{u}, v{u}, v{u+1}, vcc"); A(f"v_mov_b32 v{u+2}, 0"); A(f"v_mov_b32 v{u+3}, 0")
        A(f"buffer_store_dwordx2 {vr(u+2,2)}, v{u}, {sr(R_WS)}, 0 offen sc1")
        self.c_store=L[-1]
        A(f"s_lshl_b32 s{SGT[0]}, s{S_C}, 12"); A(f"s_lshl_b32 s{SGT[1]}, s{S_J}, 8"); A(f"s_add_u32 s{SGT[0]}, s{SGT[0]}, s{SGT[1]}"); A(f"s_add_u32 s{SGT[0]}, s{SGT[0]}, {WS_E}")
        A(f"s_cmp_eq_u32 s{S_W}, 0"); A(f"s_cselect_b32 s{SGT[0]}, s{SGT[0]}, {OOB}")
        A(f"v_lshlrev_b32 v{u}, 3, {l}"); A(f"v_add_u32 v{u}, s{SGT[0]}, v{u}"); A(f"v_mov_b32 v{u+1}, {OOB}"); A(f"v_cmp_gt_u32 vcc, 32, {l}"); A(f"v_cndmask_b32 v{u}, v{u+1}, v{u}, vcc")
        A(f"v_mov_b32 v{u+2}, -1"); A(f"v_mov_b32 v{u+3}, -1")
        A(f"buffer_store_dwordx2 {vr(u+2,2)}, v{u}, {sr(R_WS)}, 0 offen sc1"); self.e_init=L[-1]
        return L

    def const_items(self):
        l=f"v{V_L}"; L=[]; A=lambda x: L.append(mk(x))
        LR,LI,DT=244,245,246
        AE,AN,SG,M,AG=232,233,234,235,236
        R=238
        C,S=238,239
        L.append(Wait(vm=self.kl))
        A(f"v_lshlrev_b32 v{LR}, 16, v{LR}"); A(f"v_lshlrev_b32 v{LI}, 16, v{LI}"); A(f"v_lshlrev_b32 v{DT}, 16, v{DT}")
        A(self.fconst(SGT[0],self.LOG2E)); A(self.fconst(SGT[1],0.15915494309189535)); A(self.fconst(SGT[2],16.0)); A(self.fconst(SGT[3],128.0))
        A(f"v_mul_f32 v{DT}, s{SGT[0]}, v{DT}"); A(f"v_exp_f32 v{DT}, v{DT}"); A(f"v_lshrrev_b32 v{SG}, 5, {l}"); A(f"v_cvt_pk_bf16_f32 v{DT}, v{DT}, v{DT}"); A(f"v_lshlrev_b32 v{DT}, 16, v{DT}")
        A(f"v_mul_f32 v{AE}, v{DT}, v{LR}"); A(f"v_mul_f32 v{AN}, v{DT}, v{LI}"); A(f"v_mul_f32 v{AE}, s{SGT[0]}, v{AE}"); A(f"v_mul_f32 v{AN}, s{SGT[1]}, v{AN}")
        A(f"s_lshl_b32 s{SGT[4]}, s{S_W}, 1"); A(f"v_add_u32 v{SG}, s{SGT[4]}, v{SG}"); A(f"v_lshlrev_b32 v{SG}, 4, v{SG}"); A(f"v_cvt_f32_u32 v{SG}, v{SG}")
        def cexp(k, mul, keep=None):
            if mul is None: A(f"v_mov_b32 v{M}, v{AE}"); A(f"v_mov_b32 v{AG}, v{AN}")
            else: A(f"v_mul_f32 v{M}, {mul}, v{AE}"); A(f"v_mul_f32 v{AG}, {mul}, v{AN}")
            A(f"v_exp_f32 v{M}, v{M}"); A(f"v_fract_f32 v{AG}, v{AG}"); A(f"v_cos_f32 v{C}, v{AG}"); A(f"v_sin_f32 v{S}, v{AG}"); A("s_nop 0")
            A(f"v_mul_f32 v{C}, v{M}, v{C}"); A(f"v_mul_f32 v{S}, v{M}, v{S}")
            A(f"v_accvgpr_write_b32 a{A_K+k}, v{C}"); A(f"v_accvgpr_write_b32 a{A_K+k+1}, v{S}")
        A(self.fconst(SGT[5],8.0))
        cexp(2,f"s{SGT[2]}"); cexp(4,f"s{SGT[3]}"); cexp(6,f"v{SG}"); cexp(12,f"s{SGT[5]}"); cexp(0,None)
        NR,DEN,u2=235,236,240
        A(f"v_add_f32 v{NR}, -1.0, v{C}"); A(f"v_mul_f32 v{DEN}, v{LR}, v{LR}"); A(f"v_fmac_f32 v{DEN}, v{LI}, v{LI}"); A(f"v_rcp_f32 v{DEN}, v{DEN}")
        A(f"v_mul_f32 v{u2}, v{NR}, v{LR}"); A(f"v_fmac_f32 v{u2}, v{S}, v{LI}"); A(f"v_mul_f32 v{u2+1}, v{S}, v{LR}"); A(f"v_fma_f32 v{u2+1}, -v{NR}, v{LI}, v{u2+1}")
        A(f"v_add_f32 v{DEN}, v{DEN}, v{DEN}"); A(f"v_mul_f32 v{u2}, v{u2}, v{DEN}"); A(f"v_mul_f32 v{u2+1}, v{u2+1}, v{DEN}")
        A(f"v_accvgpr_write_b32 a{A_K+8}, v{u2}"); A(f"v_accvgpr_write_b32 a{A_K+9}, v{u2+1}")
        return L

    def touch(self, items_addr, R, soff, vreg):
        return items_addr+[mk(f"buffer_load_dword a{A_JUNK}, v{vreg}, {sr(R)}, {soff} offen")]
    def touch_w(self):
        l=f"v{V_L}"; a,b=V_T,V_T+1; L=[]; A=lambda x: L.append(mk(x))
        A(f"v_lshrrev_b32 v{a}, 2, {l}"); A(f"v_mul_u32_u24 v{a}, 3584, v{a}"); A(f"v_and_b32 v{b}, 3, {l}"); A(f"v_cmp_eq_u32 vcc, 3, v{b}"); A(f"v_lshlrev_b32 v{b}, 7, v{b}"); A(f"v_add_u32 v{a}, v{a}, v{b}")
        A(f"v_mov_b32 v{b}, {OOB}"); A(f"v_cndmask_b32 v{a}, v{a}, v{b}, vcc")
        A(f"s_lshl_b32 s{S_T0}, s{S_C}, 1"); A(f"s_and_b32 s{S_T1}, s{S_W}, 1"); A(f"s_add_u32 s{S_T0}, s{S_T0}, s{S_T1}"); A(f"s_mul_i32 s{S_T0}, s{S_T0}, {16*3584}")
        A(f"s_mul_i32 s{S_T1}, s{S_J}, 224"); A(f"s_and_b32 s{S_T1}, s{S_T1}, 0xffffff80"); A(f"s_add_u32 s{S_T0}, s{S_T0}, s{S_T1}")
        A(f"buffer_load_dword a{A_JUNK}, v{a}, {sr(R_W)}, s{S_T0} offen")
        if not self.o.get("touch_b",1): return L
        A(f"v_and_b32 v{a}, 7, {l}"); A(f"v_lshlrev_b32 v{a}, 7, v{a}")
        A(f"s_lshl_b32 s{S_T0}, s{S_J}, 4"); A(f"s_add_u32 s{S_T0}, s{S_T0}, s{S_C}"); A(f"s_lshl_b32 s{S_T0}, s{S_T0}, 1"); A(f"s_and_b32 s{S_T1}, s{S_W}, 1"); A(f"s_add_u32 s{S_T0}, s{S_T0}, s{S_T1}"); A(f"s_lshl_b32 s{S_T0}, s{S_T0}, 10")
        A(f"buffer_load_dword a{A_JUNK}, v{a}, {sr(R_B)}, s{S_T0} offen")
        return L
    def touch_x(self):
        l=f"v{V_L}"; a,b=V_T,V_T+1; L=[]; A=lambda x: L.append(mk(x))
        A(f"v_and_b32 v{a}, 31, {l}"); A(f"v_lshlrev_b32 v{a}, 10, v{a}"); A(f"v_lshrrev_b32 v{b}, 5, {l}"); A(f"v_lshlrev_b32 v{b}, 7, v{b}"); A(f"v_add_u32 v{a}, v{a}, v{b}")
        A(f"s_lshr_b32 s{S_T0}, s{S_J}, 3"); A(f"s_mul_i32 s{S_T0}, s{S_T0}, 384"); A(f"s_add_u32 s{S_T0}, s{S_T0}, 256"); A(f"s_add_u32 s{S_T0}, s{S_T0}, s{S_XROW}")
        A(f"buffer_load_dword a{A_JUNK}, v{a}, {sr(R_X)}, s{S_T0} offen")
        A(f"v_and_b32 v{a}, 31, {l}"); A(f"v_lshlrev_b32 v{a}, 10, v{a}"); A(f"v_mov_b32 v{b}, {OOB}"); A(f"v_cmp_gt_u32 vcc, 32, {l}"); A(f"v_cndmask_b32 v{a}, v{b}, v{a}, vcc")
        A(f"buffer_load_dword a{A_JUNK}, v{a}, {sr(R_X)}, s{S_T0} offen offset:256")
        return L
    def touch_setup_w(self):
        l=f"v{V_L}"; L=[]; A=lambda x: L.append(mk(x))
        A(f"v_lshlrev_b32 v{V_TCH}, 7, {l}"); A(f"v_mov_b32 v{V_T}, {OOB}"); A(f"v_cmp_gt_u32 vcc, 16, {l}"); A(f"v_cndmask_b32 v{V_TCH}, v{V_T}, v{V_TCH}, vcc")
        A(f"s_lshr_b32 s{S_TW}, s2, 3"); A(f"s_lshl_b32 s{S_TW}, s{S_TW}, 2"); A(f"s_add_u32 s{S_TW}, s{S_TW}, s{S_W}"); A(f"s_mul_i32 s{S_TW}, s{S_TW}, {112*128}")
        for k,v in enumerate((f"s{P_WD}",f"s{P_WD+1}",1792*1024,"0x20000")): A(f"s_mov_b32 s{R_T+k}, {v}")
        return L
    def touch_setup_c(self):
        L=[]; A=lambda x: L.append(mk(x))
        A(f"s_lshr_b32 s{S_TW}, s2, 3"); A(f"s_lshl_b32 s{S_TW}, s{S_TW}, 2"); A(f"s_add_u32 s{S_TW}, s{S_TW}, s{S_W}")
        A(f"s_cmp_lt_u32 s{S_TW}, 64")
        A(f"s_cselect_b32 s{R_T2}, s{P_CRE}, s{P_CIM}"); A(f"s_cselect_b32 s{R_T2+1}, s{P_CRE+1}, s{P_CIM+1}"); A(f"s_mov_b32 s{R_T2+2}, {512*1024}"); A(f"s_mov_b32 s{R_T2+3}, 0x20000")
        A(f"s_and_b32 s{S_TW}, s{S_TW}, 63"); A(f"s_lshl_b32 s{S_TW}, s{S_TW}, 13")
        return L
    def touch_one(self, R):
        return [mk(f"buffer_load_dword a{A_JUNK}, v{V_TCH}, {sr(R)}, s{S_TW} offen"), mk(f"s_add_u32 s{S_TW}, s{S_TW}, 2048")]
    def touch_a(self):
        l=f"v{V_L}"; a,b=V_T,V_T+1; L=[]; A=lambda x: L.append(mk(x))
        A(f"v_lshlrev_b32 v{a}, 7, {l}"); A(f"v_mov_b32 v{b}, {OOB}"); A(f"v_cmp_gt_u32 vcc, 44, {l}"); A(f"v_cndmask_b32 v{a}, v{b}, v{a}, vcc")
        A(f"s_mul_i32 s{S_T0}, s{S_CB}, {44*128}"); A(f"s_add_u32 s{S_T1}, s{S_T0}, s{S_A0+1}"); A(f"s_add_u32 s{S_T0}, s{S_T0}, s{S_A0}")
        A(f"buffer_load_dword v{V_JUNK}, v{a}, {sr(R_WS)}, s{S_T0} offen sc1")
        A(f"buffer_load_dword v{V_JUNK}, v{a}, {sr(R_WS)}, s{S_T1} offen sc1")
        return L

    def code_prefetch(self):
        p=self.p
        p.I(f"s_getpc_b64 s[{R_T2}:{R_T2+1}]\nL_pc:")
        p.I(f"s_mov_b32 s{R_T2+2}, L_codeend-L_pc\ns_mov_b32 s{R_T2+3}, 0x20000")
        p.I(f"s_bfe_u32 s{S_T0}, s2, 0x30003\ns_lshl_b32 s{S_T0}, s{S_T0}, 12\nv_lshlrev_b32 v{V_T}, 4, v0")
        p.I(f"buffer_load_dwordx4 a[252:255], v{V_T}, {sr(R_T2)}, s{S_T0} offen")

    def flag_op(self, op, idx_sgpr_expr_items, valsrc, R=R_DBG):
        L=[mk(x) for x in idx_sgpr_expr_items]
        L+=[mk(f"s_cmp_eq_u32 s{S_W}, 0"), mk(f"s_cselect_b32 s{S_T0}, s{S_T0}, {OOB}"),
            mk(f"v_mov_b32 v{V_U+6}, {OOB}"), mk(f"v_mov_b32 v{V_U+7}, s{S_T0}"), mk(f"v_cmp_eq_u32 vcc, 0, v{V_L}"),
            mk(f"v_cndmask_b32 v{V_U+6}, v{V_U+6}, v{V_U+7}, vcc"), mk(f"v_mov_b32 v{V_U+7}, {valsrc}"),
            mk(f"buffer_atomic_{op} v{V_U+7}, v{V_U+6}, {sr(R)}, 0 offen sc1")]
        return L

    @staticmethod
    def cfma(dst, c, x, add):
        return [mk(f"v_pk_fma_f32 {vr(dst,2)}, {vr(c,2)}, {vr(x,2)}, {vr(add,2)} op_sel:[0,0,0] op_sel_hi:[0,1,1]"),
                mk(f"v_pk_fma_f32 {vr(dst,2)}, {vr(c,2)}, {vr(x,2)}, {vr(dst,2)} op_sel:[1,1,0] op_sel_hi:[1,0,1] neg_lo:[1,0,0]")]
    @staticmethod
    def scan_step(nre, nim, lam, hre, him, ure, uim):
        return [mk(f"v_pk_fma_f32 {vr(nre,2)}, {vr(lam,2)}, {vr(hre,2)}, {vr(ure,2)} op_sel:[0,0,0] op_sel_hi:[0,1,1]"),
                mk(f"v_pk_fma_f32 {vr(nim,2)}, {vr(lam,2)}, {vr(him,2)}, {vr(uim,2)} op_sel:[0,0,0] op_sel_hi:[0,1,1]"),
                mk(f"v_pk_fma_f32 {vr(nre,2)}, {vr(lam,2)}, {vr(him,2)}, {vr(nre,2)} op_sel:[1,0,0] op_sel_hi:[1,1,1] neg_lo:[1,0,0] neg_hi:[1,0,0]"),
                mk(f"v_pk_fma_f32 {vr(nim,2)}, {vr(lam,2)}, {vr(hre,2)}, {vr(nim,2)} op_sel:[1,0,0] op_sel_hi:[1,1,1]")]

    @staticmethod
    def cfma_s(dst, c, x, add):
        return [mk(f"v_fma_f32 v{dst}, v{c}, v{x}, v{add}"), mk(f"v_fma_f32 v{dst+1}, v{c}, v{x+1}, v{add+1}"),
                mk(f"v_fma_f32 v{dst}, -v{c+1}, v{x+1}, v{dst}"), mk(f"v_fma_f32 v{dst+1}, v{c+1}, v{x}, v{dst+1}")]
    @staticmethod
    def scan_step_s(nre, nim, lam, hre, him, ure, uim):
        L=[]
        for e in range(2): L+=[mk(f"v_fma_f32 v{nre+e}, v{lam}, v{hre+e}, v{ure+e}"), mk(f"v_fma_f32 v{nim+e}, v{lam}, v{him+e}, v{uim+e}")]
        for e in range(2): L+=[mk(f"v_fma_f32 v{nre+e}, -v{lam+1}, v{him+e}, v{nre+e}"), mk(f"v_fma_f32 v{nim+e}, v{lam+1}, v{hre+e}, v{nim+e}")]
        return L
    def pass1(self):
        lam=V_U; l8=26
        L=[mk(f"v_accvgpr_read_b32 v{lam}, a{A_K}"), mk(f"v_accvgpr_read_b32 v{lam+1}, a{A_K+1}"),
           mk(f"v_accvgpr_read_b32 v{l8}, a{A_K+12}"), mk(f"v_accvgpr_read_b32 v{l8+1}, a{A_K+13}")]
        L+=[mk(f"v_lshrrev_b32 v{V_U+2}, 5, v{V_L}"), mk(f"s_lshl_b32 s{S_T0}, s{S_W}, 1"), mk(f"v_add_u32 v{V_U+2}, s{S_T0}, v{V_U+2}"), mk(f"v_lshlrev_b32 v{V_U+2}, 8, v{V_U+2}"),
            mk(f"v_and_b32 v{V_U+3}, 31, v{V_L}"), mk(f"v_lshlrev_b32 v{V_U+3}, 3, v{V_U+3}"), mk(f"v_add_u32 v{V_U+3}, {L_EX}, v{V_U+3}"), mk(f"v_add_u32 v{V_U+2}, v{V_U+2}, v{V_U+3}")]
        e=[(232,234),(236,238)]
        cr,ci=V_SRE,V_SIM
        for i in range(1,8):
            nr,ni=e[i&1]
            L+=self.scan_step_s(nr,ni,lam,cr,ci,V_SRE+2*i,V_SIM+2*i)
            cr,ci=nr,ni
        L+=[mk(f"v_fma_f32 v28, v{l8}, v{cr}, v{cr+1}"), mk(f"v_fma_f32 v29, v{l8}, v{ci}, v{ci+1}"),
            mk(f"v_fma_f32 v28, -v{l8+1}, v{ci}, v28"), mk(f"v_fma_f32 v29, v{l8+1}, v{cr}, v29"),
            mk(f"v_accvgpr_write_b32 a{A_K+14}, v{cr}"), mk(f"v_accvgpr_write_b32 a{A_K+15}, v{ci}")]
        w=mk(f"ds_write_b64 v{V_U+2}, v[28:29]"); L.append(w)
        return L,w

    def exchange(self):
        ER=V_U+3
        l16=V_U
        L=[mk(f"v_accvgpr_read_b32 v{l16}, a{A_K+2}"), mk(f"v_accvgpr_read_b32 v{l16+1}, a{A_K+3}")]
        P,N=26,28; S2=V_U+4
        rd=[mk(f"ds_read_b64 {vr(P,2)}, v{ER}")]+[mk(f"ds_read_b64 {vr(232+2*(k-1),2)}, v{ER} offset:{256*k}") for k in range(1,8)]
        L+=rd
        L+=[mk(f"v_mov_b32 v{S2}, 0"), mk(f"v_mov_b32 v{S2+1}, 0"), mk(f"s_lshl_b32 s{S_GT}, s{S_W}, 1"), mk(f"s_add_u32 s{S_PO}, s{S_GT}, 1"), Wait(lgkm=rd[:2])]
        for k in range(1,8):
            L+=[mk(f"s_cmp_eq_u32 s{S_GT}, {k}"), mk(f"s_cselect_b32 s{S_M0}, -1, 0"), mk(f"s_cmp_eq_u32 s{S_PO}, {k}"), mk(f"s_cselect_b32 s{S_M0+1}, -1, 0"), Wait(lgkm=rd[k]),
                mk(f"v_cndmask_b32 v{S2}, v{S2}, v{P}, s[{S_M0}:{S_M0+1}]"), mk(f"v_cndmask_b32 v{S2+1}, v{S2+1}, v{P+1}, s[{S_M0}:{S_M0+1}]")]
            L+=self.cfma_s(N,l16,P,232+2*(k-1))
            P,N=N,P
        L+=[mk(f"v_accvgpr_write_b32 a{A_KS+10}, v{S2}"), mk(f"v_accvgpr_write_b32 a{A_KS+11}, v{S2+1}"),
            mk(f"v_accvgpr_mov_b32 a{A_KS+2}, a{A_K+14}"), mk(f"v_accvgpr_mov_b32 a{A_KS+3}, a{A_K+15}")]
        Er,Ei=30,31
        L+=[mk(f"s_lshl_b32 s{S_T0}, s{S_C}, 12"), mk(f"s_lshl_b32 s{S_T1}, s{S_J}, 8"), mk(f"s_add_u32 s{S_T0}, s{S_T0}, s{S_T1}"), mk(f"s_add_u32 s{S_T0}, s{S_T0}, {WS_E}"),
            mk(f"s_cmp_eq_u32 s{S_W}, 0"), mk(f"s_cselect_b32 s{S_T0}, s{S_T0}, {OOB}"),
            mk(f"v_lshlrev_b32 v{Er}, 3, v{V_L}"), mk(f"v_add_u32 v{Er}, s{S_T0}, v{Er}"), mk(f"v_mov_b32 v{Ei}, {OOB}"), mk(f"v_cmp_gt_u32 vcc, 32, v{V_L}"),
            mk(f"v_cndmask_b32 v{Er}, v{Ei}, v{Er}, vcc")]
        st=mk(f"buffer_store_dwordx2 {vr(P,2)}, v{Er}, {sr(R_WS)}, 0 offen sc1"); L.append(st)
        return L,st

    def poll_issue(self, vdst, off_items, R=R_DBG, w0only=False, off2=None):
        L=[mk(x) for x in off_items]
        if w0only:
            L+=[mk(f"s_cmp_eq_u32 s{S_W}, 0"), mk(f"s_cselect_b32 s{S_T0}, s{S_T0}, {OOB}")]
            if off2: L+=[mk(f"s_cselect_b32 s{S_T1}, s{S_T1}, {OOB}")]
        L+=[mk(f"v_mov_b32 v{vdst+1}, {OOB}"), mk(f"v_mov_b32 v{V_U+7}, s{S_T0}"), mk(f"v_cmp_eq_u32 vcc, 0, v{V_L}"), mk(f"v_cndmask_b32 v{vdst+1}, v{vdst+1}, v{V_U+7}, vcc")]
        if off2:
            L+=[mk(f"v_mov_b32 v{V_U+7}, s{S_T1}"), mk(f"v_cmp_eq_u32 vcc, 1, v{V_L}"), mk(f"v_cndmask_b32 v{vdst+1}, v{vdst+1}, v{V_U+7}, vcc")]
        t=mk(f"buffer_load_dword v{vdst}, v{vdst+1}, {sr(R)}, 0 offen sc1"); L.append(t)
        return L,t
    def poll_check(self, name, vdst, tok, cond_items, R=R_DBG, w0only=False, two=False, sleep=1):
        sid={"g":20,"e":24,"a":28,"s":24}[name]
        rl=[f"v_readlane_b32 s{S_T0}, v{vdst}, 0"]+([f"v_readlane_b32 s{S_T1}, v{vdst}, 1"] if two else [])
        L=self.stamp(sid)+([mk(f"s_mov_b32 s{S_CNT}, 0")] if self.o.get("stamps") else [])+[Wait(vm=tok)]+self.stamp(sid+1)
        if w0only: L+=[mk(f"s_cmp_lg_u32 s{S_W}, 0"), mk(f"s_cbranch_scc1 L_back_{name}")]
        L+=[mk(x) for x in rl]+[mk(x) for x in cond_items]
        L+=[mk(f"s_cbranch_scc0 L_slow_{name}"), mk(f"L_back_{name}:")]+self.stamp(sid+2)+self.note(sid+3,S_CNT)
        S=[f"L_slow_{name}:", f"s_mov_b32 s{S_CNT}, 0", f"L_loop_{name}:"]+([f"s_sleep {sleep}"] if sleep else [])+[
           f"buffer_load_dword v{vdst}, v{vdst+1}, {sr(R)}, 0 offen sc1", "s_waitcnt vmcnt(0)"]+rl+["s_nop 1",
           f"s_add_u32 s{S_CNT}, s{S_CNT}, 1", f"s_cmp_gt_u32 s{S_CNT}, 100000", f"s_cbranch_scc1 L_back_{name}"]
        S+=cond_items+[f"s_cbranch_scc1 L_back_{name}", f"s_branch L_loop_{name}"]
        self.slow+=S
        return L

    def gpoll_issue(self, vdst):
        L=[mk(f"v_lshlrev_b32 v{vdst+1}, 4, v{V_L}"), mk(f"v_mov_b32 v{V_U+7}, {OOB}"), mk(f"s_cmp_eq_u32 s{S_W}, 0"), mk(f"s_cselect_b32 s{S_T0}, 16, 0"),
           mk(f"v_cmp_gt_u32 vcc, s{S_T0}, v{V_L}"), mk(f"v_cndmask_b32 v{vdst+1}, v{V_U+7}, v{vdst+1}, vcc")]
        t=mk(f"buffer_load_dword v{vdst}, v{vdst+1}, {sr(R_DBG)}, 0 offen sc1"); L.append(t)
        return L,t
    def gpoll_check(self, vdst, tok):
        cond=[f"v_cmp_eq_u32 vcc, 16, v{vdst}", f"s_lshl_b32 s{S_T0}, 2, s{S_C}", f"s_sub_u32 s{S_T0}, s{S_T0}, 1", f"s_lshl_b32 s{S_T1}, 1, s{S_C3}", f"s_or_b32 s{S_T0}, s{S_T0}, s{S_T1}",
              f"s_and_b32 s{S_T1}, vcc_lo, s{S_T0}", f"s_cmp_eq_u32 s{S_T1}, s{S_T0}"]
        L=self.stamp(20)+[Wait(vm=tok)]+self.stamp(21)+[mk(f"s_cmp_lg_u32 s{S_W}, 0"), mk("s_cbranch_scc1 L_back_g")]+[mk(x) for x in cond]
        L+=[mk("s_cbranch_scc0 L_slow_g"), mk("L_back_g:")]+self.stamp(22)
        self.slow+=["L_slow_g:", f"s_mov_b32 s{S_CNT}, 0", "L_loop_g:", "s_sleep 1", f"buffer_load_dword v{vdst}, v{vdst+1}, {sr(R_DBG)}, 0 offen sc1", "s_waitcnt vmcnt(0)",
                    f"s_add_u32 s{S_CNT}, s{S_CNT}, 1", f"s_cmp_gt_u32 s{S_CNT}, 100000", "s_cbranch_scc1 L_back_g", cond[0], "s_nop 4"]+cond[1:]+["s_cbranch_scc1 L_back_g", "s_branch L_loop_g"]
        return L

    def g_loads(self):
        L=[]
        T=V_T
        L+=[mk(f"v_bfe_u32 v{T}, v{V_L}, 2, 1"), mk(f"v_lshlrev_b32 v{T}, 4, v{T}"), mk(f"v_bfe_u32 v{T+1}, v{V_L}, 3, 2"), mk(f"v_lshlrev_b32 v{T+1}, 2, v{T+1}"),
            mk(f"v_add_u32 v{T}, v{T}, v{T+1}"), mk(f"v_and_b32 v{T+1}, 3, v{V_L}"), mk(f"v_add_u32 v{T}, v{T}, v{T+1}"), mk(f"v_lshlrev_b32 v{T}, 2, v{T}"),
            mk(f"s_lshl_b32 s{S_T0}, s{S_C}, 2"), mk(f"s_add_u32 s{S_T0}, s{S_T0}, s{S_W}"), mk(f"s_lshl_b32 s{S_T0}, s{S_T0}, 7"), mk(f"s_add_u32 s{S_T0}, s{S_T0}, {WS_G}")]
        t0=mk(f"buffer_load_dword v14, v{T}, {sr(R_WS)}, s{S_T0} offen sc1"); L.append(t0)
        L+=[mk(f"v_lshrrev_b32 v{T+1}, 5, v{V_L}"), mk(f"v_lshlrev_b32 v{T+1}, 6, v{T+1}")]
        toks=[t0]
        for i,r in enumerate((2,6,10,18)):
            t=mk(f"buffer_load_dwordx4 {vr(r,4)}, v{T+1}, {sr(R_WS)}, s{S_T0} offen offset:{16*i} sc1"); L.append(t); toks.append(t)
        return L,toks
    GREG=[2,3,4,5,6,7,8,9,10,11,12,13,18,19,20,21]

    EREG=[36,38,40,42,44,46,52,54,56,58,60,62,68,70,72]
    def e_loads(self):
        T=V_T
        L=[mk(f"s_add_u32 s{R_T2}, s{P_WS}, {WS_E}"), mk(f"s_addc_u32 s{R_T2+1}, s{P_WS+1}, 0"), mk(f"s_mov_b32 s{R_T2+2}, 65536"), mk(f"s_mov_b32 s{R_T2+3}, 0x20000"),
           mk(f"v_and_b32 v{T+2}, 31, v{V_L}"), mk(f"v_lshlrev_b32 v{T+2}, 3, v{T+2}"), mk(f"s_lshl_b32 s{S_T1}, s{S_J}, 8"), mk(f"s_lshl_b32 s{S_T0}, s{S_C}, 12"),
           mk(f"s_add_u32 s{S_T0}, s{S_T0}, s{S_T1}"), mk(f"s_sub_u32 s{S_T0}, s{S_T0}, 4096"), mk(f"v_add_u32 v{T+2}, s{S_T0}, v{T+2}")]
        toks=[]
        for m in range(15):
            a=T+2+(m&1); b=T+2+((m+1)&1)
            t=mk(f"buffer_load_dwordx2 {ar(2*m,2)}, v{a}, {sr(R_T2)}, 0 offen sc1"); L.append(t); toks.append(t)
            if m<14: L.append(mk(f"v_subrev_u32 v{b}, 4096, v{a}"))
        self.e_reload=[mk(x.text) for x in L]
        return L,toks

    def ffn_epilogue(self, gtok):
        pre=[]; st=[]
        KC=V_WF; IR=V_WF+2; T=V_WF+4
        k0=-2.0*0.7978845608028654*self.LOG2E
        pre+=[Wait(vm=gtok), mk(f"v_sub_f32 v{IR}, 1.0, v14"), mk(self.fconst(S_T0,k0*0.044715)), mk(f"v_cvt_pk_bf16_f32 v{IR}, v{IR}, v{IR}"), mk(f"v_mov_b32 v{KC}, s{S_T0}"),
             mk(f"v_lshlrev_b32 v{IR}, 16, v{IR}"), mk(self.fconst(S_T0,k0)), mk(f"v_rcp_f32 v{IR}, v{IR}"), mk(f"v_mov_b32 v{KC+1}, s{S_T0}"),
             mk(self.fconst(S_T0,1e30)), mk(f"v_min_f32 v{IR}, s{S_T0}, v{IR}")]
        pre+=[mk(f"s_lshl_b32 s{S_AO}, s{S_C}, 2"), mk(f"s_add_u32 s{S_AO}, s{S_AO}, s{S_W}"), mk(f"s_mul_i32 s{S_AO}, s{S_AO}, 176"), mk(f"s_mul_i32 s{S_T0}, s{S_J}, 11"),
            mk(f"s_add_u32 s{S_AO}, s{S_AO}, s{S_T0}"), mk(f"s_lshl_b32 s{S_AO}, s{S_AO}, 10"), mk(f"v_lshlrev_b32 v{V_AO}, 4, v{V_L}")]
        tiles=[]
        for i in range(7):
            L=[]
            a=V_ACC+16*i
            o=T+16*(i&1)
            Z,Pd=o,o+8
            pr=[(a,a+4),(a+2,a+6),(a+8,a+12),(a+10,a+14)]
            for e,(g,u) in enumerate(pr): L.append(mk(f"v_pk_mul_f32 {vr(Z+2*e,2)}, {vr(g,2)}, {vr(g,2)}"))
            for e,(g,u) in enumerate(pr): L.append(mk(f"v_pk_fma_f32 {vr(Z+2*e,2)}, {vr(Z+2*e,2)}, {vr(KC,2)}, {vr(KC,2)} op_sel:[0,0,1] op_sel_hi:[1,0,1]"))
            for e,(g,u) in enumerate(pr): L.append(mk(f"v_pk_mul_f32 {vr(Z+2*e,2)}, {vr(g,2)}, {vr(Z+2*e,2)}"))
            for e,(g,u) in enumerate(pr):
                L.append(mk(f"v_exp_f32 v{Z+2*e}, v{Z+2*e}")); L.append(mk(f"v_exp_f32 v{Z+2*e+1}, v{Z+2*e+1}")); L.append(mk(f"v_pk_mul_f32 {vr(Pd+2*e,2)}, {vr(g,2)}, {vr(u,2)}"))
            for e in range(4): L.append(mk(f"v_pk_fma_f32 {vr(Z+2*e,2)}, {vr(Z+2*e,2)}, {vr(IR,2)}, {vr(IR,2)} op_sel:[0,0,0] op_sel_hi:[1,0,0]"))
            for e in range(8): L.append(mk(f"v_rcp_f32 v{Z+e}, v{Z+e}"))
            for e in range(4): L.append(mk(f"v_pk_mul_f32 {vr(Pd+2*e,2)}, {vr(Pd+2*e,2)}, {vr(Z+2*e,2)}"))
            for e in range(4): L.append(mk(f"v_cvt_pk_bf16_f32 v{a+e}, v{Pd+2*e}, v{Pd+2*e+1}"))
            tiles.append(L)
        S=[]
        for i in range(7):
            t=mk(f"buffer_store_dwordx4 {vr(V_ACC+16*i,4)}, v{V_AO}, {sr(R_WS)}, s{S_AO} offen offset:{1024*(i&3)} sc1"); st.append(t)
            S.append(([mk(f"s_add_u32 s{S_AO}, s{S_AO}, 4096")] if i==4 else [])+[t])
        return pre,tiles,S,st

    def ssm_epilogue(self, etok, gtok, tbase_items):
        L=[]; st=[]
        LAM,Q,S2=176,178,180
        H,N=182,184
        rd=lambda v,a: mk(f"v_accvgpr_read_b32 v{v}, a{a}")
        L+=[rd(Q,A_KS+4), rd(Q+1,A_KS+5), rd(LAM,A_KS), rd(LAM+1,A_KS+1), rd(S2,A_KS+8), rd(S2+1,A_KS+9), Wait(vm=etok)]
        L+=[rd(H,28), rd(H+1,29)]
        cur=H
        EB=[204,206]
        for m in range(13,-1,-1):
            e=EB[m&1]
            L+=[rd(e,2*m), rd(e+1,2*m+1)]
            L+=self.cfma(N,Q,cur,e); cur=N; H,N=N,H
        Hin=cur
        L+=[mk(f"v_cmp_u_f32 vcc, v{Hin}, v{Hin}"), mk("s_nop 3"), mk("s_cmp_eq_u64 vcc, 0"), mk("s_cbranch_scc0 L_slow_e"), mk("L_back_e:")]
        S=["L_slow_e:", f"s_mov_b32 s{S_CNT}, 0", "L_loop_e:"]
        S+=[x.text for x in self.e_reload]
        S+=["s_waitcnt vmcnt(0)", f"v_accvgpr_read_b32 v{Hin}, a28", f"v_accvgpr_read_b32 v{Hin+1}, a29"]
        cur2=Hin; oth=H if Hin==N else N
        seq=[]; a_,b_=(Hin,oth)
        regs=[]; c=Hin
        for m in range(13,-1,-1):
            e=EB[m&1]; d=oth if c==Hin else Hin
            S+=[f"v_accvgpr_read_b32 v{e}, a{2*m}", f"v_accvgpr_read_b32 v{e+1}, a{2*m+1}", "s_nop 0"]+[x.text for x in self.cfma(d,Q,c,e)]
            c=d
        assert c==Hin
        S+=[f"v_cmp_u_f32 vcc, v{Hin}, v{Hin}", f"s_add_u32 s{S_CNT}, s{S_CNT}, 1", "s_nop 3", f"s_cmp_gt_u32 s{S_CNT}, 20000", "s_cbranch_scc1 L_back_e", "s_cmp_eq_u64 vcc, 0", "s_cbranch_scc1 L_back_e", "s_branch L_loop_e"]
        self.slow+=S
        W,X=186,188
        L+=[rd(Q,A_KS+6), rd(Q+1,A_KS+7), rd(W,A_KS+10), rd(W+1,A_KS+11)]
        L+=self.cfma(X,Q,Hin,W)
        L+=[rd(Q,A_KS+12), rd(Q+1,A_KS+13), rd(W,A_KS+2), rd(W+1,A_KS+3)]
        L+=self.cfma(190,Q,X,W)
        HR,HI,NR,NI=192,194,196,198
        L+=[mk(f"v_mov_b32 v{HR}, v{X}"), mk(f"v_mov_b32 v{HR+1}, v190"), mk(f"v_mov_b32 v{HI}, v{X+1}"), mk(f"v_mov_b32 v{HI+1}, v191"), Wait(vm=gtok)]
        PK=214
        OR,OI=200,202
        for i in range(8):
            g=self.GREG[2*i]
            L+=self.scan_step(NR,NI,LAM,HR,HI,V_SRE+2*i,V_SIM+2*i)
            HR,HI,NR,NI=NR,NI,HR,HI
            L+=[mk(f"v_pk_mul_f32 {vr(OR,2)}, {vr(S2,2)}, {vr(HR,2)} op_sel:[0,0] op_sel_hi:[0,1]"), mk(f"v_pk_mul_f32 {vr(OI,2)}, {vr(S2,2)}, {vr(HI,2)} op_sel:[0,0] op_sel_hi:[0,1]"),
                mk(f"v_pk_fma_f32 {vr(OR,2)}, {vr(S2,2)}, {vr(HI,2)}, {vr(OR,2)} op_sel:[1,0,0] op_sel_hi:[1,1,1] neg_lo:[1,0,0] neg_hi:[1,0,0]"),
                mk(f"v_pk_fma_f32 {vr(OI,2)}, {vr(S2,2)}, {vr(HR,2)}, {vr(OI,2)} op_sel:[1,0,0] op_sel_hi:[1,1,1]"),
                mk(f"v_pk_mul_f32 {vr(OR,2)}, {vr(g,2)}, {vr(OR,2)}"), mk(f"v_pk_mul_f32 {vr(OI,2)}, {vr(g,2)}, {vr(OI,2)} neg_lo:[1,0] neg_hi:[1,0]"),
                mk(f"v_cvt_pk_bf16_f32 v{PK+i}, v{OR}, v{OR+1}"), mk(f"v_cvt_pk_bf16_f32 v{PK+8+i}, v{OI}, v{OI+1}")]
        TW,TR0,TR1=204,205,206
        L+=tbase_items
        n_=207
        L+=[mk(f"v_and_b32 v{n_}, 31, v{V_L}"), mk(f"v_lshlrev_b32 v{TW}, 6, v{n_}"), mk(f"v_bfe_u32 v{n_+1}, v{V_L}, 1, 2"),
            mk(f"v_lshrrev_b32 v{n_+2}, 5, v{V_L}"), mk(f"v_lshlrev_b32 v{n_+2}, 1, v{n_+2}"),
            mk(f"v_xor_b32 v{n_+2}, v{n_+2}, v{n_+1}"),
            mk(f"v_lshlrev_b32 v{n_+3}, 4, v{n_+2}"), mk(f"v_xor_b32 v{n_+2}, 1, v{n_+2}"), mk(f"v_lshlrev_b32 v{n_+2}, 4, v{n_+2}"),
            mk(f"v_add_u32 v{TW}, s{S_T0}, v{TW}"), mk(f"v_add_u32 v{n_+2}, v{TW}, v{n_+2}"), mk(f"v_add_u32 v{TW}, v{TW}, v{n_+3}")]
        wr=[]
        for m in range(2):
            wr.append(mk(f"ds_write_b128 v{TW}, {vr(PK+8*m,4)} offset:{2048*m}")); wr.append(mk(f"ds_write_b128 v{n_+2}, {vr(PK+8*m+4,4)} offset:{2048*m}"))
        L+=wr
        a=n_+4
        L+=[mk(f"v_lshrrev_b32 v{a}, 5, v{V_L}"), mk(f"v_lshlrev_b32 v{a}, 3, v{a}"), mk(f"v_bfe_u32 v{a+1}, v{V_L}, 2, 2"), mk(f"v_add_u32 v{a}, v{a}, v{a+1}"), mk(f"v_lshlrev_b32 v{a}, 6, v{a}"),
            mk(f"v_and_b32 v{a+1}, 1, v{V_L}"), mk(f"v_lshlrev_b32 v{a+1}, 1, v{a+1}"), mk(f"v_bfe_u32 v{a+2}, v{V_L}, 4, 1"), mk(f"v_add_u32 v{a+1}, v{a+1}, v{a+2}"),
            mk(f"v_bfe_u32 v{a+2}, v{V_L}, 3, 1"), mk(f"v_xor_b32 v{a+1}, v{a+1}, v{a+2}"),
            mk(f"v_bfe_u32 v{a+2}, v{V_L}, 1, 1"), mk(f"v_lshlrev_b32 v{a+2}, 3, v{a+2}"), mk(f"v_add_u32 v{a}, v{a}, v{a+2}"), mk(f"v_add_u32 v{a}, s{S_T0}, v{a}"),
            mk(f"v_lshlrev_b32 v{a+2}, 4, v{a+1}"), mk(f"v_add_u32 v{TR0}, v{a}, v{a+2}"),
            mk(f"v_xor_b32 v{a+1}, 2, v{a+1}"), mk(f"v_lshlrev_b32 v{a+2}, 4, v{a+1}"), mk(f"v_add_u32 v{TR1}, v{a}, v{a+2}"), mk(f"v_add_u32 v{TR1}, 256, v{TR1}")]
        L+=[Wait(lgkm=wr)]
        OUT=V_SRE
        rd=[]
        for b in range(4):
            m,mu=b>>1,b&1
            rd.append(mk(f"ds_read_b64_tr_b16 {vr(OUT+4*b,2)}, v{TR0} offset:{2048*m+1024*mu}")); rd.append(mk(f"ds_read_b64_tr_b16 {vr(OUT+4*b+2,2)}, v{TR1} offset:{2048*m+1024*mu}"))
        L+=rd
        L+=[mk(f"s_add_u32 s{S_AO}, s{S_AO}, 3072")]
        for b in range(4):
            t=mk(f"buffer_store_dwordx4 {vr(OUT+4*b,4)}, v{V_AO}, {sr(R_WS)}, s{S_AO} offen offset:{1024*b} sc1")
            L+=[Wait(lgkm=rd[2*b:2*b+2]), t]; st.append(t)
        self.t_reads=rd
        return L,st

    def copy_consts(self):
        return [mk(f"v_accvgpr_mov_b32 a{A_KS+i}, a{A_K+i}") for i in (0,1,4,5,6,7,8,9,12,13)]

    def blk_areg(self,b): return 64+8*b
    def p3_patterns1(self):
        l=f"v{V_L}"; a,b,c=V_T,30,31
        L=[]; A=lambda x: L.append(mk(x))
        A(f"s_mul_i32 s{S_RG}, s{S_W}, {REGION}")
        A(f"v_lshrrev_b32 v{a}, 3, {l}"); A(f"v_lshlrev_b32 v{a}, 10, v{a}"); A(f"v_bfe_u32 v{b}, {l}, 4, 1"); A(f"v_lshlrev_b32 v{b}, 2, v{b}"); A(f"v_and_b32 v{c}, 7, {l}")
        A(f"v_xor_b32 v{b}, v{b}, v{c}"); A(f"v_lshlrev_b32 v{b}, 4, v{b}"); A(f"v_add_u32 v{V_FD}, v{a}, v{b}"); A(f"v_add_u32 v{V_FD+1}, 7168, v{V_FD}")
        A(f"v_lshrrev_b32 v{a}, 5, {l}"); A(f"v_lshlrev_b32 v{a}, 2, v{a}"); A(f"v_bfe_u32 v{b}, {l}, 2, 2"); A(f"v_add_u32 v{a}, v{a}, v{b}"); A(f"v_lshlrev_b32 v{a}, 7, v{a}")
        A(f"v_bfe_u32 v{b}, {l}, 4, 1"); A(f"v_lshlrev_b32 v{b}, 5, v{b}"); A(f"v_add_u32 v{a}, v{a}, v{b}"); A(f"v_and_b32 v{b}, 3, {l}"); A(f"v_lshlrev_b32 v{b}, 3, v{b}"); A(f"v_add_u32 v{a}, v{a}, v{b}")
        A(f"v_add_u32 v{a}, s{S_RG}, v{a}"); A(f"v_bfe_u32 v{b}, {l}, 3, 1"); A(f"v_lshlrev_b32 v{b}, 6, v{b}"); A(f"s_and_b32 s{S_T3}, s{S_W}, 1"); A(f"s_lshl_b32 s{S_T3}, s{S_T3}, 6"); A(f"v_xor_b32 v{b}, s{S_T3}, v{b}"); A(f"v_add_u32 v{V_FR}, v{a}, v{b}"); A(f"v_xor_b32 v{b}, 64, v{b}"); A(f"v_add_u32 v{V_FR+1}, v{a}, v{b}")
        A(f"s_mul_i32 s{S_FO}, s{S_W}, {448*1024}"); A(f"s_lshl_b32 s{S_T3}, s{S_CB}, 7"); A(f"s_add_u32 s{S_FO}, s{S_FO}, s{S_T3}")
        for k,v in enumerate((f"s{P_WD}",f"s{P_WD+1}",1792*1024,"0x20000")): A(f"s_mov_b32 s{R_T+k}, {v}")
        return L
    def p3_patterns2(self):
        l=f"v{V_L}"; a,b,c=V_T,30,31
        L=[]; A=lambda x: L.append(mk(x))
        A(f"v_lshrrev_b32 v{a}, 3, {l}"); A(f"v_lshlrev_b32 v{a}, 10, v{a}"); A(f"v_and_b32 v{c}, 7, {l}")
        A(f"v_lshrrev_b32 v{b}, 4, {l}"); A(f"v_xor_b32 v{b}, v{b}, v{c}"); A(f"v_xor_b32 v{c}, 4, v{b}"); A(f"v_lshlrev_b32 v{b}, 4, v{b}"); A(f"v_lshlrev_b32 v{c}, 4, v{c}")
        for q in range(4):
            A(f"v_add_u32 v{V_CD+q}, v{a}, v{b if q%2==0 else c}")
            if q: A(f"v_add_u32 v{V_CD+q}, {7168*q}, v{V_CD+q}")
        A(f"v_and_b32 v{a}, 31, {l}"); A(f"v_lshlrev_b32 v{a}, 7, v{a}"); A(f"v_add_u32 v{a}, s{S_RG}, v{a}"); A(f"v_bfe_u32 v{b}, {l}, 1, 3"); A(f"v_lshrrev_b32 v{c}, 5, {l}"); A(f"v_xor_b32 v{b}, v{b}, v{c}")
        for s in range(4):
            A(f"v_xor_b32 v{c}, {2*s}, v{b}"); A(f"v_lshlrev_b32 v{c}, 4, v{c}"); A(f"v_add_u32 v{V_CR[s]}, v{a}, v{c}")
        A(f"s_lshl_b32 s{S_CO}, s{S_CB}, 16"); A(f"s_lshl_b32 s{S_T0}, s{S_W}, 8"); A(f"s_add_u32 s{S_CO}, s{S_CO}, s{S_T0}")
        A(f"s_and_b32 s{S_T0}, s{S_W}, 1"); A(f"s_lshl_b32 s{S_T0}, s{S_T0}, 15"); A(f"s_xor_b32 s{S_CO1}, s{S_T0}, 0x8000"); A(f"s_add_u32 s{S_CO1}, s{S_CO1}, s{S_CO}"); A(f"s_add_u32 s{S_CO}, s{S_CO}, s{S_T0}")
        for reg,ptr,size in ((R_B,P_CRE,512*1024),(R_W,P_CIM,512*1024)):
            A(f"s_mov_b32 s{reg}, s{ptr}"); A(f"s_mov_b32 s{reg+1}, s{ptr+1}"); A(f"s_mov_b32 s{reg+2}, {size}"); A(f"s_mov_b32 s{reg+3}, 0x20000")
        return L
    def p3_rebase_after(self, rd2):
        return [Wait(lgkm=sum(rd2.values(),[]))]+self.p3_rebase()
    def p3_rebase(self):
        return [mk(f"s_sub_u32 s{S_T0}, s{S_RG}, s{S_TB}"), mk(f"v_add_u32 v{V_FR}, s{S_T0}, v{V_FR}"), mk(f"v_add_u32 v{V_FR+1}, s{S_T0}, v{V_FR+1}")]
    def p3_dma_f(self, b, slot, tail=False):
        L=[mk(f"s_add_u32 m0, s{S_TB if tail else S_RG}, {slot*2048}"), mk(f"s_add_u32 s{S_PO}, s{S_FO}, {b*16*1024}")]
        t=[mk(f"buffer_load_dwordx4 v{V_FD+i}, {sr(R_T)}, s{S_PO} offen offset:{1024*i} lds") for i in range(2)]
        if b in self.o.get("skip_f",()): t=[mk("s_nop 0"),mk("s_nop 0")]
        return L+t,t
    def p3_dma_c(self, k):
        mat,ph,ct=k>>2,(k>>1)&1,k&1
        L=[mk(f"s_add_u32 m0, s{S_RG}, {k*4096}"), mk(f"s_add_u32 s{S_PO}, s{S_CO1 if ct else S_CO}, {ph*128}")]
        t=[mk(f"buffer_load_dwordx4 v{V_CD+q}, {sr(R_W if mat else R_B)}, s{S_PO} offen offset:{1024*q} lds") for q in range(4)]
        if k in self.o.get("skip_c",()): t=[mk("s_nop 0") for q in range(4)]
        return L+t,t
    def p3_rd_f(self, slot, dst, agpr):
        R=ar if agpr else vr
        return [mk(f"ds_read_b64_tr_b16 {R(dst+4*ct+2*q,2)}, v{V_FR+ct} offset:{slot*2048+1024*q}") for ct in range(2) for q in range(2)]
    def p3_rd_c(self, mat, ph, s, dst):
        return [mk(f"ds_read_b128 {vr(dst+4*ct,4)}, v{V_CR[s]} offset:{(4*mat+2*ph+ct)*4096}") for ct in range(2)]

    @staticmethod
    def cost(it):
        if isinstance(it,Wait): return 2
        if it.kind=="label": return 0
        if it.op in TRANS: return 8
        if it.kind=="vmem": return 12
        return 4
    def merge_time(self, stream, ev, t=0):
        out=[]; i=0
        for it in stream:
            sccuse = (not isinstance(it,Wait)) and (it.kind=="label" or it.op.startswith("s_cselect") or it.op.startswith("s_cbranch_scc") or it.op.startswith("s_addc"))
            while (not sccuse) and i<len(ev) and ev[i][0]<=t:
                for x in ev[i][1]:
                    out.append(x); t+=self.cost(x)
                i+=1
            out.append(it); t+=self.cost(it)
        return out,ev[i:],t

    def phase3(self, tok):
        p=self.p
        ACC=32; RING=96; D=self.o.get('ring',12); BJ=96+8*D
        order=[("f",b) for b in range(24)]+[("c",0,1,s) for s in range(4)]+[("c",1,0,s) for s in range(4)]+[("c",1,1,s) for s in range(4)]+[("f",b) for b in range(24,28)]+[("c",0,0,s) for s in range(4)]
        pf={}
        first_use={-2:0,-1:4,0:8,1:12,2:16,3:20}
        rest=self.p3_rest; base=4-len(rest)
        for k,G in enumerate(rest):
            st0=self.o.get("pf0",0)+2*k
            a,b=split(G,2); pf[st0]=pf.get(st0,[])+a; pf[st0+1]=pf.get(st0+1,[])+b
            assert st0+1 < first_use[base+k]
        def krel(st):
            if st[0]=="f": return 11*(st[1]//7)+st[1]%7
            _,mat,ph,s=st
            return 11*(2*ph+(s>>1))+7+2*mat+(s&1)
        def aload(i):
            st=order[i]; r=RING+8*(i%D); k=krel(st)*1024
            L=[mk(f"s_add_u32 s{S_T2}, s{S_A0}, {k}"), mk(f"s_add_u32 s{S_T3}, s{S_A0+1}, {k}")]
            t=[mk(f"buffer_load_dwordx4 {vr(r+4*e,4)}, v{V_AO}, {sr(R_WS)}, s{S_T2+e} offen sc1") for e in range(2)]
            return [L[0],t[0],L[1],t[1]],t
        at={}
        for i in range(D):
            L,at[i]=aload(i); p.add(L)
        for G in self.p3_wait: p.add(G)
        fl=self.final_loads()
        xt=self.xterm_items()
        brd={}
        def bread(i):
            st=order[i]; dst=BJ+8*(i%3)
            if st[0]=="f":
                b=st[1]
                if b<24: return None
                slot=b-8
                return [Wait(vm=tok[("f",b)])]+self.p3_rd_f(slot,dst,False)
            _,mat,ph,s=st
            w=[Wait(vm=tok[("c",4*mat+2*ph+ct)]) for ct in range(2)]
            return w+self.p3_rd_c(mat,ph,s,dst)
        n=len(order)
        x0=self.o.get("xt0",13); xn=8
        xparts=split(xt,xn)
        for i in range(n):
            st=order[i]
            fill=[]
            if i+2<n:
                r=bread(i+2)
                if r: brd[i+2]=[x for x in r if not isinstance(x,Wait)]; fill+=r
            fill+=pf.get(i,[])
            if 2<=i<6: fill+=split(fl,4)[i-2]
            if x0<=i<x0+xn: fill+=xparts[i-x0]
            r=RING+8*(i%D)
            if st[0]=="f" and st[1]<24: B=lambda ct,b=st[1]: ar(self.blk_areg(b)+4*ct,4)
            else: B=lambda ct,i=i: vr(BJ+8*(i%3)+4*ct,4)
            mf=[]
            for tau in range(2):
                for ct in range(2):
                    a=ACC+16*(2*tau+ct)
                    mf.append(mk(f"v_mfma_f32_32x32x16_bf16 {vr(a,16)}, {vr(r+4*tau,4)}, {B(ct)}, {'0' if i==0 else vr(a,16)}"))
            if i==24-D-1: p.add(self.p3_poll2[1])
            if i==max(24-D-1-self.o.get("poll2_lead",6),0): fill+=self.p3_poll2[0]
            p.wait(vm=at[i][0])
            if self.o.get("p3st") and i%8==0: p.add(self.stamp(1 if i==0 else 2+i//8))
            if i in brd: p.wait(lgkm=brd[i])
            k=len(fill); f3=[fill[(k*q)//3:(k*(q+1))//3] for q in range(3)]
            p.add(mf[0]); p.add(f3[0]); p.add(mf[1]); p.add(f3[1])
            p.wait(vm=at[i][1])
            p.add(mf[2]); p.add(f3[2]); p.add(mf[3])
            if i+D<n:
                L,at[i+D]=aload(i+D); p.add(L)

    def a_base(self):
        L=[]; A=lambda x: L.append(mk(x))
        A(f"s_lshl_b32 s{S_A0}, s{S_C3}, 2"); A(f"s_lshl_b32 s{S_T0}, s{S_RH}, 1"); A(f"s_add_u32 s{S_A0}, s{S_A0}, s{S_T0}"); A(f"s_mul_i32 s{S_A0}, s{S_A0}, 176")
        A(f"s_mul_i32 s{S_T0}, s{S_W}, 44"); A(f"s_add_u32 s{S_A0}, s{S_A0}, s{S_T0}"); A(f"s_lshl_b32 s{S_A0}, s{S_A0}, 10")
        A(f"s_lshr_b32 s{S_T0}, s{S_W}, 1"); A(f"s_mul_i32 s{S_T0}, s{S_T0}, {176*1024}"); A(f"s_xor_b32 s{S_T1}, s{S_T0}, {176*1024}")
        A(f"s_add_u32 s{S_A0+1}, s{S_A0}, s{S_T1}"); A(f"s_add_u32 s{S_A0}, s{S_A0}, s{S_T0}")
        return L

    @staticmethod
    def reg_of_row(rho): return 2*rho if rho<8 else 2*(rho-8)+1
    def final_loads(self):
        L=[]; A=lambda x: L.append(mk(x)) or L[-1]
        XV,GV,DV=2,216,18
        a=V_T
        A(f"s_lshl_b32 s{S_R0}, s{S_C3}, 7"); A(f"s_lshl_b32 s{S_T0}, s{S_RH}, 6"); A(f"s_add_u32 s{S_R0}, s{S_R0}, s{S_T0}"); A(f"s_lshr_b32 s{S_T0}, s{S_W}, 1"); A(f"s_lshl_b32 s{S_T0}, s{S_T0}, 5"); A(f"s_add_u32 s{S_R0}, s{S_R0}, s{S_T0}")
        A(f"s_lshl_b32 s{S_D0}, s{S_CB}, 6"); A(f"s_and_b32 s{S_T0}, s{S_W}, 1"); A(f"s_lshl_b32 s{S_T0}, s{S_T0}, 5"); A(f"s_add_u32 s{S_D0}, s{S_D0}, s{S_T0}")
        A(f"v_lshrrev_b32 v{a}, 5, v{V_L}"); A(f"v_lshlrev_b32 v{a+1}, 6, v{a}"); A(f"s_lshl_b32 s{S_T0}, s{S_R0}, 2"); A(f"s_add_u32 s{S_T0}, s{S_T0}, {WS_G}")
        toks=[]
        for i in range(4): toks.append(A(f"buffer_load_dwordx4 {vr(GV+4*i,4)}, v{a+1}, {sr(R_WS)}, s{S_T0} offen offset:{16*i} sc1"))
        for i,(v) in enumerate((P_DSK,P_DSK+1)): A(f"s_mov_b32 s{R_T2+i}, s{v}")
        A(f"s_mov_b32 s{R_T2+2}, 1024"); A(f"s_mov_b32 s{R_T2+3}, 0x20000")
        A(f"v_and_b32 v{a+2}, 31, v{V_L}"); A(f"v_add_u32 v{a+2}, s{S_D0}, v{a+2}")
        A(f"v_lshlrev_b32 v{V_OO}, 2, v{a+2}"); A(f"v_lshlrev_b32 v{a+2}, 1, v{a+2}")
        toks.append(A(f"buffer_load_ushort v{DV}, v{a+2}, {sr(R_T2)}, 0 offen"))
        A(f"v_lshlrev_b32 v{a}, 14, v{a}"); A(f"v_add_u32 v{a+2}, v{a+2}, v{a}"); A(f"s_lshl_b32 s{S_T0}, s{S_R0}, 10")
        for rho in range(16):
            if rho and rho%4==0: A(f"s_add_u32 s{S_T0}, s{S_T0}, 4096")
            toks.append(A(f"buffer_load_ushort v{XV+self.reg_of_row(rho)}, v{a+2}, {sr(R_X)}, s{S_T0} offen offset:{1024*(rho%4)}"))
        A(f"v_lshl_add_u32 v{V_OO}, v{a}, 1, v{V_OO}")
        self.fin_toks=toks
        return L

    def xterm_items(self):
        XV,GV,DV=2,216,18
        L=[Wait(vm=self.fin_toks), mk(f"v_lshlrev_b32 v{DV}, 16, v{DV}")]
        for r in range(16): L.append(mk(f"v_lshlrev_b32 v{XV+r}, 16, v{XV+r}"))
        for r in range(16): L.append(mk(f"v_mul_f32 v{XV+r}, v{XV+r}, v{DV}"))
        for r in range(0,16,2): L.append(mk(f"v_cvt_pk_bf16_f32 v{XV+r}, v{XV+r}, v{XV+r+1}"))
        for r in range(0,16,2): L+=[mk(f"v_and_b32 v{XV+r+1}, 0xffff0000, v{XV+r}"), mk(f"v_lshlrev_b32 v{XV+r}, 16, v{XV+r}")]
        for r in range(16): L.append(mk(f"v_mul_f32 v{XV+r}, v{XV+r}, v{GV+r}"))
        a=V_T
        L+=[mk(f"v_lshlrev_b32 v{a}, 4, v{V_L}")]
        for k in range(1,4):
            L+=[mk(f"s_xor_b32 s{S_T0}, s{S_W}, {k}"), mk(f"s_mul_i32 s{S_T0}, s{S_T0}, {REGION}"), mk(f"v_add_u32 v{a+k}, s{S_T0}, v{a}")]
        L+=[mk(f"v_add_u32 v{a}, s{S_RG}, v{a}")]
        for k,v in enumerate((f"s{P_OUT}",f"s{P_OUT+1}",2048*2048,"0x20000")): L.append(mk(f"s_mov_b32 s{R_T2+k}, {v}"))
        L+=[mk(f"s_lshl_b32 s{S_R0}, s{S_R0}, 11")]
        return L

    def final(self):
        p=self.p
        ACC=32; XV=2
        a=V_T
        wr=[]
        for k in range(1,4):
            for q in range(4): wr.append(p.I(f"ds_write_b128 v{a}, {vr(ACC+16*k+4*q,4)} offset:{(k-1)*4096+q*1024}"))
        for r in range(0,16,2): p.I(f"v_pk_add_f32 {vr(ACC+r,2)}, {vr(ACC+r,2)}, {vr(XV+r,2)}")
        p.wait(lgkm_all=True); p.I("s_barrier")
        rd=[]
        for k in range(1,4):
            for q in range(4): rd.append(p.I(f"ds_read_b128 {vr(96+16*(k-1)+4*q,4)}, v{a+k} offset:{(k-1)*4096+q*1024}"))
        for k in range(3):
            for q in range(4):
                p.wait(lgkm=rd[4*k+q])
                for r in (4*q,4*q+2): p.I(f"v_pk_add_f32 {vr(ACC+r,2)}, {vr(ACC+r,2)}, {vr(96+16*k+r,2)}")
        fl=self.o.get("out_flags","")
        for rho in range(16):
            if rho and rho%2==0: p.I(f"s_add_u32 s{S_R0}, s{S_R0}, 4096")
            p.I(f"buffer_store_dword v{ACC+self.reg_of_row(rho)}, v{V_OO}, {sr(R_T2)}, s{S_R0} offen offset:{2048*(rho%2)} {fl}")

    def stamp(self, idx):
        if not self.o.get("stamps"): return []
        only=self.o.get("only")
        if only is not None and idx not in only: return []
        L=[mk("s_memrealtime s[100:101]"), mk("s_waitcnt lgkmcnt(0)"), mk(f"v_writelane_b32 v{V_ST}, s100, {idx}")]
        if self.o.get("cyc"): L+=[mk("s_memtime s[100:101]"), mk("s_waitcnt lgkmcnt(0)"), mk(f"v_writelane_b32 v{V_ST}, s100, {idx+16}")]
        return L
    def note(self, idx, sreg):
        if not self.o.get("stamps"): return []
        return [mk("s_nop 0"), mk(f"v_writelane_b32 v{V_ST}, s{sreg}, {idx}")]
    def dump_stamps(self):
        if not self.o.get("stamps"): return
        p=self.p
        p.I(f"s_lshl_b32 s{S_T0}, s2, 2\ns_add_u32 s{S_T0}, s{S_T0}, s{S_W}\ns_lshl_b32 s{S_T0}, s{S_T0}, 8\ns_add_u32 s{S_T0}, s{S_T0}, {WS_DBG}")
        p.I(f"v_lshlrev_b32 v{V_T}, 2, v{V_L}")
        p.I(f"buffer_store_dword v{V_ST}, v{V_T}, {sr(R_WS)}, s{S_T0} offen")
        p.wait(vm_all=True)

    def dump_regs(self, regs, slot_base, agpr=False):
        p=self.p
        n=len(regs)
        p.I(f"s_lshl_b32 s{S_T0}, s2, 2\ns_add_u32 s{S_T0}, s{S_T0}, s{S_W}\ns_mul_i32 s{S_T0}, s{S_T0}, {n*256}\ns_add_u32 s{S_T0}, s{S_T0}, {slot_base}")
        p.I(f"v_lshlrev_b32 v{V_T}, 2, v{V_L}")
        for i,r in enumerate(regs):
            p.I(f"buffer_store_dword {r}, v{V_T}, {sr(R_WS)}, s{S_T0} offen")
            p.I(f"s_add_u32 s{S_T0}, s{S_T0}, 256")
        p.wait(vm_all=True)

    def finish(self):
        p=self.p
        p.I("s_endpgm")
        for x in self.slow: p.I(x)
        p.I("L_exit:\ns_endpgm\nL_codeend:")

    def text(self):
        items,npad,errs=finalize(self.p)
        for e in errs[:20]: print("ERR",e,file=sys.stderr)
        hdr=open("gated_mix__ssm_conv_s5__glu_gated_geglu__prompt.s.ref").read().split("; Override launch")[0]
        out=hdr+"; @launch grid=(256,1,1) block=(256,1,1) lds=163840\n"
        out+='.amdgcn_target "amdgcn-amd-amdhsa--gfx950"\n.text\n'
        out+=f".globl {KNAME}\n.p2align 8\n.type {KNAME},@function\n{KNAME}:\n"
        out+=emit(items)
        out+=f'''.section .rodata,"a"
.p2align 6
.amdhsa_kernel {KNAME}
  .amdhsa_next_free_vgpr 512
  .amdhsa_next_free_sgpr 102
  .amdhsa_accum_offset 256
  .amdhsa_group_segment_fixed_size 0
  .amdhsa_kernarg_size 136
  .amdhsa_user_sgpr_count 2
  .amdhsa_user_sgpr_kernarg_segment_ptr 1
  .amdhsa_system_sgpr_workgroup_id_x 1
.end_amdhsa_kernel
'''
        self.stats=dict(n=len(items),npad=npad,errs=len(errs))
        return out

def cutpt(L,k):
    while k<len(L) and (not isinstance(L[k],Wait)) and (L[k].kind=="label" or L[k].op.startswith("s_cselect") or L[k].op.startswith("s_cbranch") or L[k].op.startswith("s_addc")): k+=1
    return k
def split(L,n):
    k=len(L); c=[0]+[cutpt(L,(k*i)//n) for i in range(1,n)]+[k]; return [L[c[i]:c[i+1]] for i in range(n)]

def build_full(opts=None, stop=None):
    g=Gen(opts=opts); p=g.p; o=g.o
    if o.get("stamps"): p.I(f"v_mov_b32 v{V_ST}, 0")
    p.add(g.stamp(0))
    g.prologue_a()
    ex={}; head={}
    segs=[]
    def seg(items,a,b,tag=None):
        items=list(items)
        if tag and tag in o.get("abl",()):
            items=[x for x in items if isinstance(x,Wait) or (not isinstance(x,list) and x.kind in("vmem","ds"))]
        segs.append((items,a,b))
    def addh(key,items): head[key]=head.get(key,[])+list(items)
    F=lambda c,s_: ("F",c,s_)
    S=lambda c,d: ("S",c,d)
    def late():
        G=g.gate_items(); K=g.const_items()
        tp=o.get("touch_p3",1)
        if tp: seg(g.touch_setup_w(),F(0,0),F(0,0))
        T=lambda a_,b_,R: seg(g.touch_one(R),F(a_,b_),F(a_,b_))
        n3=cutpt(G,len(G)//3); n4=cutpt(G,2*len(G)//3)
        seg(G[:n3],F(0,0),F(0,3),'gate')
        seg(G[n3:n4],S(2,0),F(1,0),'gate')
        if tp: T(1,1,R_T)
        seg(G[n4:],F(1,1),F(1,2),'gate')
        if tp: T(1,3,R_T)
        addh(F(2,3),[Wait(vm=[g.g_store,g.c_store,g.e_init])])
        half=cutpt(K,len(K)//2)
        seg(K[:half],S(4,0),F(2,1),'const')
        if tp: T(2,1,R_T); T(2,2,R_T)
        seg(g.flag_op("add",[f"s_lshl_b32 s{S_T0}, s{S_C}, 4"],"1"),F(2,3),F(2,3))
        seg(K[half:],F(2,3),S(7,1),'const')
        Lp,tp_=g.gpoll_issue(23)
        L1,w1=g.pass1()
        seg(L1[:22],F(3,0),F(3,0),'p1')
        if tp: T(3,1,R_T)
        seg(L1[22:48],F(3,0),F(3,1),'p1')
        if tp: T(3,2,R_T)
        seg(L1[48:],F(3,1),F(3,2),'p1')
        addh(F(3,3),[Wait(lgkm=w1)])
        L2,est=g.exchange()
        seg(Lp,F(3,3),F(3,3))
        c2=cutpt(L2,40); seg(L2[:c2],F(3,3),F(4,0),'ex')
        if tp: T(4,1,R_T)
        seg(L2[c2:],F(4,1),F(4,2),'ex')
        addh(F(4,3),g.gpoll_check(23,tp_))
        Lg,gt=g.g_loads(); g.gt=gt
        seg(g.copy_consts(),F(4,3),F(4,3))
        if tp: seg(g.touch_setup_c()+g.touch_one(R_T2),F(4,3),F(5,0)); T(5,1,R_T2)
        seg(Lg,F(5,1),F(5,1))
        pass
        if tp: T(5,2,R_T2); T(5,3,R_T2)
        seg(g.p3_patterns1()+g.p3_patterns2(),F(5,3),F(6,2),'pat')
        Le2,et=g.e_loads(); g.et=et
        seg(Le2,F(7,1),F(7,3))
    g.late=late
    g.late2=lambda: None
    g.segs=segs
    g.ex=ex; g.extra_head=head; g.end_barrier=True
    if o.get("stamps"):
        def st():
            for key,idx in ((("S",0,0),2),(("F",0,0),3),(("S",2,0),4),(("S",4,0),5),(("S",6,0),6),(("F",4,0),7),(("F",7,3),8)):
                head[key]=(g.stamp(idx) if not o.get("p3st") else [])+head.get(key,[])
            if o.get("fine"):
                k=40
                for ch in range(3,8):
                    for st_ in range(4):
                        head[("F",ch,st_)]=g.stamp(k)+head.get(("F",ch,st_),[]); k+=1
        g.late3=st
    g.phase1(ex)
    p.add(g.stamp(9))
    if o.get("p1only"):
        p.wait(vm_all=True,lgkm_all=True); p.add(g.stamp(15)); g.dump_stamps(); g.finish(); return g
    tok={}
    pre,tiles,Sf,sf=g.ffn_epilogue(g.gt[:1])
    Ls,ss=g.ssm_epilogue(g.et,g.gt[1:],[mk(f"s_add_u32 s{S_T0}, s{S_RG}, 36864")])
    def pub(dw): return g.flag_op("add",[f"s_lshl_b32 s{S_T0}, s{S_C}, 7", f"s_add_u32 s{S_T0}, s{S_T0}, {WS_CNT+4*dw}", f"s_lshr_b32 s{S_K0}, s{S_J}, 2", f"s_lshl_b32 s{S_K0}, s{S_K0}, 3", f"s_lshl_b32 s{S_K0}, 1, s{S_K0}"],f"s{S_K0}",R=R_WS)
    p.I("s_nop 7")
    p.add(pre)
    for i in range(7):
        p.add(tiles[i]); p.add(Sf[i])
    if o.get("cyc"): p.add(g.stamp(1))
    cut=[k for k,x in enumerate(Ls) if not isinstance(x,Wait) and x.text.startswith(f"s_add_u32 s{S_T0}, s{S_RG}, 36864")][0]
    if o.get("two",1):
        p.add(Ls[:cut]); p.wait(vm=sf); p.I("s_barrier"); p.add(pub(0)); p.add(Ls[cut:])
    else: p.add(Ls)
    p.add(g.stamp(10))
    p.wait(lgkm=g.t_reads)
    nb0=o.get("nb0",9)
    for b in range(nb0):
        L,tok[("f",b)]=g.p3_dma_f(b,b); p.add(L)
    p.wait(vm=sf+ss); p.add(g.stamp(11)); p.I("s_barrier")
    p.add(pub(1))
    if not o.get("two",1): p.add(pub(0))
    if o.get("fine"): p.add(g.stamp(60))
    Lq,tq=g.poll_issue(30,[f"s_lshl_b32 s{S_T0}, s{S_C3}, 7", f"s_add_u32 s{S_T0}, s{S_T0}, {WS_CNT}"],R=R_WS)
    early=o.get("early_poll",1)
    nb1=o.get("nb1",14)
    for b in range(nb0,nb1):
        L,tok[("f",b)]=g.p3_dma_f(b,b); p.add(L)
    if early: p.add(Lq); p.add(g.a_base())
    for b in range(nb1,20):
        L,tok[("f",b)]=g.p3_dma_f(b,b); p.add(L)
    def group(gi):
        bs=range(4*gi,4*gi+4); L=[Wait(vm=tok[("f",4*gi+3)])]; rd=[]
        for b in bs:
            r=g.p3_rd_f(b if b<20 else b-20,g.blk_areg(b),True); rd+=r; L+=r
        L.append(Wait(lgkm=rd))
        if gi==0:
            for b in range(20,24):
                l,tok[("f",b)]=g.p3_dma_f(b,b-20); L+=l
        elif gi in (1,2,3):
            for k in (2*gi,2*gi+1):
                l,tok[("c",k)]=g.p3_dma_c(k); L+=l
        elif gi==5:
            for k in (0,1):
                l,tok[("c",k)]=g.p3_dma_c(k); L+=l
        return L
    G0=group(0); G1=group(1); G2=group(2); G3=group(3)
    G4=[Wait(vm=tok[("f",19)])]; rd4=[]
    for b in range(16,20):
        r=g.p3_rd_f(b,g.blk_areg(b),True); rd4+=r; G4+=r
    G4.append(Wait(lgkm=rd4))
    for b in range(24,28):
        l,tok[("f",b)]=g.p3_dma_f(b,b-8); G4+=l
    G5=group(5)
    Gs=[G0,G1,G2,G3,G4,G5]
    n_before_check=o.get("gc",0); n_after=o.get("ga",4)
    if not early: p.add(Lq); p.add(g.a_base())
    for x in Gs[:n_before_check]: p.add(x)
    if o.get("fine"): p.add(g.stamp(61))
    bytecheck=[f"s_lshl_b32 s{S_T1}, s{S_W}, 3", f"s_lshr_b32 s{S_T0}, s{S_T0}, s{S_T1}", f"s_and_b32 s{S_T0}, s{S_T0}, 0xff", f"s_cmp_eq_u32 s{S_T0}, 4"]
    p.add(g.poll_check("a",30,tq,bytecheck,R=R_WS,sleep=0))
    g.p3_wait=Gs[n_before_check:n_after]
    g.p3_rest=Gs[n_after:]
    Lq2,tq2=g.poll_issue(28,[f"s_lshl_b32 s{S_T0}, s{S_C3}, 7", f"s_add_u32 s{S_T0}, s{S_T0}, {WS_CNT+4}"],R=R_WS)
    g.p3_poll2=(Lq2, g.poll_check("s",28,tq2,bytecheck,R=R_WS,sleep=0))
    p.add(g.stamp(12))
    g.phase3(tok)
    p.add(g.stamp(13))
    g.final()
    p.add(g.stamp(14))
    if o.get("stamps"): p.wait(vm_all=True)
    p.add(g.stamp(15))
    g.dump_stamps()
    g.finish()
    return g

if __name__=="__main__":
    opts=eval(sys.argv[2]) if len(sys.argv)>2 else {}
    g=build_full(opts=opts); t=g.text(); open(sys.argv[1] if len(sys.argv)>1 else "full.s","w").write(t); print(g.stats)
```

```python
import sys
from asmb import *

KNAME="gated_mix__ssm_conv_s5__glu_gated_geglu__prompt_kernel"

WS_A=0; WS_E=0xB00000; WS_G=0xB10000; WS_CNT=0xB18000; WS_DBG=0xB20000; WS_SIZE=0x4000000
OOB=0x7ff00000
WSLOT=28928; WUP=14464
L_W=0; L_B=86784; L_X=119552; L_EX=152320; L_GL=154368
P_X,P_LRE,P_LIM,P_BRE,P_BIM,P_CRE,P_CIM,P_LDT=4,6,8,10,12,14,16,18
P_DSK,P_BX,P_WG,P_WU,P_WD,P_GW,P_OUT,P_DBG=20,22,24,26,28,30,32,34
P_WS=36
S_C,S_J,S_W,S_C3,S_RH,S_CB=38,39,40,41,42,43
R_X,R_B,R_W,R_WS,R_DBG,R_T,R_T2=44,48,52,56,60,64,68
S_XO,S_BO,S_WO=72,73,74
S_XROW,S_BROW,S_WROW=75,76,77
S_XM,S_BM,S_WM=78,79,80
S_T0,S_T1,S_T2,S_T3=81,82,83,84
S_GT=85
S_M0=86
S_CNT=88
S_K0=89
S_AO=91
V_AO=22
S_RG,S_FO,S_CO=92,93,94
S_TB,S_PO=6,3
S_A0=96
S_R0,S_D0=98,99
REGION=40960
V_FD=232
V_CD=234
V_FR=238
V_CR=[240,241,242,243]
V_OO=23
V_ST=247
A_JUNK=190
V_TCH=0
S_TW=95
S_CO1=95
V_JUNK=24
SGT=[6,7,8,9,18,19,30,31]
A_P3=64
A_KS=48
V_TID,V_L=0,1
V_XG=2
V_BG=6
V_WG=8
V_WA,V_WB=15,16
V_BA=17
V_XA=21
V_T=25
V_ACC=32
V_SRE,V_SIM=144,160
V_WF=176
V_BF=232
V_U=248
A_X=0
A_BF=128
A_K=160

def srd(p, reg, ptr, size):
    p.I(f"s_mov_b32 s{reg}, s{ptr}\ns_mov_b32 s{reg+1}, s{ptr+1}\ns_mov_b32 s{reg+2}, {size}\ns_mov_b32 s{reg+3}, 0x20000")

def sr(r): return f"s[{r}:{r+3}]"
def vr(r,n): return f"v[{r}:{r+n-1}]" if n>1 else f"v{r}"
def ar(r,n): return f"a[{r}:{r+n-1}]" if n>1 else f"a{r}"

class Gen:
    def __init__(self, stop_after=None, opts=None):
        self.p=Prog(); self.stop=stop_after; self.o=opts or {}; self.slow=[]
    def prologue_a(self):
        p=self.p
        p.I("s_cmp_ge_u32 s2, 256\ns_cbranch_scc1 L_exit")
        p.I("s_load_dwordx16 s[4:19], s[0:1], 0"); p.I("s_load_dwordx16 s[20:35], s[0:1], 64"); p.I("s_load_dwordx2 s[36:37], s[0:1], 128")
        p.I(f"v_and_b32 v{V_L}, 63, v0\nv_lshrrev_b32 v{V_T}, 6, v0")
        p.I(f"s_lshr_b32 s{S_C}, s2, 4\ns_and_b32 s{S_J}, s2, 15")
        p.I(f"v_readfirstlane_b32 s{S_W}, v{V_T}")
        l=f"v{V_L}"; T=V_T
        p.I(f"v_lshrrev_b32 v{T}, 5, {l}\nv_lshlrev_b32 v{T}, 4, v{T}\nv_bfe_u32 v{T+1}, {l}, 3, 1\nv_lshl_add_u32 v{T}, v{T+1}, 3, v{T}\nv_bfe_u32 v{T+1}, {l}, 4, 1\nv_add_u32 v{T}, v{T}, v{T+1}\nv_lshlrev_b32 v{T}, 10, v{T}")
        p.I(f"v_and_b32 v{T+1}, 7, {l}\nv_lshrrev_b32 v{T+2}, 4, {l}\nv_xor_b32 v{T+3}, v{T+1}, v{T+2}\nv_xor_b32 v{T+4}, 4, v{T+3}")
        p.I(f"v_lshlrev_b32 v{T+3}, 4, v{T+3}\nv_lshlrev_b32 v{T+4}, 4, v{T+4}")
        for q in range(4):
            p.I(f"v_add_u32 v{V_XG+q}, v{T}, v{T+3+(q&1)}")
            if q: p.I(f"v_add_u32 v{V_XG+q}, {1024*q}, v{V_XG+q}")
        p.I(f"v_lshrrev_b32 v{T}, 3, {l}\nv_lshlrev_b32 v{T}, 10, v{T}")
        p.I(f"v_add_u32 v{V_BG}, v{T}, v{T+3}\nv_add_u32 v{V_BG+1}, v{T}, v{T+4}\nv_add_u32 v{V_BG+1}, {7*1024}, v{V_BG+1}")
        p.I(f"s_lshl_b32 s{S_T0}, s{S_W}, 12\ns_add_u32 s{S_XM}, s{S_T0}, {L_X}")
        p.I(f"s_lshl_b32 s{S_T1}, s{S_C}, 2\ns_add_u32 s{S_T1}, s{S_T1}, s{S_W}\ns_lshl_b32 s{S_XROW}, s{S_T1}, 15")
        p.I(f"s_and_b32 s{S_T1}, s{S_W}, 1\ns_lshr_b32 s{S_T2}, s{S_W}, 1")
        p.I(f"s_lshl_b32 s{S_T3}, s{S_J}, 1\ns_add_u32 s{S_T3}, s{S_T3}, s{S_T1}\ns_lshl_b32 s{S_BROW}, s{S_T3}, 14")
        p.I(f"s_lshl_b32 s{S_BM}, s{S_T2}, 12\ns_lshl_b32 s{S_T3}, s{S_T1}, 11\ns_add_u32 s{S_BM}, s{S_BM}, s{S_T3}\ns_add_u32 s{S_BM}, s{S_BM}, {L_B}")
        p.I(f"s_mul_i32 s{S_WROW}, s{S_T1}, {32*3584}\ns_mul_i32 s{S_T3}, s{S_J}, 224\ns_add_u32 s{S_WROW}, s{S_WROW}, s{S_T3}")
        p.I(f"s_mul_i32 s{S_WM}, s{S_T2}, {WUP}\ns_mul_i32 s{S_T3}, s{S_T1}, 7168\ns_add_u32 s{S_WM}, s{S_WM}, s{S_T3}")
        p.wait(lgkm_all=True)
        srd(p,R_X,P_X,2048*1024)
        p.I(f"s_cmp_eq_u32 s{S_T2}, 0")
        p.I(f"s_cselect_b32 s{R_B}, s{P_BRE}, s{P_BIM}\ns_cselect_b32 s{R_B+1}, s{P_BRE+1}, s{P_BIM+1}\ns_mov_b32 s{R_B+2}, {512*1024}\ns_mov_b32 s{R_B+3}, 0x20000")
        p.I(f"s_cselect_b32 s{R_W}, s{P_WG}, s{P_WU}\ns_cselect_b32 s{R_W+1}, s{P_WG+1}, s{P_WU+1}\ns_mov_b32 s{R_W+2}, {512*3584}\ns_mov_b32 s{R_W+3}, 0x20000")
    def prologue_b(self):
        p=self.p; l=f"v{V_L}"; T=V_T
        p.I(f"s_mov_b32 s{S_T0}, 4682\ns_mov_b32 s{S_T1}, 3584")
        for i in range(7):
            p.I(f"v_add_u32 v{T}, {64*i}, {l}\nv_mul_lo_u32 v{T+1}, v{T}, s{S_T0}\nv_lshrrev_b32 v{T+1}, 16, v{T+1}")
            p.I(f"v_mul_u32_u24 v{T+2}, 14, v{T+1}\nv_sub_u32 v{T+2}, v{T}, v{T+2}\nv_lshlrev_b32 v{T+2}, 4, v{T+2}")
            p.I(f"v_mul_lo_u32 v{T+1}, v{T+1}, s{S_T1}\nv_add_u32 v{V_WG+i}, v{T+1}, v{T+2}")
            if i&3: p.I(f"v_subrev_u32 v{V_WG+i}, {1024*(i&3)}, v{V_WG+i}")
    def prologue_c(self):
        p=self.p; l=f"v{V_L}"; T=V_T
        p.I(f"v_lshrrev_b32 v{T}, 5, {l}\nv_lshlrev_b32 v{T}, 3, v{T}\nv_bfe_u32 v{T+1}, {l}, 2, 2\nv_add_u32 v{T}, v{T}, v{T+1}\nv_mul_u32_u24 v{T}, 224, v{T}")
        p.I(f"v_bfe_u32 v{T+1}, {l}, 1, 1\nv_mul_u32_u24 v{T+1}, {WUP}, v{T+1}\nv_add_u32 v{T}, v{T}, v{T+1}")
        p.I(f"v_bfe_u32 v{T+1}, {l}, 4, 1\nv_lshlrev_b32 v{T+1}, 4, v{T+1}\nv_add_u32 v{T}, v{T}, v{T+1}")
        p.I(f"v_and_b32 v{T+1}, 1, {l}\nv_lshlrev_b32 v{T+1}, 3, v{T+1}\nv_add_u32 v{V_WA}, v{T}, v{T+1}\nv_add_u32 v{V_WB}, {2*WSLOT}, v{V_WA}")
        p.I(f"v_and_b32 v{T}, 31, {l}\nv_lshlrev_b32 v{T+1}, 7, v{T}\nv_bfe_u32 v{T+2}, {l}, 1, 3\nv_lshrrev_b32 v{T+3}, 5, {l}\nv_xor_b32 v{T+2}, v{T+2}, v{T+3}")
        p.I(f"s_lshl_b32 s{S_T0}, s{S_W}, 12\ns_add_u32 s{S_T0}, s{S_T0}, {L_X}")
        for s in range(4):
            p.I(f"v_xor_b32 v{T+3}, {2*s}, v{T+2}\nv_lshlrev_b32 v{T+3}, 4, v{T+3}\nv_add_u32 v{T+3}, v{T+1}, v{T+3}\nv_add_u32 v{V_BA+s}, {L_B}, v{T+3}\nv_add_u32 v{V_XA+s}, s{S_T0}, v{T+3}")
        srd(p,R_WS,P_WS,WS_SIZE); srd(p,R_DBG,P_DBG,256)
        p.I(f"s_lshr_b32 s{S_T0}, s2, 6\ns_lshl_b32 s{S_T0}, s{S_T0}, 2\ns_bfe_u32 s{S_T1}, s2, 0x20001\ns_add_u32 s{S_C3}, s{S_T0}, s{S_T1}")
        p.I(f"s_and_b32 s{S_RH}, s2, 1\ns_bfe_u32 s{S_CB}, s2, 0x30003")

    def dma_x(self, ch):
        slot=ch&1
        L=[mk(f"s_add_u32 m0, s{S_XM}, {slot*16384}"), mk(f"s_add_u32 s{S_XO}, s{S_XROW}, {ch*128}")]
        toks=[mk(f"buffer_load_dwordx4 v{V_XG+q}, {sr(R_X)}, s{S_XO} offen offset:{1024*q} lds") for q in range(4)]
        return L+toks, toks
    def dma_b(self, ch):
        slot=(ch>>1)&1
        L=[mk(f"s_add_u32 m0, s{S_BM}, {slot*16384+(ch&1)*8192}"), mk(f"s_add_u32 s{S_BO}, s{S_BROW}, {ch*128}")]
        toks=[mk(f"buffer_load_dwordx4 v{V_BG+i}, {sr(R_B)}, s{S_BO} offen offset:{1024*i} lds") for i in range(2)]
        return L+toks, toks
    def dma_w(self, ch):
        slot=ch%3
        L=[mk(f"s_add_u32 m0, s{S_WM}, {slot*WSLOT}"), mk(f"s_add_u32 s{S_WO}, s{S_WROW}, {ch*64*3584}")]
        toks=[]
        for i in range(7):
            if i==4: L.append(mk(f"s_add_u32 m0, s{S_WM}, {slot*WSLOT+4096}"))
            t=mk(f"buffer_load_dwordx4 v{V_WG+i}, {sr(R_W)}, s{S_WO} offen offset:{1024*(i&3)} lds"); toks.append(t); L.append(t)
        return L,toks
    def rd_x(self, ch):
        return [mk(f"ds_read_b128 {ar(A_X+16*ch+4*s,4)}, v{V_XA+s} offset:{(ch&1)*16384}") for s in range(4)]
    def rd_b(self, ch, d, bset):
        base=((ch>>1)&1)*16384+(ch&1)*8192
        L=[]
        for e in range(2):
            for m in range(2):
                L.append(mk(f"ds_read_b128 {ar(A_BF+16*bset+8*e+4*m,4)}, v{V_BA+2*d+e} offset:{base+4096*m}"))
        return L
    def rd_w(self, ch, s, wset):
        slot=ch%3; va=V_WB if slot==2 else V_WA; base=0 if slot==2 else slot*WSLOT
        L=[]
        for i in range(7):
            for q in range(2):
                d=V_WF+28*wset+4*i+2*q
                L.append(mk(f"ds_read_b64_tr_b16 {vr(d,2)}, v{va} offset:{base+(16*s+4*q)*224+32*i}"))
        return L
    def mf_s(self, ch, d, bset):
        L=[]
        for e in range(2):
            s=2*d+e
            x=ar(A_X+16*ch+4*s,4)
            first=(ch==0 and s==0)
            for m,a in enumerate((V_SRE,V_SIM)):
                L.append(mk(f"v_mfma_f32_32x32x16_bf16 {vr(a,16)}, {x}, {ar(A_BF+16*bset+8*e+4*m,4)}, {'0' if first else vr(a,16)}"))
        return L
    def mf_f(self, ch, s, wset):
        x=ar(A_X+16*ch+4*s,4)
        first=(ch==0 and s==0)
        return [mk(f"v_mfma_f32_32x32x16_bf16 {vr(V_ACC+16*i,16)}, {vr(V_WF+28*wset+4*i,4)}, {x}, {'0' if first else vr(V_ACC+16*i,16)}") for i in range(7)]

    def phase1(self, extra):
        p=self.p
        X={};B={};W={}
        def issue(lst):
            for kind,ch in lst:
                L,t={"x":self.dma_x,"b":self.dma_b,"w":self.dma_w}[kind](ch); p.add(L); {"x":X,"b":B,"w":W}[kind][ch]=t
        fs=lambda i: p.add(self.stamp(i)) if self.o.get("fine") else None
        fs(32)
        w0_late=self.o.get("w0_late",1)
        for tokn in self.o.get("pro","x0,b0,sm,x1,b1,pb,pc,cp,ts,tw").split(","):
            if tokn[0] in "xbw" and tokn[1:].isdigit(): issue([(tokn[0],int(tokn[1:]))]); w0_late = 0 if tokn=="w0" else w0_late
            elif tokn=="sm": self.small_loads()
            elif tokn=="pb": self.prologue_b()
            elif tokn=="pc": self.prologue_c()
            elif tokn=="cp":
                if not self.o.get("nocodepf"): self.code_prefetch()
            elif tokn=="ts":
                if self.o.get("touch_p3",1): p.add(self.touch_setup_w())
            elif tokn=="tw": p.add(self.touch_w())
            elif tokn=="ta": p.add(self.touch_w_rows(0,4))
            elif tokn=="t2": p.add(self.touch_w_rows(64,2))
            elif tokn=="tb": p.add(self.touch_w_rows(128,12))
            elif tokn=="tB": p.add(self.touch_b())
            elif tokn=="mx": p.add(self.touch_mall("x"))
            elif tokn=="md": p.add(self.touch_mall("d"))
            else: raise ValueError(tokn)
        fs(36)
        self.late(); self.late2()
        if hasattr(self,"late3"): self.late3()
        if not self.o.get("cyc"): p.add(self.stamp(1))
        steps=[]
        for g in range(4):
            for ch in (2*g,2*g+1):
                for d in range(2): steps.append(("S",ch,d))
            for s in range(4): steps.append(("F",g,s))
        for ch in range(4,8):
            for s in range(4): steps.append(("F",ch,s))
        setof={}; cnt={"S":0,"F":0}
        for st in steps:
            setof[st]=cnt[st[0]]&1; cnt[st[0]]+=1
        reads={}
        for st in steps:
            k,ch,s=st
            reads[st]=self.rd_b(ch,s,setof[st]) if k=="S" else self.rd_w(ch,s,setof[st])
        xr={ch:self.rd_x(ch) for ch in range(8)}
        rfill={st:[] for st in steps}
        fill={st:[] for st in steps}
        head={st:[] for st in steps}
        for i,st in enumerate(steps[:-1]):
            nx=steps[i+1]
            if st[0]=="S" and nx[0]=="F":
                rfill[steps[i-1]]+=reads[nx][:6]; rfill[st]+=reads[nx][6:]
            else: rfill[st]=reads[nx]+rfill[st]
        p.wait(vm=X[0]+B[0]); p.I("s_barrier")
        p.add(xr[0][0:2]); p.add(reads[steps[0]][:2]); p.add(xr[0][2:]); p.add(reads[steps[0]][2:])
        if w0_late:
            L,W[0]=self.dma_w(0); fill[("S",0,0)]+=L
        if self.o.get("tb_late"): fill[self.o["tb_late"]]+=self.touch_w_rows(128,12,a=30,b=31,s0=S_T2,s1=S_T3)
        L,B[2]=self.dma_b(2); fill[("S",0,0)]+=L
        L,B[3]=self.dma_b(3); fill[("S",1,0)]+=L
        L,W[1]=self.dma_w(1); fill[("S",1,1)]+=L[:6]; w1b=L[6:]
        head[("S",0,1)]+=[Wait(vm=X[1]+B[1]), mk("s_barrier")]
        rfill[("S",0,1)]=xr[1][0:2]+rfill[("S",0,1)]+xr[1][2:]
        L,X[2]=self.dma_x(2); fill[("S",0,1)]+=[Wait(lgkm=xr[0])]+L
        L,X[3]=self.dma_x(3); fill[("S",1,1)]+=[Wait(lgkm=xr[1])]+L
        head[("S",1,0)]+=[Wait(vm=W[0]), mk("s_barrier")]
        fill[("F",0,0)]+=w1b
        L,W[2]=self.dma_w(2); fill[("F",0,1)]+=L[:6]; fill[("F",0,2)]+=L[6:]
        for g in range(1,4):
            a,b=2*g,2*g+1
            rfill[("F",g-1,1)]+=[Wait(vm=X[a]+X[b])]+xr[a]+xr[b]
            last=("F",g-1,3)
            head[last]+=[Wait(vm=B[a]+B[b]+W[g], lgkm=reads[last]+xr[a]+xr[b]), mk("s_barrier")]
            if g<3:
                L,X[a+2]=self.dma_x(a+2); fill[last]+=L
                L,X[b+2]=self.dma_x(b+2); fill[("S",a,0)]+=L
                L,B[a+2]=self.dma_b(a+2); fill[("S",a,1)]+=L
                L,B[b+2]=self.dma_b(b+2); fill[("S",b,0)]+=L
            L,W[g+2]=self.dma_w(g+2); fill[("F",g,0)]+=L
        for ch in range(4,8):
            last=("F",ch-1,3)
            head[last]+=[Wait(vm=W[ch], lgkm=reads[last]), mk("s_barrier")]
            if ch+2<8:
                L,W[ch+2]=self.dma_w(ch+2); fill[last]+=L[:6]; fill[("F",ch,0)]+=L[6:]
        for k,v in getattr(self,"extra_head",{}).items(): head[k]=list(v)+head[k]
        if getattr(self,"end_barrier",False):
            last=("F",7,3); head[last]+=[Wait(lgkm=reads[last]), mk("s_barrier")]
        self.steps=steps
        gap0={}; mfs={}; ng=0
        for st in steps:
            k,ch,s_=st
            mfs[st]=self.mf_s(ch,s_,setof[st]) if k=="S" else self.mf_f(ch,s_,setof[st])
            gap0[st]=ng; ng+=len(mfs[st])
        slots=[[] for _ in range(ng)]; free=[24.0]*ng
        cost=lambda it: sum(cost(x) for x in it) if isinstance(it,list) else (0 if isinstance(it,Wait) and False else self.cost2(it))
        def put(g,it): slots[g].append(it); free[g]-=cost(it)
        for st in steps:
            if gap0[st]>0: free[gap0[st]-1]-=sum(cost(x) for x in head[st])+4
        for st in steps:
            n=len(mfs[st]); rf=rfill[st]
            per=max(3 if st[0]=="F" else 2, -(-len(rf)//n))
            for t,it in enumerate(rf): put(gap0[st]+min(t//per,n-1),it)
        def atoms(items):
            out=[]
            for it in items:
                glue = out and (not isinstance(it,(Wait,list))) and (it.kind=="label" or it.op.startswith("s_cselect") or it.op.startswith("s_cbranch") or it.op.startswith("s_addc"))
                if glue: out[-1]=(out[-1] if isinstance(out[-1],list) else [out[-1]])+[it]
                else: out.append(it)
            return out
        def spread(items,g0,g1):
            at=atoms(items)
            C=sum(cost(x) for x in at)
            F=[max(free[g],0.0) for g in range(g0,g1)]
            tot=sum(F)
            if C>tot:
                ex_=(C-tot)/(g1-g0); F=[f+ex_ for f in F]; tot=C
            scale=C/tot if tot>0 else 1
            acc=0; g=g0; cap=F[0]*scale if scale<1 and self.o.get("even",0) else F[0]; last=g0
            cum=0
            for it in at:
                c=cost(it)
                while g<g1-1 and cum+c/2>cap:
                    g+=1; cap+=F[g-g0]*(scale if self.o.get("even",0) else 1)
                put(g,it); cum+=c; last=g
            return last
        endgap=lambda st: gap0[st]+len(mfs[st])
        lastg=0
        for st in steps:
            if fill[st]:
                g0=max(gap0[st],lastg); lastg=spread(fill[st],g0,max(endgap(st),g0+1))
        lastg=0
        for (items,a,b) in self.tsegs:
            g0=max(gap0[a],lastg); lastg=spread(items,g0,max(endgap(b),g0+1))
        lastg=0
        for (items,a,b) in self.segs:
            g0=max(gap0[a],lastg); g1=max(endgap(b),g0+1)
            lastg=spread(items,g0,g1)
        for st in steps:
            k,ch,s=st
            p.add(head[st])
            r=reads[st]
            for m,ins in enumerate(mfs[st]):
                if k=="S":
                    if m==0: p.wait(lgkm=r[0:2]+[xr[ch][2*s]])
                    if m==2: p.wait(lgkm=r[2:4]+[xr[ch][2*s+1]])
                else:
                    if m==0: p.wait(lgkm=r[0:6]+[xr[ch][s]])
                    if m==3: p.wait(lgkm=r[6:14])
                p.add(ins)
                p.add(slots[gap0[st]+m])

    def cost2(self,it):
        if isinstance(it,Wait): return 4
        if it.kind=="label": return 0
        if it.op in TRANS: return 8
        if it.kind=="vmem": return self.o.get("vmcost",16)
        return 4

    LOG2E=1.4426950408889634
    def fconst(self, sreg, val):
        import struct
        return f"s_mov_b32 s{sreg}, 0x{struct.unpack('<I',struct.pack('<f',val))[0]:08x}"

    def small_loads(self):
        p=self.p; l=f"v{V_L}"
        srd(p,R_T,P_GW,1024)
        p.I(f"v_lshlrev_b32 v{V_AO}, 4, {l}")
        p.I(f"s_lshl_b32 s{S_T0}, s{S_C}, 7\ns_lshl_b32 s{S_T1}, s{S_J}, 3\ns_add_u32 s{S_T0}, s{S_T0}, s{S_T1}\ns_lshl_b32 s{S_T1}, s{S_W}, 1\ns_add_u32 s{S_GT}, s{S_T0}, s{S_T1}")
        p.I(f"s_lshl_b32 s{S_T0}, s{S_GT}, 10")
        X0,X1,GW=232,236,240
        self.gl=[p.I(f"buffer_load_dwordx4 {vr(X0,4)}, v{V_AO}, {sr(R_X)}, s{S_T0} offen"),
                 p.I(f"buffer_load_dwordx4 {vr(X1,4)}, v{V_AO}, {sr(R_X)}, s{S_T0} offen offset:1024"),
                 p.I(f"buffer_load_dwordx4 {vr(GW,4)}, v{V_AO}, {sr(R_T)}, 0 offen")]
        p.I(f"v_and_b32 v{V_T}, 31, {l}\ns_lshl_b32 s{S_T1}, s{S_J}, 6\nv_lshlrev_b32 v{V_T}, 1, v{V_T}\nv_add_u32 v{V_T}, s{S_T1}, v{V_T}")
        self.kl=[]
        for i,ptr in enumerate((P_LRE,P_LIM,P_LDT)):
            srd(p,R_T2,ptr,1024)
            self.kl.append(p.I(f"buffer_load_ushort v{244+i}, v{V_T}, {sr(R_T2)}, 0 offen"))

    def gate_items(self):
        l=f"v{V_L}"; L=[]; A=lambda x: L.append(mk(x))
        X0,X1,GW=232,236,240
        A0,A1=248,249; u=250
        L.append(Wait(vm=self.gl))
        for i in range(4):
            A(f"v_lshlrev_b32 v{u+2}, 16, v{GW+i}"); A(f"v_and_b32 v{u+3}, 0xffff0000, v{GW+i}")
            for X,Ac in ((X0,A0),(X1,A1)):
                A(f"v_lshlrev_b32 v{u}, 16, v{X+i}"); A(f"v_and_b32 v{u+1}, 0xffff0000, v{X+i}"); A(f"v_mul_f32 v{u}, v{u}, v{u+2}"); A(f"v_mul_f32 v{u+1}, v{u+1}, v{u+3}")
                A(f"v_cvt_pk_bf16_f32 v{X+i}, v{u}, v{u+1}"); A(f"v_lshlrev_b32 v{u}, 16, v{X+i}"); A(f"v_and_b32 v{u+1}, 0xffff0000, v{X+i}")
                if i==0: A(f"v_add_f32 v{Ac}, v{u}, v{u+1}")
                else: A(f"v_add_f32 v{Ac}, v{Ac}, v{u}"); A(f"v_add_f32 v{Ac}, v{Ac}, v{u+1}")
        for sh in (8,4,2,1):
            for Ac in (A0,A1): A(f"v_add_f32_dpp v{Ac}, v{Ac}, v{Ac} row_ror:{sh} row_mask:0xf bank_mask:0xf")
        for Ac,sb in ((A0,0),(A1,4)):
            for q in range(4): A(f"v_readlane_b32 s{SGT[sb+q]}, v{Ac}, {16*q}")
        for Ac,sb in ((A0,0),(A1,4)):
            A(f"v_mov_b32 v{Ac}, s{SGT[sb]}"); A(f"v_add_f32 v{Ac}, s{SGT[sb+1]}, v{Ac}"); A(f"v_add_f32 v{Ac}, s{SGT[sb+2]}, v{Ac}"); A(f"v_add_f32 v{Ac}, s{SGT[sb+3]}, v{Ac}")
        A(f"v_cmp_eq_u32 vcc, 1, {l}"); A(f"v_cndmask_b32 v{A0}, v{A0}, v{A1}, vcc")
        A(f"v_cvt_pk_bf16_f32 v{A0}, v{A0}, v{A0}"); A(f"v_lshlrev_b32 v{A0}, 16, v{A0}")
        A(self.fconst(SGT[0],-self.LOG2E))
        A(f"v_mul_f32 v{A0}, s{SGT[0]}, v{A0}"); A(f"v_exp_f32 v{A0}, v{A0}"); A(f"v_add_f32 v{A0}, 1.0, v{A0}"); A(f"v_rcp_f32 v{A0}, v{A0}")
        A(f"v_cvt_pk_bf16_f32 v{A0}, v{A0}, v{A0}"); A(f"v_lshlrev_b32 v{A0}, 16, v{A0}")
        A(f"v_lshlrev_b32 v{u}, 3, {l}"); A(f"s_lshl_b32 s{SGT[0]}, s{S_C}, 7"); A(f"s_lshr_b32 s{SGT[1]}, s{S_J}, 1"); A(f"s_lshl_b32 s{SGT[1]}, s{SGT[1]}, 4"); A(f"s_add_u32 s{SGT[0]}, s{SGT[0]}, s{SGT[1]}")
        A(f"s_lshl_b32 s{SGT[1]}, s{S_W}, 2"); A(f"s_add_u32 s{SGT[0]}, s{SGT[0]}, s{SGT[1]}"); A(f"s_and_b32 s{SGT[1]}, s{S_J}, 1"); A(f"s_add_u32 s{SGT[0]}, s{SGT[0]}, s{SGT[1]}")
        A(f"s_lshl_b32 s{SGT[0]}, s{SGT[0]}, 2"); A(f"s_add_u32 s{SGT[0]}, s{SGT[0]}, {WS_G}"); A(f"v_add_u32 v{u}, s{SGT[0]}, v{u}")
        A(f"v_mov_b32 v{u+1}, {OOB}"); A(f"v_cmp_gt_u32 vcc, 2, {l}"); A(f"v_cndmask_b32 v{u}, v{u+1}, v{u}, vcc")
        A(f"buffer_store_dword v{A0}, v{u}, {sr(R_WS)}, 0 offen sc1"); self.g_store=L[-1]
        A(f"s_lshl_b32 s{SGT[0]}, s{S_C}, 7"); A(f"s_add_u32 s{SGT[0]}, s{SGT[0]}, {WS_CNT}"); A(f"s_or_b32 s{SGT[1]}, s{S_J}, s{S_W}"); A(f"s_cmp_eq_u32 s{SGT[1]}, 0"); A(f"s_cselect_b32 s{SGT[0]}, s{SGT[0]}, {OOB}")
        A(f"v_mov_b32 v{u}, {OOB}"); A(f"v_mov_b32 v{u+1}, s{SGT[0]}"); A(f"v_cmp_eq_u32 vcc, 0, {l}"); A(f"v_cndmask_b32 v{u}, v{u}, v{u+1}, vcc"); A(f"v_mov_b32 v{u+2}, 0"); A(f"v_mov_b32 v{u+3}, 0")
        A(f"buffer_store_dwordx2 {vr(u+2,2)}, v{u}, {sr(R_WS)}, 0 offen sc1")
        self.c_store=L[-1]
        A(f"s_lshl_b32 s{SGT[0]}, s{S_C}, 12"); A(f"s_lshl_b32 s{SGT[1]}, s{S_J}, 8"); A(f"s_add_u32 s{SGT[0]}, s{SGT[0]}, s{SGT[1]}"); A(f"s_add_u32 s{SGT[0]}, s{SGT[0]}, {WS_E}")
        A(f"s_cmp_eq_u32 s{S_W}, 0"); A(f"s_cselect_b32 s{SGT[0]}, s{SGT[0]}, {OOB}")
        A(f"v_lshlrev_b32 v{u}, 3, {l}"); A(f"v_add_u32 v{u}, s{SGT[0]}, v{u}"); A(f"v_mov_b32 v{u+1}, {OOB}"); A(f"v_cmp_gt_u32 vcc, 32, {l}"); A(f"v_cndmask_b32 v{u}, v{u+1}, v{u}, vcc")
        A(f"v_mov_b32 v{u+2}, -1"); A(f"v_mov_b32 v{u+3}, -1")
        A(f"buffer_store_dwordx2 {vr(u+2,2)}, v{u}, {sr(R_WS)}, 0 offen sc1"); self.e_init=L[-1]
        return L

    def const_items(self):
        l=f"v{V_L}"; L=[]; A=lambda x: L.append(mk(x))
        LR,LI,DT=244,245,246
        AE,AN,SG,M,AG=232,233,234,235,236
        R=238
        C,S=238,239
        L.append(Wait(vm=self.kl))
        A(f"v_lshlrev_b32 v{LR}, 16, v{LR}"); A(f"v_lshlrev_b32 v{LI}, 16, v{LI}"); A(f"v_lshlrev_b32 v{DT}, 16, v{DT}")
        A(self.fconst(SGT[0],self.LOG2E)); A(self.fconst(SGT[1],0.15915494309189535)); A(self.fconst(SGT[2],16.0)); A(self.fconst(SGT[3],128.0))
        A(f"v_mul_f32 v{DT}, s{SGT[0]}, v{DT}"); A(f"v_exp_f32 v{DT}, v{DT}"); A(f"v_lshrrev_b32 v{SG}, 5, {l}"); A(f"v_cvt_pk_bf16_f32 v{DT}, v{DT}, v{DT}"); A(f"v_lshlrev_b32 v{DT}, 16, v{DT}")
        A(f"v_mul_f32 v{AE}, v{DT}, v{LR}"); A(f"v_mul_f32 v{AN}, v{DT}, v{LI}"); A(f"v_mul_f32 v{AE}, s{SGT[0]}, v{AE}"); A(f"v_mul_f32 v{AN}, s{SGT[1]}, v{AN}")
        A(f"s_lshl_b32 s{SGT[4]}, s{S_W}, 1"); A(f"v_add_u32 v{SG}, s{SGT[4]}, v{SG}"); A(f"v_lshlrev_b32 v{SG}, 4, v{SG}"); A(f"v_cvt_f32_u32 v{SG}, v{SG}")
        def cexp(k, mul, keep=None):
            if mul is None: A(f"v_mov_b32 v{M}, v{AE}"); A(f"v_mov_b32 v{AG}, v{AN}")
            else: A(f"v_mul_f32 v{M}, {mul}, v{AE}"); A(f"v_mul_f32 v{AG}, {mul}, v{AN}")
            A(f"v_exp_f32 v{M}, v{M}"); A(f"v_fract_f32 v{AG}, v{AG}"); A(f"v_cos_f32 v{C}, v{AG}"); A(f"v_sin_f32 v{S}, v{AG}"); A("s_nop 0")
            A(f"v_mul_f32 v{C}, v{M}, v{C}"); A(f"v_mul_f32 v{S}, v{M}, v{S}")
            A(f"v_accvgpr_write_b32 a{A_K+k}, v{C}"); A(f"v_accvgpr_write_b32 a{A_K+k+1}, v{S}")
        A(self.fconst(SGT[5],8.0))
        cexp(2,f"s{SGT[2]}"); cexp(4,f"s{SGT[3]}"); cexp(6,f"v{SG}"); cexp(12,f"s{SGT[5]}"); cexp(0,None)
        NR,DEN,u2=235,236,240
        A(f"v_add_f32 v{NR}, -1.0, v{C}"); A(f"v_mul_f32 v{DEN}, v{LR}, v{LR}"); A(f"v_fmac_f32 v{DEN}, v{LI}, v{LI}"); A(f"v_rcp_f32 v{DEN}, v{DEN}")
        A(f"v_mul_f32 v{u2}, v{NR}, v{LR}"); A(f"v_fmac_f32 v{u2}, v{S}, v{LI}"); A(f"v_mul_f32 v{u2+1}, v{S}, v{LR}"); A(f"v_fma_f32 v{u2+1}, -v{NR}, v{LI}, v{u2+1}")
        A(f"v_add_f32 v{DEN}, v{DEN}, v{DEN}"); A(f"v_mul_f32 v{u2}, v{u2}, v{DEN}"); A(f"v_mul_f32 v{u2+1}, v{u2+1}, v{DEN}")
        A(f"v_accvgpr_write_b32 a{A_K+8}, v{u2}"); A(f"v_accvgpr_write_b32 a{A_K+9}, v{u2+1}")
        return L

    def touch(self, items_addr, R, soff, vreg):
        return items_addr+[mk(f"buffer_load_dword a{A_JUNK}, v{vreg}, {sr(R)}, {soff} offen")]
    def touch_w(self):
        l=f"v{V_L}"; a,b=V_T,V_T+1; L=[]; A=lambda x: L.append(mk(x))
        A(f"v_lshrrev_b32 v{a}, 2, {l}"); A(f"v_mul_u32_u24 v{a}, 3584, v{a}"); A(f"v_and_b32 v{b}, 3, {l}"); A(f"v_cmp_eq_u32 vcc, 3, v{b}"); A(f"v_lshlrev_b32 v{b}, 7, v{b}"); A(f"v_add_u32 v{a}, v{a}, v{b}")
        A(f"v_mov_b32 v{b}, {OOB}"); A(f"v_cndmask_b32 v{a}, v{a}, v{b}, vcc")
        A(f"s_lshl_b32 s{S_T0}, s{S_C}, 1"); A(f"s_and_b32 s{S_T1}, s{S_W}, 1"); A(f"s_add_u32 s{S_T0}, s{S_T0}, s{S_T1}"); A(f"s_mul_i32 s{S_T0}, s{S_T0}, {16*3584}")
        A(f"s_mul_i32 s{S_T1}, s{S_J}, 224"); A(f"s_and_b32 s{S_T1}, s{S_T1}, 0xffffff80"); A(f"s_add_u32 s{S_T0}, s{S_T0}, s{S_T1}")
        A(f"buffer_load_dword a{A_JUNK}, v{a}, {sr(R_W)}, s{S_T0} offen")
        if not self.o.get("touch_b",1): return L
        A(f"v_and_b32 v{a}, 7, {l}"); A(f"v_lshlrev_b32 v{a}, 7, v{a}")
        A(f"s_lshl_b32 s{S_T0}, s{S_J}, 4"); A(f"s_add_u32 s{S_T0}, s{S_T0}, s{S_C}"); A(f"s_lshl_b32 s{S_T0}, s{S_T0}, 1"); A(f"s_and_b32 s{S_T1}, s{S_W}, 1"); A(f"s_add_u32 s{S_T0}, s{S_T0}, s{S_T1}"); A(f"s_lshl_b32 s{S_T0}, s{S_T0}, 10")
        A(f"buffer_load_dword a{A_JUNK}, v{a}, {sr(R_B)}, s{S_T0} offen")
        return L
    def touch_w_rows(self, r0, nrows_per_wave, a=V_T, b=V_T+1, s0=S_T0, s1=S_T1):
        l=f"v{V_L}"; L=[]; A=lambda x: L.append(mk(x))
        A(f"v_lshrrev_b32 v{a}, 2, {l}"); A(f"v_and_b32 v{b}, 3, {l}"); A(f"v_cmp_eq_u32 vcc, 3, v{b}"); A(f"v_lshlrev_b32 v{b}, 7, v{b}")
        A(f"v_cmp_le_u32 s[{S_M0}:{S_M0+1}], {nrows_per_wave}, v{a}"); A(f"v_mul_u32_u24 v{a}, 3584, v{a}"); A(f"v_add_u32 v{a}, v{a}, v{b}")
        A(f"s_or_b64 vcc, vcc, s[{S_M0}:{S_M0+1}]"); A(f"v_mov_b32 v{b}, {OOB}"); A(f"v_cndmask_b32 v{a}, v{a}, v{b}, vcc")
        A(f"s_lshl_b32 s{s0}, s{S_C}, 1"); A(f"s_and_b32 s{s1}, s{S_W}, 1"); A(f"s_add_u32 s{s0}, s{s0}, s{s1}"); A(f"s_mul_i32 s{s0}, s{s0}, {nrows_per_wave*3584}")
        A(f"s_mul_i32 s{s1}, s{S_J}, 224"); A(f"s_and_b32 s{s1}, s{s1}, 0xffffff80"); A(f"s_add_u32 s{s0}, s{s0}, s{s1}"); A(f"s_add_u32 s{s0}, s{s0}, {r0*3584}")
        A(f"buffer_load_dword a{A_JUNK}, v{a}, {sr(R_W)}, s{s0} offen")
        return L
    def touch_b(self):
        l=f"v{V_L}"; a=V_T; L=[]; A=lambda x: L.append(mk(x))
        A(f"v_and_b32 v{a}, 7, {l}"); A(f"v_lshlrev_b32 v{a}, 7, v{a}")
        A(f"s_lshl_b32 s{S_T0}, s{S_J}, 4"); A(f"s_add_u32 s{S_T0}, s{S_T0}, s{S_C}"); A(f"s_lshl_b32 s{S_T0}, s{S_T0}, 1"); A(f"s_and_b32 s{S_T1}, s{S_W}, 1"); A(f"s_add_u32 s{S_T0}, s{S_T0}, s{S_T1}"); A(f"s_lshl_b32 s{S_T0}, s{S_T0}, 10")
        A(f"buffer_load_dword a{A_JUNK}, v{a}, {sr(R_B)}, s{S_T0} offen")
        return L
    def touch_mall(self, what):
        l=f"v{V_L}"; a,b=V_T,V_T+1; L=[]; A=lambda x: L.append(mk(x))
        A(f"s_lshl_b32 s{S_T2}, s2, 2"); A(f"s_add_u32 s{S_T2}, s{S_T2}, s{S_W}")
        def lanes(n):
            A(f"v_lshlrev_b32 v{a}, 7, {l}"); A(f"v_mov_b32 v{b}, {OOB}"); A(f"v_cmp_gt_u32 vcc, {n}, {l}"); A(f"v_cndmask_b32 v{a}, v{b}, v{a}, vcc")
        if "x" in what:
            lanes(16); A(f"s_lshl_b32 s{S_T0}, s{S_T2}, 11")
            A(f"buffer_load_dword a{A_JUNK}, v{a}, {sr(R_X)}, s{S_T0} offen")
        if "d" in what:
            lanes(14); A(f"s_mul_i32 s{S_T0}, s{S_T2}, {14*128}")
            for k,v in enumerate((f"s{P_WD}",f"s{P_WD+1}",1792*1024,"0x20000")): A(f"s_mov_b32 s{R_T+k}, {v}")
            A(f"buffer_load_dword a{A_JUNK}, v{a}, {sr(R_T)}, s{S_T0} offen")
            lanes(8); A(f"s_cmp_lt_u32 s{S_T2}, 512")
            A(f"s_cselect_b32 s{R_T2}, s{P_CRE}, s{P_CIM}"); A(f"s_cselect_b32 s{R_T2+1}, s{P_CRE+1}, s{P_CIM+1}"); A(f"s_mov_b32 s{R_T2+2}, {512*1024}"); A(f"s_mov_b32 s{R_T2+3}, 0x20000")
            A(f"s_and_b32 s{S_T0}, s{S_T2}, 511"); A(f"s_lshl_b32 s{S_T0}, s{S_T0}, 10")
            A(f"buffer_load_dword a{A_JUNK}, v{a}, {sr(R_T2)}, s{S_T0} offen")
        return L
    def touch_x(self):
        l=f"v{V_L}"; a,b=V_T,V_T+1; L=[]; A=lambda x: L.append(mk(x))
        A(f"v_and_b32 v{a}, 31, {l}"); A(f"v_lshlrev_b32 v{a}, 10, v{a}"); A(f"v_lshrrev_b32 v{b}, 5, {l}"); A(f"v_lshlrev_b32 v{b}, 7, v{b}"); A(f"v_add_u32 v{a}, v{a}, v{b}")
        A(f"s_lshr_b32 s{S_T0}, s{S_J}, 3"); A(f"s_mul_i32 s{S_T0}, s{S_T0}, 384"); A(f"s_add_u32 s{S_T0}, s{S_T0}, 256"); A(f"s_add_u32 s{S_T0}, s{S_T0}, s{S_XROW}")
        A(f"buffer_load_dword a{A_JUNK}, v{a}, {sr(R_X)}, s{S_T0} offen")
        A(f"v_and_b32 v{a}, 31, {l}"); A(f"v_lshlrev_b32 v{a}, 10, v{a}"); A(f"v_mov_b32 v{b}, {OOB}"); A(f"v_cmp_gt_u32 vcc, 32, {l}"); A(f"v_cndmask_b32 v{a}, v{b}, v{a}, vcc")
        A(f"buffer_load_dword a{A_JUNK}, v{a}, {sr(R_X)}, s{S_T0} offen offset:256")
        return L
    def touch_setup_w(self):
        l=f"v{V_L}"; L=[]; A=lambda x: L.append(mk(x))
        A(f"v_lshlrev_b32 v{V_TCH}, 7, {l}"); A(f"v_mov_b32 v{V_T}, {OOB}"); A(f"v_cmp_gt_u32 vcc, 16, {l}"); A(f"v_cndmask_b32 v{V_TCH}, v{V_T}, v{V_TCH}, vcc")
        A(f"s_lshr_b32 s{S_TW}, s2, 3"); A(f"s_lshl_b32 s{S_TW}, s{S_TW}, 2"); A(f"s_add_u32 s{S_TW}, s{S_TW}, s{S_W}"); A(f"s_mul_i32 s{S_TW}, s{S_TW}, {112*128}")
        for k,v in enumerate((f"s{P_WD}",f"s{P_WD+1}",1792*1024,"0x20000")): A(f"s_mov_b32 s{R_T+k}, {v}")
        return L
    def touch_setup_c(self):
        L=[]; A=lambda x: L.append(mk(x))
        A(f"s_lshr_b32 s{S_TW}, s2, 3"); A(f"s_lshl_b32 s{S_TW}, s{S_TW}, 2"); A(f"s_add_u32 s{S_TW}, s{S_TW}, s{S_W}")
        A(f"s_cmp_lt_u32 s{S_TW}, 64")
        A(f"s_cselect_b32 s{R_T2}, s{P_CRE}, s{P_CIM}"); A(f"s_cselect_b32 s{R_T2+1}, s{P_CRE+1}, s{P_CIM+1}"); A(f"s_mov_b32 s{R_T2+2}, {512*1024}"); A(f"s_mov_b32 s{R_T2+3}, 0x20000")
        A(f"s_and_b32 s{S_TW}, s{S_TW}, 63"); A(f"s_lshl_b32 s{S_TW}, s{S_TW}, 13")
        return L
    def touch_one(self, R):
        return [mk(f"buffer_load_dword a{A_JUNK}, v{V_TCH}, {sr(R)}, s{S_TW} offen"), mk(f"s_add_u32 s{S_TW}, s{S_TW}, 2048")]
    def touch_a(self):
        l=f"v{V_L}"; a,b=V_T,V_T+1; L=[]; A=lambda x: L.append(mk(x))
        A(f"v_lshlrev_b32 v{a}, 7, {l}"); A(f"v_mov_b32 v{b}, {OOB}"); A(f"v_cmp_gt_u32 vcc, 44, {l}"); A(f"v_cndmask_b32 v{a}, v{b}, v{a}, vcc")
        A(f"s_mul_i32 s{S_T0}, s{S_CB}, {44*128}"); A(f"s_add_u32 s{S_T1}, s{S_T0}, s{S_A0+1}"); A(f"s_add_u32 s{S_T0}, s{S_T0}, s{S_A0}")
        A(f"buffer_load_dword v{V_JUNK}, v{a}, {sr(R_WS)}, s{S_T0} offen sc1")
        A(f"buffer_load_dword v{V_JUNK}, v{a}, {sr(R_WS)}, s{S_T1} offen sc1")
        return L

    def code_prefetch(self):
        p=self.p
        p.I(f"s_getpc_b64 s[{R_T2}:{R_T2+1}]\nL_pc:")
        p.I(f"s_mov_b32 s{R_T2+2}, L_codeend-L_pc\ns_mov_b32 s{R_T2+3}, 0x20000")
        p.I(f"s_bfe_u32 s{S_T0}, s2, 0x30003\ns_lshl_b32 s{S_T0}, s{S_T0}, 12\nv_lshlrev_b32 v{V_T}, 4, v0")
        p.I(f"buffer_load_dwordx4 a[184:187], v{V_T}, {sr(R_T2)}, s{S_T0} offen")

    def flag_op(self, op, idx_sgpr_expr_items, valsrc, R=R_DBG):
        L=[mk(x) for x in idx_sgpr_expr_items]
        L+=[mk(f"s_cmp_eq_u32 s{S_W}, 0"), mk(f"s_cselect_b32 s{S_T0}, s{S_T0}, {OOB}"),
            mk(f"v_mov_b32 v{V_U+6}, {OOB}"), mk(f"v_mov_b32 v{V_U+7}, s{S_T0}"), mk(f"v_cmp_eq_u32 vcc, 0, v{V_L}"),
            mk(f"v_cndmask_b32 v{V_U+6}, v{V_U+6}, v{V_U+7}, vcc"), mk(f"v_mov_b32 v{V_U+7}, {valsrc}"),
            mk(f"buffer_atomic_{op} v{V_U+7}, v{V_U+6}, {sr(R)}, 0 offen sc1")]
        return L

    @staticmethod
    def cfma(dst, c, x, add):
        return [mk(f"v_pk_fma_f32 {vr(dst,2)}, {vr(c,2)}, {vr(x,2)}, {vr(add,2)} op_sel:[0,0,0] op_sel_hi:[0,1,1]"),
                mk(f"v_pk_fma_f32 {vr(dst,2)}, {vr(c,2)}, {vr(x,2)}, {vr(dst,2)} op_sel:[1,1,0] op_sel_hi:[1,0,1] neg_lo:[1,0,0]")]
    @staticmethod
    def scan_step(nre, nim, lam, hre, him, ure, uim):
        return [mk(f"v_pk_fma_f32 {vr(nre,2)}, {vr(lam,2)}, {vr(hre,2)}, {vr(ure,2)} op_sel:[0,0,0] op_sel_hi:[0,1,1]"),
                mk(f"v_pk_fma_f32 {vr(nim,2)}, {vr(lam,2)}, {vr(him,2)}, {vr(uim,2)} op_sel:[0,0,0] op_sel_hi:[0,1,1]"),
                mk(f"v_pk_fma_f32 {vr(nre,2)}, {vr(lam,2)}, {vr(him,2)}, {vr(nre,2)} op_sel:[1,0,0] op_sel_hi:[1,1,1] neg_lo:[1,0,0] neg_hi:[1,0,0]"),
                mk(f"v_pk_fma_f32 {vr(nim,2)}, {vr(lam,2)}, {vr(hre,2)}, {vr(nim,2)} op_sel:[1,0,0] op_sel_hi:[1,1,1]")]

    @staticmethod
    def cfma_s(dst, c, x, add):
        return [mk(f"v_fma_f32 v{dst}, v{c}, v{x}, v{add}"), mk(f"v_fma_f32 v{dst+1}, v{c}, v{x+1}, v{add+1}"),
                mk(f"v_fma_f32 v{dst}, -v{c+1}, v{x+1}, v{dst}"), mk(f"v_fma_f32 v{dst+1}, v{c+1}, v{x}, v{dst+1}")]
    @staticmethod
    def scan_step_s(nre, nim, lam, hre, him, ure, uim):
        L=[]
        for e in range(2): L+=[mk(f"v_fma_f32 v{nre+e}, v{lam}, v{hre+e}, v{ure+e}"), mk(f"v_fma_f32 v{nim+e}, v{lam}, v{him+e}, v{uim+e}")]
        for e in range(2): L+=[mk(f"v_fma_f32 v{nre+e}, -v{lam+1}, v{him+e}, v{nre+e}"), mk(f"v_fma_f32 v{nim+e}, v{lam+1}, v{hre+e}, v{nim+e}")]
        return L
    def pass1(self):
        lam=V_U; l8=26
        L=[mk(f"v_accvgpr_read_b32 v{lam}, a{A_K}"), mk(f"v_accvgpr_read_b32 v{lam+1}, a{A_K+1}"),
           mk(f"v_accvgpr_read_b32 v{l8}, a{A_K+12}"), mk(f"v_accvgpr_read_b32 v{l8+1}, a{A_K+13}")]
        L+=[mk(f"v_lshrrev_b32 v{V_U+2}, 5, v{V_L}"), mk(f"s_lshl_b32 s{S_T0}, s{S_W}, 1"), mk(f"v_add_u32 v{V_U+2}, s{S_T0}, v{V_U+2}"), mk(f"v_lshlrev_b32 v{V_U+2}, 8, v{V_U+2}"),
            mk(f"v_and_b32 v{V_U+3}, 31, v{V_L}"), mk(f"v_lshlrev_b32 v{V_U+3}, 3, v{V_U+3}"), mk(f"v_add_u32 v{V_U+3}, {L_EX}, v{V_U+3}"), mk(f"v_add_u32 v{V_U+2}, v{V_U+2}, v{V_U+3}")]
        e=[(232,234),(236,238)]
        cr,ci=V_SRE,V_SIM
        for i in range(1,8):
            nr,ni=e[i&1]
            L+=self.scan_step_s(nr,ni,lam,cr,ci,V_SRE+2*i,V_SIM+2*i)
            cr,ci=nr,ni
        L+=[mk(f"v_fma_f32 v28, v{l8}, v{cr}, v{cr+1}"), mk(f"v_fma_f32 v29, v{l8}, v{ci}, v{ci+1}"),
            mk(f"v_fma_f32 v28, -v{l8+1}, v{ci}, v28"), mk(f"v_fma_f32 v29, v{l8+1}, v{cr}, v29"),
            mk(f"v_accvgpr_write_b32 a{A_K+14}, v{cr}"), mk(f"v_accvgpr_write_b32 a{A_K+15}, v{ci}")]
        w=mk(f"ds_write_b64 v{V_U+2}, v[28:29]"); L.append(w)
        return L,w

    def exchange(self):
        ER=V_U+3
        l16=V_U
        L=[mk(f"v_accvgpr_read_b32 v{l16}, a{A_K+2}"), mk(f"v_accvgpr_read_b32 v{l16+1}, a{A_K+3}")]
        P,N=26,28; S2=V_U+4
        rd=[mk(f"ds_read_b64 {vr(P,2)}, v{ER}")]+[mk(f"ds_read_b64 {vr(232+2*(k-1),2)}, v{ER} offset:{256*k}") for k in range(1,8)]
        L+=rd
        L+=[mk(f"v_mov_b32 v{S2}, 0"), mk(f"v_mov_b32 v{S2+1}, 0"), mk(f"s_lshl_b32 s{S_GT}, s{S_W}, 1"), mk(f"s_add_u32 s{S_PO}, s{S_GT}, 1"), Wait(lgkm=rd[:2])]
        for k in range(1,8):
            L+=[mk(f"s_cmp_eq_u32 s{S_GT}, {k}"), mk(f"s_cselect_b32 s{S_M0}, -1, 0"), mk(f"s_cmp_eq_u32 s{S_PO}, {k}"), mk(f"s_cselect_b32 s{S_M0+1}, -1, 0"), Wait(lgkm=rd[k]),
                mk(f"v_cndmask_b32 v{S2}, v{S2}, v{P}, s[{S_M0}:{S_M0+1}]"), mk(f"v_cndmask_b32 v{S2+1}, v{S2+1}, v{P+1}, s[{S_M0}:{S_M0+1}]")]
            L+=self.cfma_s(N,l16,P,232+2*(k-1))
            P,N=N,P
        L+=[mk(f"v_accvgpr_write_b32 a{A_KS+10}, v{S2}"), mk(f"v_accvgpr_write_b32 a{A_KS+11}, v{S2+1}"),
            mk(f"v_accvgpr_mov_b32 a{A_KS+2}, a{A_K+14}"), mk(f"v_accvgpr_mov_b32 a{A_KS+3}, a{A_K+15}")]
        Er,Ei=30,31
        L+=[mk(f"s_lshl_b32 s{S_T0}, s{S_C}, 12"), mk(f"s_lshl_b32 s{S_T1}, s{S_J}, 8"), mk(f"s_add_u32 s{S_T0}, s{S_T0}, s{S_T1}"), mk(f"s_add_u32 s{S_T0}, s{S_T0}, {WS_E}"),
            mk(f"s_cmp_eq_u32 s{S_W}, 0"), mk(f"s_cselect_b32 s{S_T0}, s{S_T0}, {OOB}"),
            mk(f"v_lshlrev_b32 v{Er}, 3, v{V_L}"), mk(f"v_add_u32 v{Er}, s{S_T0}, v{Er}"), mk(f"v_mov_b32 v{Ei}, {OOB}"), mk(f"v_cmp_gt_u32 vcc, 32, v{V_L}"),
            mk(f"v_cndmask_b32 v{Er}, v{Ei}, v{Er}, vcc")]
        st=mk(f"buffer_store_dwordx2 {vr(P,2)}, v{Er}, {sr(R_WS)}, 0 offen sc1"); L.append(st)
        return L,st

    def poll_issue(self, vdst, off_items, R=R_DBG, w0only=False, off2=None):
        L=[mk(x) for x in off_items]
        if w0only:
            L+=[mk(f"s_cmp_eq_u32 s{S_W}, 0"), mk(f"s_cselect_b32 s{S_T0}, s{S_T0}, {OOB}")]
            if off2: L+=[mk(f"s_cselect_b32 s{S_T1}, s{S_T1}, {OOB}")]
        L+=[mk(f"v_mov_b32 v{vdst+1}, {OOB}"), mk(f"v_mov_b32 v{V_U+7}, s{S_T0}"), mk(f"v_cmp_eq_u32 vcc, 0, v{V_L}"), mk(f"v_cndmask_b32 v{vdst+1}, v{vdst+1}, v{V_U+7}, vcc")]
        if off2:
            L+=[mk(f"v_mov_b32 v{V_U+7}, s{S_T1}"), mk(f"v_cmp_eq_u32 vcc, 1, v{V_L}"), mk(f"v_cndmask_b32 v{vdst+1}, v{vdst+1}, v{V_U+7}, vcc")]
        t=mk(f"buffer_load_dword v{vdst}, v{vdst+1}, {sr(R)}, 0 offen sc1"); L.append(t)
        return L,t
    def poll_check(self, name, vdst, tok, cond_items, R=R_DBG, w0only=False, two=False, sleep=1):
        sid={"g":20,"e":24,"a":28,"s":24}[name]
        rl=[f"v_readlane_b32 s{S_T0}, v{vdst}, 0"]+([f"v_readlane_b32 s{S_T1}, v{vdst}, 1"] if two else [])
        L=self.stamp(sid)+([mk(f"s_mov_b32 s{S_CNT}, 0")] if self.o.get("stamps") else [])+[Wait(vm=tok)]+self.stamp(sid+1)
        if w0only: L+=[mk(f"s_cmp_lg_u32 s{S_W}, 0"), mk(f"s_cbranch_scc1 L_back_{name}")]
        L+=[mk(x) for x in rl]+[mk(x) for x in cond_items]
        L+=[mk(f"s_cbranch_scc0 L_slow_{name}"), mk(f"L_back_{name}:")]+self.stamp(sid+2)+self.note(sid+3,S_CNT)
        S=[f"L_slow_{name}:", f"s_mov_b32 s{S_CNT}, 0", f"L_loop_{name}:"]+([f"s_sleep {sleep}"] if sleep else [])+[
           f"buffer_load_dword v{vdst}, v{vdst+1}, {sr(R)}, 0 offen sc1", "s_waitcnt vmcnt(0)"]+rl+["s_nop 1",
           f"s_add_u32 s{S_CNT}, s{S_CNT}, 1", f"s_cmp_gt_u32 s{S_CNT}, 100000", f"s_cbranch_scc1 L_back_{name}"]
        S+=cond_items+[f"s_cbranch_scc1 L_back_{name}", f"s_branch L_loop_{name}"]
        self.slow+=S
        return L

    def gpoll_issue(self, vdst):
        L=[mk(f"v_lshlrev_b32 v{vdst+1}, 4, v{V_L}"), mk(f"v_mov_b32 v{V_U+7}, {OOB}"), mk(f"s_cmp_eq_u32 s{S_W}, 0"), mk(f"s_cselect_b32 s{S_T0}, 16, 0"),
           mk(f"v_cmp_gt_u32 vcc, s{S_T0}, v{V_L}"), mk(f"v_cndmask_b32 v{vdst+1}, v{V_U+7}, v{vdst+1}, vcc")]
        t=mk(f"buffer_load_dword v{vdst}, v{vdst+1}, {sr(R_DBG)}, 0 offen sc1"); L.append(t)
        return L,t
    def gpoll_check(self, vdst, tok):
        cond=[f"v_cmp_eq_u32 vcc, 16, v{vdst}", f"s_lshl_b32 s{S_T0}, 2, s{S_C}", f"s_sub_u32 s{S_T0}, s{S_T0}, 1", f"s_lshl_b32 s{S_T1}, 1, s{S_C3}", f"s_or_b32 s{S_T0}, s{S_T0}, s{S_T1}",
              f"s_and_b32 s{S_T1}, vcc_lo, s{S_T0}", f"s_cmp_eq_u32 s{S_T1}, s{S_T0}"]
        L=self.stamp(20)+[Wait(vm=tok)]+self.stamp(21)+[mk(f"s_cmp_lg_u32 s{S_W}, 0"), mk("s_cbranch_scc1 L_back_g")]+[mk(x) for x in cond]
        L+=[mk("s_cbranch_scc0 L_slow_g"), mk("L_back_g:")]+self.stamp(22)
        self.slow+=["L_slow_g:", f"s_mov_b32 s{S_CNT}, 0", "L_loop_g:", "s_sleep 1", f"buffer_load_dword v{vdst}, v{vdst+1}, {sr(R_DBG)}, 0 offen sc1", "s_waitcnt vmcnt(0)",
                    f"s_add_u32 s{S_CNT}, s{S_CNT}, 1", f"s_cmp_gt_u32 s{S_CNT}, 100000", "s_cbranch_scc1 L_back_g", cond[0], "s_nop 4"]+cond[1:]+["s_cbranch_scc1 L_back_g", "s_branch L_loop_g"]
        return L

    def g_loads(self):
        L=[]
        T=V_T
        L+=[mk(f"v_bfe_u32 v{T}, v{V_L}, 2, 1"), mk(f"v_lshlrev_b32 v{T}, 4, v{T}"), mk(f"v_bfe_u32 v{T+1}, v{V_L}, 3, 2"), mk(f"v_lshlrev_b32 v{T+1}, 2, v{T+1}"),
            mk(f"v_add_u32 v{T}, v{T}, v{T+1}"), mk(f"v_and_b32 v{T+1}, 3, v{V_L}"), mk(f"v_add_u32 v{T}, v{T}, v{T+1}"), mk(f"v_lshlrev_b32 v{T}, 2, v{T}"),
            mk(f"s_lshl_b32 s{S_T0}, s{S_C}, 2"), mk(f"s_add_u32 s{S_T0}, s{S_T0}, s{S_W}"), mk(f"s_lshl_b32 s{S_T0}, s{S_T0}, 7"), mk(f"s_add_u32 s{S_T0}, s{S_T0}, {WS_G}")]
        t0=mk(f"buffer_load_dword v14, v{T}, {sr(R_WS)}, s{S_T0} offen sc1"); L.append(t0)
        L+=[mk(f"v_lshrrev_b32 v{T+1}, 5, v{V_L}"), mk(f"v_lshlrev_b32 v{T+1}, 6, v{T+1}")]
        toks=[t0]
        for i,r in enumerate((2,6,10,18)):
            t=mk(f"buffer_load_dwordx4 {vr(r,4)}, v{T+1}, {sr(R_WS)}, s{S_T0} offen offset:{16*i} sc1"); L.append(t); toks.append(t)
        return L,toks
    GREG=[2,3,4,5,6,7,8,9,10,11,12,13,18,19,20,21]

    EREG=[36,38,40,42,44,46,52,54,56,58,60,62,68,70,72]
    def e_loads(self):
        T=V_T
        L=[mk(f"s_add_u32 s{R_T2}, s{P_WS}, {WS_E}"), mk(f"s_addc_u32 s{R_T2+1}, s{P_WS+1}, 0"), mk(f"s_mov_b32 s{R_T2+2}, 65536"), mk(f"s_mov_b32 s{R_T2+3}, 0x20000"),
           mk(f"v_and_b32 v{T+2}, 31, v{V_L}"), mk(f"v_lshlrev_b32 v{T+2}, 3, v{T+2}"), mk(f"s_lshl_b32 s{S_T1}, s{S_J}, 8"), mk(f"s_lshl_b32 s{S_T0}, s{S_C}, 12"),
           mk(f"s_add_u32 s{S_T0}, s{S_T0}, s{S_T1}"), mk(f"s_sub_u32 s{S_T0}, s{S_T0}, 4096"), mk(f"v_add_u32 v{T+2}, s{S_T0}, v{T+2}")]
        toks=[]
        for m in range(15):
            a=T+2+(m&1); b=T+2+((m+1)&1)
            t=mk(f"buffer_load_dwordx2 {ar(2*m,2)}, v{a}, {sr(R_T2)}, 0 offen sc1"); L.append(t); toks.append(t)
            if m<14: L.append(mk(f"v_subrev_u32 v{b}, 4096, v{a}"))
        self.e_reload=[mk(x.text) for x in L]
        return L,toks

    def ffn_epilogue(self, gtok):
        pre=[]; st=[]
        KC=V_WF; IR=V_WF+2; T=V_WF+4
        k0=-2.0*0.7978845608028654*self.LOG2E
        pre+=[Wait(vm=gtok), mk(f"v_sub_f32 v{IR}, 1.0, v14"), mk(self.fconst(S_T0,k0*0.044715)), mk(f"v_cvt_pk_bf16_f32 v{IR}, v{IR}, v{IR}"), mk(f"v_mov_b32 v{KC}, s{S_T0}"),
             mk(f"v_lshlrev_b32 v{IR}, 16, v{IR}"), mk(self.fconst(S_T0,k0)), mk(f"v_rcp_f32 v{IR}, v{IR}"), mk(f"v_mov_b32 v{KC+1}, s{S_T0}"),
             mk(self.fconst(S_T0,1e30)), mk(f"v_min_f32 v{IR}, s{S_T0}, v{IR}")]
        pre+=[mk(f"s_lshl_b32 s{S_AO}, s{S_C}, 2"), mk(f"s_add_u32 s{S_AO}, s{S_AO}, s{S_W}"), mk(f"s_mul_i32 s{S_AO}, s{S_AO}, 176"), mk(f"s_mul_i32 s{S_T0}, s{S_J}, 11"),
            mk(f"s_add_u32 s{S_AO}, s{S_AO}, s{S_T0}"), mk(f"s_lshl_b32 s{S_AO}, s{S_AO}, 10"), mk(f"v_lshlrev_b32 v{V_AO}, 4, v{V_L}")]
        tiles=[]
        for i in range(7):
            L=[]
            a=V_ACC+16*i
            o=T+16*(i&1)
            Z,Pd=o,o+8
            pr=[(a,a+4),(a+2,a+6),(a+8,a+12),(a+10,a+14)]
            for e,(g,u) in enumerate(pr): L.append(mk(f"v_pk_mul_f32 {vr(Z+2*e,2)}, {vr(g,2)}, {vr(g,2)}"))
            for e,(g,u) in enumerate(pr): L.append(mk(f"v_pk_fma_f32 {vr(Z+2*e,2)}, {vr(Z+2*e,2)}, {vr(KC,2)}, {vr(KC,2)} op_sel:[0,0,1] op_sel_hi:[1,0,1]"))
            for e,(g,u) in enumerate(pr): L.append(mk(f"v_pk_mul_f32 {vr(Z+2*e,2)}, {vr(g,2)}, {vr(Z+2*e,2)}"))
            for e,(g,u) in enumerate(pr):
                L.append(mk(f"v_exp_f32 v{Z+2*e}, v{Z+2*e}")); L.append(mk(f"v_exp_f32 v{Z+2*e+1}, v{Z+2*e+1}")); L.append(mk(f"v_pk_mul_f32 {vr(Pd+2*e,2)}, {vr(g,2)}, {vr(u,2)}"))
            for e in range(4): L.append(mk(f"v_pk_fma_f32 {vr(Z+2*e,2)}, {vr(Z+2*e,2)}, {vr(IR,2)}, {vr(IR,2)} op_sel:[0,0,0] op_sel_hi:[1,0,0]"))
            for e in range(8): L.append(mk(f"v_rcp_f32 v{Z+e}, v{Z+e}"))
            for e in range(4): L.append(mk(f"v_pk_mul_f32 {vr(Pd+2*e,2)}, {vr(Pd+2*e,2)}, {vr(Z+2*e,2)}"))
            for e in range(4): L.append(mk(f"v_cvt_pk_bf16_f32 v{a+e}, v{Pd+2*e}, v{Pd+2*e+1}"))
            tiles.append(L)
        S=[]
        for i in range(7):
            t=mk(f"buffer_store_dwordx4 {vr(V_ACC+16*i,4)}, v{V_AO}, {sr(R_WS)}, s{S_AO} offen offset:{1024*(i&3)} sc1"); st.append(t)
            S.append(([mk(f"s_add_u32 s{S_AO}, s{S_AO}, 4096")] if i==4 else [])+[t])
        return pre,tiles,S,st

    def ssm_epilogue(self, etok, gtok, tbase_items):
        L=[]; st=[]
        LAM,Q,S2=176,178,180
        H,N=182,184
        rd=lambda v,a: mk(f"v_accvgpr_read_b32 v{v}, a{a}")
        L+=[rd(Q,A_KS+4), rd(Q+1,A_KS+5), rd(LAM,A_KS), rd(LAM+1,A_KS+1), rd(S2,A_KS+8), rd(S2+1,A_KS+9), Wait(vm=etok)]
        L+=[rd(H,28), rd(H+1,29)]
        cur=H
        EB=[204,206]
        for m in range(13,-1,-1):
            e=EB[m&1]
            L+=[rd(e,2*m), rd(e+1,2*m+1)]
            L+=self.cfma(N,Q,cur,e); cur=N; H,N=N,H
        Hin=cur
        L+=[mk(f"v_cmp_u_f32 vcc, v{Hin}, v{Hin}"), mk("s_nop 3"), mk("s_cmp_eq_u64 vcc, 0"), mk("s_cbranch_scc0 L_slow_e"), mk("L_back_e:")]
        S=["L_slow_e:", f"s_mov_b32 s{S_CNT}, 0", "L_loop_e:"]
        S+=[x.text for x in self.e_reload]
        S+=["s_waitcnt vmcnt(0)", f"v_accvgpr_read_b32 v{Hin}, a28", f"v_accvgpr_read_b32 v{Hin+1}, a29"]
        cur2=Hin; oth=H if Hin==N else N
        seq=[]; a_,b_=(Hin,oth)
        regs=[]; c=Hin
        for m in range(13,-1,-1):
            e=EB[m&1]; d=oth if c==Hin else Hin
            S+=[f"v_accvgpr_read_b32 v{e}, a{2*m}", f"v_accvgpr_read_b32 v{e+1}, a{2*m+1}", "s_nop 0"]+[x.text for x in self.cfma(d,Q,c,e)]
            c=d
        assert c==Hin
        S+=[f"v_cmp_u_f32 vcc, v{Hin}, v{Hin}", f"s_add_u32 s{S_CNT}, s{S_CNT}, 1", "s_nop 3", f"s_cmp_gt_u32 s{S_CNT}, 20000", "s_cbranch_scc1 L_back_e", "s_cmp_eq_u64 vcc, 0", "s_cbranch_scc1 L_back_e", "s_branch L_loop_e"]
        self.slow+=S
        W,X=186,188
        L+=[rd(Q,A_KS+6), rd(Q+1,A_KS+7), rd(W,A_KS+10), rd(W+1,A_KS+11)]
        L+=self.cfma(X,Q,Hin,W)
        L+=[rd(Q,A_KS+12), rd(Q+1,A_KS+13), rd(W,A_KS+2), rd(W+1,A_KS+3)]
        L+=self.cfma(190,Q,X,W)
        HR,HI,NR,NI=192,194,196,198
        L+=[mk(f"v_mov_b32 v{HR}, v{X}"), mk(f"v_mov_b32 v{HR+1}, v190"), mk(f"v_mov_b32 v{HI}, v{X+1}"), mk(f"v_mov_b32 v{HI+1}, v191"), Wait(vm=gtok)]
        PK=214
        OR,OI=200,202
        for i in range(8):
            g=self.GREG[2*i]
            L+=self.scan_step(NR,NI,LAM,HR,HI,V_SRE+2*i,V_SIM+2*i)
            HR,HI,NR,NI=NR,NI,HR,HI
            L+=[mk(f"v_pk_mul_f32 {vr(OR,2)}, {vr(S2,2)}, {vr(HR,2)} op_sel:[0,0] op_sel_hi:[0,1]"), mk(f"v_pk_mul_f32 {vr(OI,2)}, {vr(S2,2)}, {vr(HI,2)} op_sel:[0,0] op_sel_hi:[0,1]"),
                mk(f"v_pk_fma_f32 {vr(OR,2)}, {vr(S2,2)}, {vr(HI,2)}, {vr(OR,2)} op_sel:[1,0,0] op_sel_hi:[1,1,1] neg_lo:[1,0,0] neg_hi:[1,0,0]"),
                mk(f"v_pk_fma_f32 {vr(OI,2)}, {vr(S2,2)}, {vr(HR,2)}, {vr(OI,2)} op_sel:[1,0,0] op_sel_hi:[1,1,1]"),
                mk(f"v_pk_mul_f32 {vr(OR,2)}, {vr(g,2)}, {vr(OR,2)}"), mk(f"v_pk_mul_f32 {vr(OI,2)}, {vr(g,2)}, {vr(OI,2)} neg_lo:[1,0] neg_hi:[1,0]"),
                mk(f"v_cvt_pk_bf16_f32 v{PK+i}, v{OR}, v{OR+1}"), mk(f"v_cvt_pk_bf16_f32 v{PK+8+i}, v{OI}, v{OI+1}")]
        TW,TR0,TR1=204,205,206
        L+=tbase_items
        n_=207
        L+=[mk(f"v_and_b32 v{n_}, 31, v{V_L}"), mk(f"v_lshlrev_b32 v{TW}, 6, v{n_}"), mk(f"v_bfe_u32 v{n_+1}, v{V_L}, 1, 2"),
            mk(f"v_lshrrev_b32 v{n_+2}, 5, v{V_L}"), mk(f"v_lshlrev_b32 v{n_+2}, 1, v{n_+2}"),
            mk(f"v_xor_b32 v{n_+2}, v{n_+2}, v{n_+1}"),
            mk(f"v_lshlrev_b32 v{n_+3}, 4, v{n_+2}"), mk(f"v_xor_b32 v{n_+2}, 1, v{n_+2}"), mk(f"v_lshlrev_b32 v{n_+2}, 4, v{n_+2}"),
            mk(f"v_add_u32 v{TW}, s{S_T0}, v{TW}"), mk(f"v_add_u32 v{n_+2}, v{TW}, v{n_+2}"), mk(f"v_add_u32 v{TW}, v{TW}, v{n_+3}")]
        wr=[]
        for m in range(2):
            wr.append(mk(f"ds_write_b128 v{TW}, {vr(PK+8*m,4)} offset:{2048*m}")); wr.append(mk(f"ds_write_b128 v{n_+2}, {vr(PK+8*m+4,4)} offset:{2048*m}"))
        L+=wr
        a=n_+4
        L+=[mk(f"v_lshrrev_b32 v{a}, 5, v{V_L}"), mk(f"v_lshlrev_b32 v{a}, 3, v{a}"), mk(f"v_bfe_u32 v{a+1}, v{V_L}, 2, 2"), mk(f"v_add_u32 v{a}, v{a}, v{a+1}"), mk(f"v_lshlrev_b32 v{a}, 6, v{a}"),
            mk(f"v_and_b32 v{a+1}, 1, v{V_L}"), mk(f"v_lshlrev_b32 v{a+1}, 1, v{a+1}"), mk(f"v_bfe_u32 v{a+2}, v{V_L}, 4, 1"), mk(f"v_add_u32 v{a+1}, v{a+1}, v{a+2}"),
            mk(f"v_bfe_u32 v{a+2}, v{V_L}, 3, 1"), mk(f"v_xor_b32 v{a+1}, v{a+1}, v{a+2}"),
            mk(f"v_bfe_u32 v{a+2}, v{V_L}, 1, 1"), mk(f"v_lshlrev_b32 v{a+2}, 3, v{a+2}"), mk(f"v_add_u32 v{a}, v{a}, v{a+2}"), mk(f"v_add_u32 v{a}, s{S_T0}, v{a}"),
            mk(f"v_lshlrev_b32 v{a+2}, 4, v{a+1}"), mk(f"v_add_u32 v{TR0}, v{a}, v{a+2}"),
            mk(f"v_xor_b32 v{a+1}, 2, v{a+1}"), mk(f"v_lshlrev_b32 v{a+2}, 4, v{a+1}"), mk(f"v_add_u32 v{TR1}, v{a}, v{a+2}"), mk(f"v_add_u32 v{TR1}, 256, v{TR1}")]
        L+=[Wait(lgkm=wr)]
        OUT=V_SRE
        rd=[]
        for b in range(4):
            m,mu=b>>1,b&1
            rd.append(mk(f"ds_read_b64_tr_b16 {vr(OUT+4*b,2)}, v{TR0} offset:{2048*m+1024*mu}")); rd.append(mk(f"ds_read_b64_tr_b16 {vr(OUT+4*b+2,2)}, v{TR1} offset:{2048*m+1024*mu}"))
        L+=rd
        L+=[mk(f"s_add_u32 s{S_AO}, s{S_AO}, 3072")]
        for b in range(4):
            t=mk(f"buffer_store_dwordx4 {vr(OUT+4*b,4)}, v{V_AO}, {sr(R_WS)}, s{S_AO} offen offset:{1024*b} sc1")
            L+=[Wait(lgkm=rd[2*b:2*b+2]), t]; st.append(t)
        self.t_reads=rd
        return L,st

    def copy_consts(self):
        return [mk(f"v_accvgpr_mov_b32 a{A_KS+i}, a{A_K+i}") for i in (0,1,4,5,6,7,8,9,12,13)]

    def blk_areg(self,b):
        if not self.o.get("tail"): return 64+8*b
        return 192+8*b if b<8 else (64+8*(b-8) if b<16 else 128+8*(b-16))
    def p3_patterns1(self):
        l=f"v{V_L}"; a,b,c=V_T,30,31
        L=[]; A=lambda x: L.append(mk(x))
        A(f"s_mul_i32 s{S_RG}, s{S_W}, {REGION}")
        base=S_RG
        if self.o.get("tail"):
            A(f"s_lshl_b32 s{S_TB}, s{S_W}, 14"); A(f"s_add_u32 s{S_TB}, s{S_TB}, {L_B}"); base=S_TB
        A(f"v_lshrrev_b32 v{a}, 3, {l}"); A(f"v_lshlrev_b32 v{a}, 10, v{a}"); A(f"v_bfe_u32 v{b}, {l}, 4, 1"); A(f"v_lshlrev_b32 v{b}, 2, v{b}"); A(f"v_and_b32 v{c}, 7, {l}")
        A(f"v_xor_b32 v{b}, v{b}, v{c}"); A(f"v_lshlrev_b32 v{b}, 4, v{b}"); A(f"v_add_u32 v{V_FD}, v{a}, v{b}"); A(f"v_add_u32 v{V_FD+1}, 7168, v{V_FD}")
        A(f"v_lshrrev_b32 v{a}, 5, {l}"); A(f"v_lshlrev_b32 v{a}, 2, v{a}"); A(f"v_bfe_u32 v{b}, {l}, 2, 2"); A(f"v_add_u32 v{a}, v{a}, v{b}"); A(f"v_lshlrev_b32 v{a}, 7, v{a}")
        A(f"v_bfe_u32 v{b}, {l}, 4, 1"); A(f"v_lshlrev_b32 v{b}, 5, v{b}"); A(f"v_add_u32 v{a}, v{a}, v{b}"); A(f"v_and_b32 v{b}, 3, {l}"); A(f"v_lshlrev_b32 v{b}, 3, v{b}"); A(f"v_add_u32 v{a}, v{a}, v{b}")
        A(f"v_add_u32 v{a}, s{base}, v{a}"); A(f"v_bfe_u32 v{b}, {l}, 3, 1"); A(f"v_lshlrev_b32 v{b}, 6, v{b}"); A(f"s_and_b32 s{S_T3}, s{S_W}, 1"); A(f"s_lshl_b32 s{S_T3}, s{S_T3}, 6"); A(f"v_xor_b32 v{b}, s{S_T3}, v{b}"); A(f"v_add_u32 v{V_FR}, v{a}, v{b}"); A(f"v_xor_b32 v{b}, 64, v{b}"); A(f"v_add_u32 v{V_FR+1}, v{a}, v{b}")
        A(f"s_mul_i32 s{S_FO}, s{S_W}, {448*1024}"); A(f"s_lshl_b32 s{S_T3}, s{S_CB}, 7"); A(f"s_add_u32 s{S_FO}, s{S_FO}, s{S_T3}")
        for k,v in enumerate((f"s{P_WD}",f"s{P_WD+1}",1792*1024,"0x20000")): A(f"s_mov_b32 s{R_T+k}, {v}")
        return L
    def p3_patterns2(self):
        l=f"v{V_L}"; a,b,c=V_T,30,31
        L=[]; A=lambda x: L.append(mk(x))
        A(f"v_lshrrev_b32 v{a}, 3, {l}"); A(f"v_lshlrev_b32 v{a}, 10, v{a}"); A(f"v_and_b32 v{c}, 7, {l}")
        A(f"v_lshrrev_b32 v{b}, 4, {l}"); A(f"v_xor_b32 v{b}, v{b}, v{c}"); A(f"v_xor_b32 v{c}, 4, v{b}"); A(f"v_lshlrev_b32 v{b}, 4, v{b}"); A(f"v_lshlrev_b32 v{c}, 4, v{c}")
        for q in range(4):
            A(f"v_add_u32 v{V_CD+q}, v{a}, v{b if q%2==0 else c}")
            if q: A(f"v_add_u32 v{V_CD+q}, {7168*q}, v{V_CD+q}")
        A(f"v_and_b32 v{a}, 31, {l}"); A(f"v_lshlrev_b32 v{a}, 7, v{a}"); A(f"v_add_u32 v{a}, s{S_RG}, v{a}"); A(f"v_bfe_u32 v{b}, {l}, 1, 3"); A(f"v_lshrrev_b32 v{c}, 5, {l}"); A(f"v_xor_b32 v{b}, v{b}, v{c}")
        for s in range(4):
            A(f"v_xor_b32 v{c}, {2*s}, v{b}"); A(f"v_lshlrev_b32 v{c}, 4, v{c}"); A(f"v_add_u32 v{V_CR[s]}, v{a}, v{c}")
        A(f"s_lshl_b32 s{S_CO}, s{S_CB}, 16"); A(f"s_lshl_b32 s{S_T0}, s{S_W}, 8"); A(f"s_add_u32 s{S_CO}, s{S_CO}, s{S_T0}")
        A(f"s_and_b32 s{S_T0}, s{S_W}, 1"); A(f"s_lshl_b32 s{S_T0}, s{S_T0}, 15"); A(f"s_xor_b32 s{S_CO1}, s{S_T0}, 0x8000"); A(f"s_add_u32 s{S_CO1}, s{S_CO1}, s{S_CO}"); A(f"s_add_u32 s{S_CO}, s{S_CO}, s{S_T0}")
        for reg,ptr,size in ((R_B,P_CRE,512*1024),(R_W,P_CIM,512*1024)):
            A(f"s_mov_b32 s{reg}, s{ptr}"); A(f"s_mov_b32 s{reg+1}, s{ptr+1}"); A(f"s_mov_b32 s{reg+2}, {size}"); A(f"s_mov_b32 s{reg+3}, 0x20000")
        return L
    def p3_rebase_after(self, rd2):
        return [Wait(lgkm=sum(rd2.values(),[]))]+self.p3_rebase()
    def p3_rebase(self):
        return [mk(f"s_sub_u32 s{S_T0}, s{S_RG}, s{S_TB}"), mk(f"v_add_u32 v{V_FR}, s{S_T0}, v{V_FR}"), mk(f"v_add_u32 v{V_FR+1}, s{S_T0}, v{V_FR+1}")]
    def p3_dma_f(self, b, slot, tail=False):
        L=[mk(f"s_add_u32 m0, s{S_TB if tail else S_RG}, {slot*2048}"), mk(f"s_add_u32 s{S_PO}, s{S_FO}, {b*16*1024}")]
        t=[mk(f"buffer_load_dwordx4 v{V_FD+i}, {sr(R_T)}, s{S_PO} offen offset:{1024*i} lds") for i in range(2)]
        if b in self.o.get("skip_f",()): t=[mk("s_nop 0"),mk("s_nop 0")]
        return L+t,t
    def p3_dma_c(self, k):
        mat,ph,ct=k>>2,(k>>1)&1,k&1
        L=[mk(f"s_add_u32 m0, s{S_RG}, {k*4096}"), mk(f"s_add_u32 s{S_PO}, s{S_CO1 if ct else S_CO}, {ph*128}")]
        t=[mk(f"buffer_load_dwordx4 v{V_CD+q}, {sr(R_W if mat else R_B)}, s{S_PO} offen offset:{1024*q} lds") for q in range(4)]
        if k in self.o.get("skip_c",()): t=[mk("s_nop 0") for q in range(4)]
        return L+t,t
    def p3_rd_f(self, slot, dst, agpr):
        R=ar if agpr else vr
        return [mk(f"ds_read_b64_tr_b16 {R(dst+4*ct+2*q,2)}, v{V_FR+ct} offset:{slot*2048+1024*q}") for ct in range(2) for q in range(2)]
    def p3_rd_c(self, mat, ph, s, dst):
        return [mk(f"ds_read_b128 {vr(dst+4*ct,4)}, v{V_CR[s]} offset:{(4*mat+2*ph+ct)*4096}") for ct in range(2)]

    @staticmethod
    def cost(it):
        if isinstance(it,Wait): return 2
        if it.kind=="label": return 0
        if it.op in TRANS: return 8
        if it.kind=="vmem": return 16
        if it.op.startswith("v_pk_"): return 4
        return 4
    def merge_time(self, stream, ev, t=0):
        out=[]; i=0
        for it in stream:
            sccuse = (not isinstance(it,Wait)) and (it.kind=="label" or it.op.startswith("s_cselect") or it.op.startswith("s_cbranch_scc") or it.op.startswith("s_addc"))
            while (not sccuse) and i<len(ev) and ev[i][0]<=t:
                for x in ev[i][1]:
                    out.append(x); t+=self.cost(x)
                i+=1
            out.append(it); t+=self.cost(it)
        return out,ev[i:],t

    def phase3(self, tok):
        p=self.p
        ACC=32; RING=96; D=self.o.get('ring',12); BJ=96+8*D
        if self.o.get("tail"):
            order=[("f",b) for b in range(24)]+[("c",0,0,s) for s in range(4)]+[("c",0,1,s) for s in range(4)]+[("f",b) for b in range(24,28)]+[("c",1,0,s) for s in range(4)]+[("c",1,1,s) for s in range(4)]
        else: order=[("f",b) for b in range(24)]+[("c",0,1,s) for s in range(4)]+[("c",1,0,s) for s in range(4)]+[("c",1,1,s) for s in range(4)]+[("f",b) for b in range(24,28)]+[("c",0,0,s) for s in range(4)]
        pf={}
        first_use={-2:0,-1:4,0:8,1:12,2:16,3:20}
        rest=self.p3_rest; base=4-len(rest)
        for k,G in enumerate(rest):
            st0=self.o.get("pf0",0)+2*k
            a,b=split(G,2); pf[st0]=pf.get(st0,[])+a; pf[st0+1]=pf.get(st0+1,[])+b
            assert st0+1 < first_use[base+k]
        def krel(st):
            if st[0]=="f": return 11*(st[1]//7)+st[1]%7
            _,mat,ph,s=st
            return 11*(2*ph+(s>>1))+7+2*mat+(s&1)
        def aload(i):
            st=order[i]; r=RING+8*(i%D); k=krel(st)*1024
            L=[mk(f"s_add_u32 s{S_T2}, s{S_A0}, {k}"), mk(f"s_add_u32 s{S_T3}, s{S_A0+1}, {k}")]
            t=[mk(f"buffer_load_dwordx4 {vr(r+4*e,4)}, v{V_AO}, {sr(R_WS)}, s{S_T2+e} offen sc1") for e in range(2)]
            return [L[0],t[0],L[1],t[1]],t
        at={}
        for i in range(D):
            L,at[i]=aload(i); p.add(L)
        for G in self.p3_wait: p.add(G)
        fl=self.final_loads()
        xt=self.xterm_items()
        brd={}
        def bread(i):
            st=order[i]; dst=BJ+8*(i%3)
            if st[0]=="f":
                b=st[1]
                if b<24: return None
                slot=b-8
                return [Wait(vm=tok[("f",b)])]+self.p3_rd_f(slot,dst,False)
            _,mat,ph,s=st
            w=[Wait(vm=tok[("c",4*mat+2*ph+ct)]) for ct in range(2)]
            return w+self.p3_rd_c(mat,ph,s,dst)
        n=len(order)
        x0=self.o.get("xt0",13); xn=8
        xparts=split(xt,xn)
        for i in range(n):
            st=order[i]
            fill=[]
            if i+2<n:
                r=bread(i+2)
                if r: brd[i+2]=[x for x in r if not isinstance(x,Wait)]; fill+=r
            fill+=pf.get(i,[])
            if 2<=i<6: fill+=split(fl,4)[i-2]
            if x0<=i<x0+xn: fill+=xparts[i-x0]
            r=RING+8*(i%D)
            if st[0]=="f" and st[1]<24: B=lambda ct,b=st[1]: ar(self.blk_areg(b)+4*ct,4)
            else: B=lambda ct,i=i: vr(BJ+8*(i%3)+4*ct,4)
            mf=[]
            for tau in range(2):
                for ct in range(2):
                    a=ACC+16*(2*tau+ct)
                    mf.append(mk(f"v_mfma_f32_32x32x16_bf16 {vr(a,16)}, {vr(r+4*tau,4)}, {B(ct)}, {'0' if i==0 else vr(a,16)}"))
            if i==24-D-1: p.add(self.p3_poll2[1])
            if i==max(24-D-1-self.o.get("poll2_lead",6),0): fill+=self.p3_poll2[0]
            p.wait(vm=at[i][0])
            if self.o.get("p3st") and i%8==0: p.add(self.stamp(1 if i==0 else 2+i//8))
            if i in brd: p.wait(lgkm=brd[i])
            k=len(fill); f3=[fill[(k*q)//3:(k*(q+1))//3] for q in range(3)]
            p.add(mf[0]); p.add(f3[0]); p.add(mf[1]); p.add(f3[1])
            p.wait(vm=at[i][1])
            p.add(mf[2]); p.add(f3[2]); p.add(mf[3])
            if i+D<n:
                L,at[i+D]=aload(i+D); p.add(L)

    def a_base(self):
        L=[]; A=lambda x: L.append(mk(x))
        A(f"s_lshl_b32 s{S_A0}, s{S_C3}, 2"); A(f"s_lshl_b32 s{S_T0}, s{S_RH}, 1"); A(f"s_add_u32 s{S_A0}, s{S_A0}, s{S_T0}"); A(f"s_mul_i32 s{S_A0}, s{S_A0}, 176")
        A(f"s_mul_i32 s{S_T0}, s{S_W}, 44"); A(f"s_add_u32 s{S_A0}, s{S_A0}, s{S_T0}"); A(f"s_lshl_b32 s{S_A0}, s{S_A0}, 10")
        A(f"s_lshr_b32 s{S_T0}, s{S_W}, 1"); A(f"s_mul_i32 s{S_T0}, s{S_T0}, {176*1024}"); A(f"s_xor_b32 s{S_T1}, s{S_T0}, {176*1024}")
        A(f"s_add_u32 s{S_A0+1}, s{S_A0}, s{S_T1}"); A(f"s_add_u32 s{S_A0}, s{S_A0}, s{S_T0}")
        return L

    @staticmethod
    def reg_of_row(rho): return 2*rho if rho<8 else 2*(rho-8)+1
    def final_loads(self):
        L=[]; A=lambda x: L.append(mk(x)) or L[-1]
        XV,GV,DV=2,216,18
        a=V_T
        A(f"s_lshl_b32 s{S_R0}, s{S_C3}, 7"); A(f"s_lshl_b32 s{S_T0}, s{S_RH}, 6"); A(f"s_add_u32 s{S_R0}, s{S_R0}, s{S_T0}"); A(f"s_lshr_b32 s{S_T0}, s{S_W}, 1"); A(f"s_lshl_b32 s{S_T0}, s{S_T0}, 5"); A(f"s_add_u32 s{S_R0}, s{S_R0}, s{S_T0}")
        A(f"s_lshl_b32 s{S_D0}, s{S_CB}, 6"); A(f"s_and_b32 s{S_T0}, s{S_W}, 1"); A(f"s_lshl_b32 s{S_T0}, s{S_T0}, 5"); A(f"s_add_u32 s{S_D0}, s{S_D0}, s{S_T0}")
        A(f"v_lshrrev_b32 v{a}, 5, v{V_L}"); A(f"v_lshlrev_b32 v{a+1}, 6, v{a}"); A(f"s_lshl_b32 s{S_T0}, s{S_R0}, 2"); A(f"s_add_u32 s{S_T0}, s{S_T0}, {WS_G}")
        toks=[]
        for i in range(4): toks.append(A(f"buffer_load_dwordx4 {vr(GV+4*i,4)}, v{a+1}, {sr(R_WS)}, s{S_T0} offen offset:{16*i} sc1"))
        for i,(v) in enumerate((P_DSK,P_DSK+1)): A(f"s_mov_b32 s{R_T2+i}, s{v}")
        A(f"s_mov_b32 s{R_T2+2}, 1024"); A(f"s_mov_b32 s{R_T2+3}, 0x20000")
        A(f"v_and_b32 v{a+2}, 31, v{V_L}"); A(f"v_add_u32 v{a+2}, s{S_D0}, v{a+2}")
        A(f"v_lshlrev_b32 v{V_OO}, 2, v{a+2}"); A(f"v_lshlrev_b32 v{a+2}, 1, v{a+2}")
        toks.append(A(f"buffer_load_ushort v{DV}, v{a+2}, {sr(R_T2)}, 0 offen"))
        A(f"v_lshlrev_b32 v{a}, 14, v{a}"); A(f"v_add_u32 v{a+2}, v{a+2}, v{a}"); A(f"s_lshl_b32 s{S_T0}, s{S_R0}, 10")
        for rho in range(16):
            if rho and rho%4==0: A(f"s_add_u32 s{S_T0}, s{S_T0}, 4096")
            toks.append(A(f"buffer_load_ushort v{XV+self.reg_of_row(rho)}, v{a+2}, {sr(R_X)}, s{S_T0} offen offset:{1024*(rho%4)}"))
        A(f"v_lshl_add_u32 v{V_OO}, v{a}, 1, v{V_OO}")
        self.fin_toks=toks
        return L

    def xterm_items(self):
        XV,GV,DV=2,216,18
        L=[Wait(vm=self.fin_toks), mk(f"v_lshlrev_b32 v{DV}, 16, v{DV}")]
        for r in range(16): L.append(mk(f"v_lshlrev_b32 v{XV+r}, 16, v{XV+r}"))
        for r in range(16): L.append(mk(f"v_mul_f32 v{XV+r}, v{XV+r}, v{DV}"))
        for r in range(0,16,2): L.append(mk(f"v_cvt_pk_bf16_f32 v{XV+r}, v{XV+r}, v{XV+r+1}"))
        for r in range(0,16,2): L+=[mk(f"v_and_b32 v{XV+r+1}, 0xffff0000, v{XV+r}"), mk(f"v_lshlrev_b32 v{XV+r}, 16, v{XV+r}")]
        for r in range(16): L.append(mk(f"v_mul_f32 v{XV+r}, v{XV+r}, v{GV+r}"))
        a=V_T
        L+=[mk(f"v_lshlrev_b32 v{a}, 4, v{V_L}")]
        for k in range(1,4):
            L+=[mk(f"s_xor_b32 s{S_T0}, s{S_W}, {k}"), mk(f"s_mul_i32 s{S_T0}, s{S_T0}, {REGION}"), mk(f"v_add_u32 v{a+k}, s{S_T0}, v{a}")]
        L+=[mk(f"v_add_u32 v{a}, s{S_RG}, v{a}")]
        for k,v in enumerate((f"s{P_OUT}",f"s{P_OUT+1}",2048*2048,"0x20000")): L.append(mk(f"s_mov_b32 s{R_T2+k}, {v}"))
        L+=[mk(f"s_lshl_b32 s{S_R0}, s{S_R0}, 11")]
        return L

    def final(self):
        p=self.p
        ACC=32; XV=2
        a=V_T
        wr=[]
        for k in range(1,4):
            for q in range(4): wr.append(p.I(f"ds_write_b128 v{a}, {vr(ACC+16*k+4*q,4)} offset:{(k-1)*4096+q*1024}"))
        for r in range(0,16,2): p.I(f"v_pk_add_f32 {vr(ACC+r,2)}, {vr(ACC+r,2)}, {vr(XV+r,2)}")
        p.wait(lgkm_all=True); p.I("s_barrier")
        rd=[]
        for k in range(1,4):
            for q in range(4): rd.append(p.I(f"ds_read_b128 {vr(96+16*(k-1)+4*q,4)}, v{a+k} offset:{(k-1)*4096+q*1024}"))
        for k in range(3):
            for q in range(4):
                p.wait(lgkm=rd[4*k+q])
                for r in (4*q,4*q+2): p.I(f"v_pk_add_f32 {vr(ACC+r,2)}, {vr(ACC+r,2)}, {vr(96+16*k+r,2)}")
        fl=self.o.get("out_flags","sc1")
        for rho in range(16):
            if rho and rho%2==0: p.I(f"s_add_u32 s{S_R0}, s{S_R0}, 4096")
            p.I(f"buffer_store_dword v{ACC+self.reg_of_row(rho)}, v{V_OO}, {sr(R_T2)}, s{S_R0} offen offset:{2048*(rho%2)} {fl}")

    def stamp(self, idx):
        if not self.o.get("stamps"): return []
        only=self.o.get("only")
        if only is not None and idx not in only: return []
        L=[mk("s_memrealtime s[100:101]"), mk("s_waitcnt lgkmcnt(0)"), mk(f"v_writelane_b32 v{V_ST}, s100, {idx}")]
        if self.o.get("cyc"): L+=[mk("s_memtime s[100:101]"), mk("s_waitcnt lgkmcnt(0)"), mk(f"v_writelane_b32 v{V_ST}, s100, {idx+16}")]
        return L
    def note(self, idx, sreg):
        if not self.o.get("stamps"): return []
        return [mk("s_nop 0"), mk(f"v_writelane_b32 v{V_ST}, s{sreg}, {idx}")]
    def dump_stamps(self):
        if not self.o.get("stamps"): return
        p=self.p
        p.I(f"s_lshl_b32 s{S_T0}, s2, 2\ns_add_u32 s{S_T0}, s{S_T0}, s{S_W}\ns_lshl_b32 s{S_T0}, s{S_T0}, 8\ns_add_u32 s{S_T0}, s{S_T0}, {WS_DBG}")
        p.I(f"v_lshlrev_b32 v{V_T}, 2, v{V_L}")
        p.I(f"buffer_store_dword v{V_ST}, v{V_T}, {sr(R_WS)}, s{S_T0} offen")
        p.wait(vm_all=True)

    def dump_regs(self, regs, slot_base, agpr=False):
        p=self.p
        n=len(regs)
        p.I(f"s_lshl_b32 s{S_T0}, s2, 2\ns_add_u32 s{S_T0}, s{S_T0}, s{S_W}\ns_mul_i32 s{S_T0}, s{S_T0}, {n*256}\ns_add_u32 s{S_T0}, s{S_T0}, {slot_base}")
        p.I(f"v_lshlrev_b32 v{V_T}, 2, v{V_L}")
        for i,r in enumerate(regs):
            p.I(f"buffer_store_dword {r}, v{V_T}, {sr(R_WS)}, s{S_T0} offen")
            p.I(f"s_add_u32 s{S_T0}, s{S_T0}, 256")
        p.wait(vm_all=True)

    def finish(self):
        p=self.p
        p.I("s_endpgm")
        for x in self.slow: p.I(x)
        p.I("L_exit:\ns_endpgm\nL_codeend:")

    def text(self):
        items,npad,errs=finalize(self.p)
        for e in errs[:20]: print("ERR",e,file=sys.stderr)
        hdr=open("gated_mix__ssm_conv_s5__glu_gated_geglu__prompt.s.ref").read().split("; Override launch")[0]
        out=hdr+"; @launch grid=(256,1,1) block=(256,1,1) lds=163840\n"
        out+='.amdgcn_target "amdgcn-amd-amdhsa--gfx950"\n.text\n'
        out+=f".globl {KNAME}\n.p2align 8\n.type {KNAME},@function\n{KNAME}:\n"
        out+=emit(items)
        out+=f'''.section .rodata,"a"
.p2align 6
.amdhsa_kernel {KNAME}
  .amdhsa_next_free_vgpr 512
  .amdhsa_next_free_sgpr 102
  .amdhsa_accum_offset 256
  .amdhsa_group_segment_fixed_size 0
  .amdhsa_kernarg_size 136
  .amdhsa_user_sgpr_count 2
  .amdhsa_user_sgpr_kernarg_segment_ptr 1
  .amdhsa_system_sgpr_workgroup_id_x 1
.end_amdhsa_kernel
'''
        self.stats=dict(n=len(items),npad=npad,errs=len(errs))
        return out

def cutpt(L,k):
    while k<len(L) and (not isinstance(L[k],Wait)) and (L[k].kind=="label" or L[k].op.startswith("s_cselect") or L[k].op.startswith("s_cbranch") or L[k].op.startswith("s_addc")): k+=1
    return k
def split(L,n):
    k=len(L); c=[0]+[cutpt(L,(k*i)//n) for i in range(1,n)]+[k]; return [L[c[i]:c[i+1]] for i in range(n)]

def build_full(opts=None, stop=None):
    g=Gen(opts=opts); p=g.p; o=g.o
    if o.get("stamps"): p.I(f"v_mov_b32 v{V_ST}, 0")
    p.add(g.stamp(0))
    g.prologue_a()
    ex={}; head={}
    segs=[]; tsegs=[]
    def seg(items,a,b,tag=None):
        items=list(items)
        if tag and tag in o.get("abl",()):
            items=[x for x in items if isinstance(x,Wait) or (not isinstance(x,list) and x.kind in("vmem","ds"))]
        segs.append((items,a,b))
    def addh(key,items): head[key]=head.get(key,[])+list(items)
    F=lambda c,s_: ("F",c,s_)
    S=lambda c,d: ("S",c,d)
    def late():
        G=g.gate_items(); K=g.const_items()
        tp=o.get("touch_p3",1)
        if tp:
            wk=o.get("tw",[(1,1),(1,3),(2,1),(2,2),(3,1),(3,2),(4,1)]); ck=o.get("tc",[(5,0),(5,1),(5,2),(5,3)])
            for (a_,b_) in wk: tsegs.append((g.touch_one(R_T),F(a_,b_),F(a_,b_)))
            tsegs.append((g.touch_setup_c(),F(*ck[0]),F(*ck[0])))
            for (a_,b_) in ck: tsegs.append((g.touch_one(R_T2),F(a_,b_),F(a_,b_)))
        n3=cutpt(G,len(G)//3); n4=cutpt(G,2*len(G)//3)
        seg(G[:n3],F(0,0),F(0,3),'gate')
        seg(G[n3:n4],S(2,0),F(1,0),'gate')
        seg(G[n4:],F(1,1),F(1,2),'gate')
        addh(F(2,3),[Wait(vm=[g.g_store,g.c_store,g.e_init])])
        half=cutpt(K,len(K)//2)
        seg(K[:half],S(4,0),F(2,1),'const')
        seg(g.flag_op("add",[f"s_lshl_b32 s{S_T0}, s{S_C}, 4"],"1"),F(2,3),F(2,3))
        seg(K[half:],F(2,3),S(7,1),'const')
        Lp,tp_=g.gpoll_issue(23)
        L1,w1=g.pass1()
        seg(L1[:22],F(3,0),F(3,0),'p1')
        seg(L1[22:48],F(3,0),F(3,1),'p1')
        seg(L1[48:],F(3,1),F(3,2),'p1')
        addh(F(3,3),[Wait(lgkm=w1)])
        L2,est=g.exchange()
        seg(Lp,F(3,3),F(3,3))
        c2=cutpt(L2,40); seg(L2[:c2],F(3,3),F(4,0),'ex')
        seg(L2[c2:],F(4,1),F(4,2),'ex')
        addh(F(4,3),g.gpoll_check(23,tp_))
        Lg,gt=g.g_loads(); g.gt=gt
        seg(g.copy_consts(),F(4,3),F(4,3))
        seg(Lg,F(5,1),F(5,1))
        pass
        if not o.get("tail"):
            seg(g.p3_patterns1()+g.p3_patterns2(),F(5,3),F(6,2),'pat')
        else:
            seg(g.p3_patterns1(),F(5,1),F(5,2),'pat')
            r1=[]; t1={}
            for b in range(8):
                L,t1[b]=g.p3_dma_f(b,b,tail=True); r1+=L
            seg(r1,F(5,2),F(6,0))
            seg(g.p3_patterns2(),F(6,1),F(6,2),'pat')
            rd1=sum([g.p3_rd_f(b,g.blk_areg(b),True) for b in range(8)],[])
            seg([Wait(vm=t1[3])]+rd1[:16]+[Wait(vm=t1[7])]+rd1[16:],F(6,3),F(7,0))
            r2=[Wait(lgkm=rd1)]; g.t2={}
            for b in range(8,16):
                L,g.t2[b]=g.p3_dma_f(b,b-8,tail=True); r2+=L
            seg(r2,F(7,1),F(7,2))
        Le2,et=g.e_loads(); g.et=et
        seg(Le2,F(7,1) if not o.get('tail') else F(7,3),F(7,3))
    g.late=late
    g.late2=lambda: None
    g.segs=segs; g.tsegs=tsegs
    g.ex=ex; g.extra_head=head; g.end_barrier=True
    if o.get("stamps"):
        def st():
            for key,idx in ((("S",0,0),2),(("F",0,0),3),(("S",2,0),4),(("S",4,0),5),(("S",6,0),6),(("F",4,0),7),(("F",7,3),8)):
                head[key]=(g.stamp(idx) if not o.get("p3st") else [])+head.get(key,[])
            if o.get("fine"):
                k=40
                for ch in range(3,8):
                    for st_ in range(4):
                        head[("F",ch,st_)]=g.stamp(k)+head.get(("F",ch,st_),[]); k+=1
        g.late3=st
    g.phase1(ex)
    p.add(g.stamp(9))
    if o.get("p1only"):
        p.wait(vm_all=True,lgkm_all=True); p.add(g.stamp(15)); g.dump_stamps(); g.finish(); return g
    tok={}
    pre,tiles,Sf,sf=g.ffn_epilogue(g.gt[:1])
    Ls,ss=g.ssm_epilogue(g.et,g.gt[1:],[mk(f"s_add_u32 s{S_T0}, s{S_RG}, 36864")])
    def pub(dw): return g.flag_op("add",[f"s_lshl_b32 s{S_T0}, s{S_C}, 7", f"s_add_u32 s{S_T0}, s{S_T0}, {WS_CNT+4*dw}", f"s_lshr_b32 s{S_K0}, s{S_J}, 2", f"s_lshl_b32 s{S_K0}, s{S_K0}, 3", f"s_lshl_b32 s{S_K0}, 1, s{S_K0}"],f"s{S_K0}",R=R_WS)
    p.I("s_nop 7")
    if o.get("tail"):
        rd2=[]
        for b in range(8,16):
            if b in (8,12): p.wait(vm=g.t2[b+3])
            r=g.p3_rd_f(b-8,g.blk_areg(b),True); rd2+=r; p.add(r)
        g.rd2=rd2
    nA=o.get("nA",0)
    rA=[]
    for b in range(nA):
        L,tok[("f",b)]=g.p3_dma_f(b,b); rA.append(L)
    stream=list(pre)
    for i in range(7):
        stream+=tiles[i]+Sf[i]
        if i==0 and o.get("tail"): stream+=[Wait(lgkm=g.rd2)]+g.p3_rebase()+[mk("s_barrier")]
    evA=[]
    dt=o.get("dtA",75)
    for i,L in enumerate(rA):
        t=o.get("tA0",60)+2*dt*i
        evA+=[(t,L[:3]),(t+dt,L[3:])]
    merged,rest_,t_=g.merge_time(stream,evA)
    p.add(merged)
    g.evA_rest=(rest_,t_)
    if o.get("cyc"): p.add(g.stamp(1))
    cut=[k for k,x in enumerate(Ls) if not isinstance(x,Wait) and x.text.startswith(f"s_add_u32 s{S_T0}, s{S_RG}, 36864")][0]
    if o.get("two",0):
        p.add(Ls[:cut]); p.wait(vm=sf); p.I("s_barrier"); p.add(pub(0)); p.add(Ls[cut:])
        for _,x in g.evA_rest[0]: p.add(x)
    else:
        m2,rest2,_=g.merge_time(Ls,g.evA_rest[0],t=g.evA_rest[1])
        if rest2:
            k=min(i for i,x in enumerate(m2) if x in ss)
            while isinstance(m2[k-1],Wait): k-=1
            m2=m2[:k]+[y for _,x in rest2 for y in x]+m2[k:]
        p.add(m2)
    bytecheck=[f"s_lshl_b32 s{S_T1}, s{S_W}, 3", f"s_lshr_b32 s{S_T0}, s{S_T0}, s{S_T1}", f"s_and_b32 s{S_T0}, s{S_T0}, 0xff", f"s_cmp_eq_u32 s{S_T0}, 4"]
    if o.get("tail"):
        p.add(g.stamp(10))
        p.wait(lgkm=g.t_reads)
        for b in range(16,24):
            L,tok[("f",b)]=g.p3_dma_f(b,b-8); p.add(L)
        p.wait(vm=sf+ss); p.add(g.stamp(11)); p.I("s_barrier")
        p.add(pub(1))
        if not o.get("two",0): p.add(pub(0))
        Lq,tq=g.poll_issue(30,[f"s_lshl_b32 s{S_T0}, s{S_C3}, 7", f"s_add_u32 s{S_T0}, s{S_T0}, {WS_CNT}"],R=R_WS)
        pf_first=o.get("poll_first",0)
        if pf_first==1: p.add(Lq); p.add(g.a_base())
        for b in range(24,28):
            L,tok[("f",b)]=g.p3_dma_f(b,b-8); p.add(L)
        if pf_first==2: p.add(Lq); p.add(g.a_base())
        for k in range(4):
            L,tok[("c",k)]=g.p3_dma_c(k); p.add(L)
        if pf_first==0: p.add(Lq); p.add(g.a_base())
        GX=[Wait(vm=tok[("f",19)])]; rdx=[]
        for b in range(16,24):
            if b==20: GX.append(Wait(vm=tok[("f",23)]))
            r=g.p3_rd_f(b-8,g.blk_areg(b),True); rdx+=r; GX+=r
        GX.append(Wait(lgkm=rdx))
        for k in range(4,8):
            L,tok[("c",k)]=g.p3_dma_c(k); GX+=L
        if o.get("gx_before",1): p.add(GX); Gs=[]
        else: Gs=[GX]
        p.add(g.poll_check("a",30,tq,bytecheck,R=R_WS,sleep=0))
        n_before_check=0; n_after=len(Gs)
    else:
        p.add(g.stamp(10))
        p.wait(lgkm=g.t_reads)
        nb0=max(o.get("nb0",9),nA)
        for b in range(nA,nb0):
            L,tok[("f",b)]=g.p3_dma_f(b,b); p.add(L)
        p.wait(vm=sf+ss); p.add(g.stamp(11)); p.I("s_barrier")
        p.add(pub(1))
        if not o.get("two",0): p.add(pub(0))
        if o.get("fine"): p.add(g.stamp(60))
        Lq,tq=g.poll_issue(30,[f"s_lshl_b32 s{S_T0}, s{S_C3}, 7", f"s_add_u32 s{S_T0}, s{S_T0}, {WS_CNT}"],R=R_WS)
        early=o.get("early_poll",0)
        nb1=max(o.get("nb1",14),nb0)
        for b in range(nb0,nb1):
            L,tok[("f",b)]=g.p3_dma_f(b,b); p.add(L)
        if early: p.add(Lq); p.add(g.a_base())
        for b in range(nb1,20):
            L,tok[("f",b)]=g.p3_dma_f(b,b); p.add(L)
        def group(gi):
            bs=range(4*gi,4*gi+4); L=[Wait(vm=tok[("f",4*gi+3)])]; rd=[]
            for b in bs:
                r=g.p3_rd_f(b if b<20 else b-20,g.blk_areg(b),True); rd+=r; L+=r
            L.append(Wait(lgkm=rd))
            if gi==0:
                for b in range(20,24):
                    l,tok[("f",b)]=g.p3_dma_f(b,b-20); L+=l
            elif gi in (1,2,3):
                for k in (2*gi,2*gi+1):
                    l,tok[("c",k)]=g.p3_dma_c(k); L+=l
            elif gi==5:
                for k in (0,1):
                    l,tok[("c",k)]=g.p3_dma_c(k); L+=l
            return L
        G0=group(0); G1=group(1); G2=group(2); G3=group(3)
        G4=[Wait(vm=tok[("f",19)])]; rd4=[]
        for b in range(16,20):
            r=g.p3_rd_f(b,g.blk_areg(b),True); rd4+=r; G4+=r
        G4.append(Wait(lgkm=rd4))
        for b in range(24,28):
            l,tok[("f",b)]=g.p3_dma_f(b,b-8); G4+=l
        G5=group(5)
        Gs=[G0,G1,G2,G3,G4,G5]
        n_before_check=o.get("gc",2); n_after=o.get("ga",5)
        if not early: p.add(Lq); p.add(g.a_base())
        for x in Gs[:n_before_check]: p.add(x)
        if o.get("fine"): p.add(g.stamp(61))
        bytecheck_=[f"s_lshl_b32 s{S_T1}, s{S_W}, 3", f"s_lshr_b32 s{S_T0}, s{S_T0}, s{S_T1}", f"s_and_b32 s{S_T0}, s{S_T0}, 0xff", f"s_cmp_eq_u32 s{S_T0}, 4"]
        p.add(g.poll_check("a",30,tq,bytecheck,R=R_WS,sleep=0))
    g.p3_wait=Gs[n_before_check:n_after]
    g.p3_rest=Gs[n_after:]
    Lq2,tq2=g.poll_issue(28,[f"s_lshl_b32 s{S_T0}, s{S_C3}, 7", f"s_add_u32 s{S_T0}, s{S_T0}, {WS_CNT+4}"],R=R_WS)
    g.p3_poll2=(Lq2, g.poll_check("s",28,tq2,bytecheck,R=R_WS,sleep=0))
    p.add(g.stamp(12))
    g.phase3(tok)
    p.add(g.stamp(13))
    g.final()
    p.add(g.stamp(14))
    if o.get("stamps"): p.wait(vm_all=True)
    p.add(g.stamp(15))
    g.dump_stamps()
    g.finish()
    return g

if __name__=="__main__":
    opts=eval(sys.argv[2]) if len(sys.argv)>2 else {}
    g=build_full(opts=opts); t=g.text(); open(sys.argv[1] if len(sys.argv)>1 else "full.s","w").write(t); print(g.stats)
```

```python
import sys
from asmb import *

KNAME="gated_mix__ssm_conv_s5__glu_gated_geglu__prompt_kernel"

WS_A=0; WS_E=0xB00000; WS_G=0xB10000; WS_CNT=0xB18000; WS_DBG=0xB20000; WS_SIZE=0x4000000
OOB=0x7ff00000
WSLOT=28928; WUP=14464
L_W=0; L_B=86784; L_X=119552; L_EX=152320; L_GL=154368
P_X,P_LRE,P_LIM,P_BRE,P_BIM,P_CRE,P_CIM,P_LDT=4,6,8,10,12,14,16,18
P_DSK,P_BX,P_WG,P_WU,P_WD,P_GW,P_OUT,P_DBG=20,22,24,26,28,30,32,34
P_WS=36
S_C,S_J,S_W,S_C3,S_RH,S_CB=38,39,40,41,42,43
R_X,R_B,R_W,R_WS,R_DBG,R_T,R_T2=44,48,52,56,60,64,68
S_XO,S_BO,S_WO=72,73,74
S_XROW,S_BROW,S_WROW=75,76,77
S_XM,S_BM,S_WM=78,79,80
S_T0,S_T1,S_T2,S_T3=81,82,83,84
S_GT=85
S_M0=86
S_CNT=88
S_K0=89
S_AO=91
V_AO=22
S_RG,S_FO,S_CO=92,93,94
S_TB,S_PO=6,3
S_A0=96
S_R0,S_D0=98,99
REGION=40960
V_FD=232
V_CD=234
V_FR=238
V_CR=[240,241,242,243]
V_OO=23
V_ST=247
A_JUNK=250
A_PAT=176
V_TCH=0
S_TW=95
S_CO1=90
V_JUNK=24
SGT=[6,7,8,9,18,19,30,31]
A_P3=64
A_KS=48
V_TID,V_L=0,1
V_XG=2
V_BG=6
V_WG=8
V_WA,V_WB=15,16
V_BA=17
V_XA=21
V_T=25
V_ACC=32
V_SRE,V_SIM=144,160
V_WF=176
V_BF=232
V_U=248
A_X=0
A_BF=128
A_K=160

def srd(p, reg, ptr, size):
    p.I(f"s_mov_b32 s{reg}, s{ptr}\ns_mov_b32 s{reg+1}, s{ptr+1}\ns_mov_b32 s{reg+2}, {size}\ns_mov_b32 s{reg+3}, 0x20000")

def sr(r): return f"s[{r}:{r+3}]"
def vr(r,n): return f"v[{r}:{r+n-1}]" if n>1 else f"v{r}"
def ar(r,n): return f"a[{r}:{r+n-1}]" if n>1 else f"a{r}"

class Gen:
    def __init__(self, stop_after=None, opts=None):
        self.p=Prog(); self.stop=stop_after; self.o=opts or {}; self.slow=[]
    def prologue_a(self):
        p=self.p
        p.I("s_cmp_ge_u32 s2, 256\ns_cbranch_scc1 L_exit")
        p.I("s_load_dwordx16 s[4:19], s[0:1], 0"); p.I("s_load_dwordx16 s[20:35], s[0:1], 64"); p.I("s_load_dwordx2 s[36:37], s[0:1], 128")
        p.I(f"v_and_b32 v{V_L}, 63, v0\nv_lshrrev_b32 v{V_T}, 6, v0")
        if self.o.get("map",1)==1:
            p.I(f"s_lshr_b32 s{S_C}, s2, 4\ns_and_b32 s{S_J}, s2, 15")
        else:
            p.I(f"s_and_b32 s{S_J}, s2, 3\ns_lshl_b32 s{S_J}, s{S_J}, 2\ns_bfe_u32 s{S_T0}, s2, 0x20003\ns_add_u32 s{S_J}, s{S_J}, s{S_T0}")
            p.I(f"s_bfe_u32 s{S_C}, s2, 0x10002\ns_lshl_b32 s{S_C}, s{S_C}, 3\ns_lshr_b32 s{S_T0}, s2, 5\ns_add_u32 s{S_C}, s{S_C}, s{S_T0}")
        p.I(f"v_readfirstlane_b32 s{S_W}, v{V_T}")
        l=f"v{V_L}"; T=V_T
        p.I(f"v_lshrrev_b32 v{T}, 5, {l}\nv_lshlrev_b32 v{T}, 4, v{T}\nv_bfe_u32 v{T+1}, {l}, 3, 1\nv_lshl_add_u32 v{T}, v{T+1}, 3, v{T}\nv_bfe_u32 v{T+1}, {l}, 4, 1\nv_add_u32 v{T}, v{T}, v{T+1}\nv_lshlrev_b32 v{T}, 10, v{T}")
        p.I(f"v_and_b32 v{T+1}, 7, {l}\nv_lshrrev_b32 v{T+2}, 4, {l}\nv_xor_b32 v{T+3}, v{T+1}, v{T+2}\nv_xor_b32 v{T+4}, 4, v{T+3}")
        p.I(f"v_lshlrev_b32 v{T+3}, 4, v{T+3}\nv_lshlrev_b32 v{T+4}, 4, v{T+4}")
        for q in range(4):
            p.I(f"v_add_u32 v{V_XG+q}, v{T}, v{T+3+(q&1)}")
            if q: p.I(f"v_add_u32 v{V_XG+q}, {1024*q}, v{V_XG+q}")
        p.I(f"v_lshrrev_b32 v{T}, 3, {l}\nv_lshlrev_b32 v{T}, 10, v{T}")
        p.I(f"v_add_u32 v{V_BG}, v{T}, v{T+3}\nv_add_u32 v{V_BG+1}, v{T}, v{T+4}\nv_add_u32 v{V_BG+1}, {7*1024}, v{V_BG+1}")
        p.I(f"s_lshl_b32 s{S_T0}, s{S_W}, 12\ns_add_u32 s{S_XM}, s{S_T0}, {L_X}")
        p.I(f"s_lshl_b32 s{S_T1}, s{S_C}, 2\ns_add_u32 s{S_T1}, s{S_T1}, s{S_W}\ns_lshl_b32 s{S_XROW}, s{S_T1}, 15")
        p.I(f"s_and_b32 s{S_T1}, s{S_W}, 1\ns_lshr_b32 s{S_T2}, s{S_W}, 1")
        p.I(f"s_lshl_b32 s{S_T3}, s{S_J}, 1\ns_add_u32 s{S_T3}, s{S_T3}, s{S_T1}\ns_lshl_b32 s{S_BROW}, s{S_T3}, 14")
        p.I(f"s_lshl_b32 s{S_BM}, s{S_T2}, 12\ns_lshl_b32 s{S_T3}, s{S_T1}, 11\ns_add_u32 s{S_BM}, s{S_BM}, s{S_T3}\ns_add_u32 s{S_BM}, s{S_BM}, {L_B}")
        if self.o.get("hack_align"):
            p.I(f"s_mul_i32 s{S_WROW}, s{S_T1}, {32*3584}\ns_min_u32 s{S_T3}, s{S_J}, 13\ns_lshl_b32 s{S_T3}, s{S_T3}, 8\ns_add_u32 s{S_WROW}, s{S_WROW}, s{S_T3}")
        else:
            p.I(f"s_mul_i32 s{S_WROW}, s{S_T1}, {32*3584}\ns_mul_i32 s{S_T3}, s{S_J}, 224\ns_add_u32 s{S_WROW}, s{S_WROW}, s{S_T3}")
        p.I(f"s_mul_i32 s{S_WM}, s{S_T2}, {WUP}\ns_mul_i32 s{S_T3}, s{S_T1}, 7168\ns_add_u32 s{S_WM}, s{S_WM}, s{S_T3}")
        p.wait(lgkm_all=True)
        srd(p,R_X,P_X,2048*1024)
        p.I(f"s_cmp_eq_u32 s{S_T2}, 0")
        p.I(f"s_cselect_b32 s{R_B}, s{P_BRE}, s{P_BIM}\ns_cselect_b32 s{R_B+1}, s{P_BRE+1}, s{P_BIM+1}\ns_mov_b32 s{R_B+2}, {512*1024}\ns_mov_b32 s{R_B+3}, 0x20000")
        p.I(f"s_cselect_b32 s{R_W}, s{P_WG}, s{P_WU}\ns_cselect_b32 s{R_W+1}, s{P_WG+1}, s{P_WU+1}\ns_mov_b32 s{R_W+2}, {512*3584}\ns_mov_b32 s{R_W+3}, 0x20000")
    def prologue_b(self):
        p=self.p; l=f"v{V_L}"; T=V_T
        p.I(f"s_mov_b32 s{S_T0}, 4682\ns_mov_b32 s{S_T1}, 3584")
        for i in range(7):
            p.I(f"v_add_u32 v{T}, {64*i}, {l}\nv_mul_lo_u32 v{T+1}, v{T}, s{S_T0}\nv_lshrrev_b32 v{T+1}, 16, v{T+1}")
            p.I(f"v_mul_u32_u24 v{T+2}, 14, v{T+1}\nv_sub_u32 v{T+2}, v{T}, v{T+2}\nv_lshlrev_b32 v{T+2}, 4, v{T+2}")
            p.I(f"v_mul_lo_u32 v{T+1}, v{T+1}, s{S_T1}\nv_add_u32 v{V_WG+i}, v{T+1}, v{T+2}")
            if i&3: p.I(f"v_subrev_u32 v{V_WG+i}, {1024*(i&3)}, v{V_WG+i}")
    def prologue_c(self):
        p=self.p; l=f"v{V_L}"; T=V_T
        p.I(f"v_lshrrev_b32 v{T}, 5, {l}\nv_lshlrev_b32 v{T}, 3, v{T}\nv_bfe_u32 v{T+1}, {l}, 2, 2\nv_add_u32 v{T}, v{T}, v{T+1}\nv_mul_u32_u24 v{T}, 224, v{T}")
        p.I(f"v_bfe_u32 v{T+1}, {l}, 1, 1\nv_mul_u32_u24 v{T+1}, {WUP}, v{T+1}\nv_add_u32 v{T}, v{T}, v{T+1}")
        p.I(f"v_bfe_u32 v{T+1}, {l}, 4, 1\nv_lshlrev_b32 v{T+1}, 4, v{T+1}\nv_add_u32 v{T}, v{T}, v{T+1}")
        p.I(f"v_and_b32 v{T+1}, 1, {l}\nv_lshlrev_b32 v{T+1}, 3, v{T+1}\nv_add_u32 v{V_WA}, v{T}, v{T+1}\nv_add_u32 v{V_WB}, {2*WSLOT}, v{V_WA}")
        p.I(f"v_and_b32 v{T}, 31, {l}\nv_lshlrev_b32 v{T+1}, 7, v{T}\nv_bfe_u32 v{T+2}, {l}, 1, 3\nv_lshrrev_b32 v{T+3}, 5, {l}\nv_xor_b32 v{T+2}, v{T+2}, v{T+3}")
        p.I(f"s_lshl_b32 s{S_T0}, s{S_W}, 12\ns_add_u32 s{S_T0}, s{S_T0}, {L_X}")
        for s in range(4):
            p.I(f"v_xor_b32 v{T+3}, {2*s}, v{T+2}\nv_lshlrev_b32 v{T+3}, 4, v{T+3}\nv_add_u32 v{T+3}, v{T+1}, v{T+3}\nv_add_u32 v{V_BA+s}, {L_B}, v{T+3}\nv_add_u32 v{V_XA+s}, s{S_T0}, v{T+3}")
        srd(p,R_WS,P_WS,WS_SIZE); srd(p,R_DBG,P_DBG,256)
        if self.o.get("map",1)==1:
            p.I(f"s_lshr_b32 s{S_T0}, s2, 6\ns_lshl_b32 s{S_T0}, s{S_T0}, 2\ns_bfe_u32 s{S_T1}, s2, 0x20001\ns_add_u32 s{S_C3}, s{S_T0}, s{S_T1}")
            p.I(f"s_and_b32 s{S_RH}, s2, 1\ns_bfe_u32 s{S_CB}, s2, 0x30003")
        else:
            p.I(f"s_bfe_u32 s{S_C3}, s2, 0x10002\ns_lshl_b32 s{S_C3}, s{S_C3}, 3\ns_and_b32 s{S_T0}, s2, 3\ns_lshl_b32 s{S_T0}, s{S_T0}, 1\ns_add_u32 s{S_C3}, s{S_C3}, s{S_T0}\ns_lshr_b32 s{S_T0}, s2, 7\ns_add_u32 s{S_C3}, s{S_C3}, s{S_T0}")
            p.I(f"s_bfe_u32 s{S_RH}, s2, 0x10006\ns_bfe_u32 s{S_CB}, s2, 0x30003")

    def dma_x(self, ch):
        slot=ch&1
        L=[mk(f"s_add_u32 m0, s{S_XM}, {slot*16384}"), mk(f"s_add_u32 s{S_XO}, s{S_XROW}, {ch*128}")]
        toks=[mk(f"buffer_load_dwordx4 v{V_XG+q}, {sr(R_X)}, s{S_XO} offen offset:{1024*q} lds") for q in range(4)]
        return L+toks, toks
    def dma_b(self, ch):
        L=[mk(f"s_add_u32 m0, s{S_BM}, {(ch&3)*8192}"), mk(f"s_add_u32 s{S_BO}, s{S_BROW}, {ch*128}")]
        toks=[mk(f"buffer_load_dwordx4 v{V_BG+i}, {sr(R_B)}, s{S_BO} offen offset:{1024*i} lds") for i in range(2)]
        return L+toks, toks
    def dma_w(self, ch):
        slot=ch%3
        L=[mk(f"s_add_u32 m0, s{S_WM}, {slot*WSLOT}"), mk(f"s_add_u32 s{S_WO}, s{S_WROW}, {ch*64*3584}")]
        toks=[]
        for i in range(7):
            if i==4: L.append(mk(f"s_add_u32 m0, s{S_WM}, {slot*WSLOT+4096}"))
            t=mk(f"buffer_load_dwordx4 v{V_WG+i}, {sr(R_W)}, s{S_WO} offen offset:{1024*(i&3)} lds"); toks.append(t); L.append(t)
        return L,toks
    def rd_x(self, ch):
        return [mk(f"ds_read_b128 {ar(A_X+16*ch+4*s,4)}, v{V_XA+s} offset:{(ch&1)*16384}") for s in range(4)]
    def rd_b(self, ch, d, bset):
        base=(ch&3)*8192
        L=[]
        for e in range(2):
            for m in range(2):
                L.append(mk(f"ds_read_b128 {ar(A_BF+16*bset+8*e+4*m,4)}, v{V_BA+2*d+e} offset:{base+4096*m}"))
        return L
    def rd_w(self, ch, s, wset):
        slot=ch%3; va=V_WB if slot==2 else V_WA; base=0 if slot==2 else slot*WSLOT
        L=[]
        for i in range(7):
            for q in range(2):
                d=V_WF+28*wset+4*i+2*q
                L.append(mk(f"ds_read_b64_tr_b16 {vr(d,2)}, v{va} offset:{base+(16*s+4*q)*224+32*i}"))
        return L
    def mf_s(self, ch, d, bset):
        L=[]
        for e in range(2):
            s=2*d+e
            x=ar(A_X+16*ch+4*s,4)
            first=(ch==0 and s==0)
            for m,a in enumerate((V_SRE,V_SIM)):
                L.append(mk(f"v_mfma_f32_32x32x16_bf16 {vr(a,16)}, {x}, {ar(A_BF+16*bset+8*e+4*m,4)}, {'0' if first else vr(a,16)}"))
        return L
    def mf_f(self, ch, s, wset):
        x=ar(A_X+16*ch+4*s,4)
        first=(ch==0 and s==0)
        return [mk(f"v_mfma_f32_32x32x16_bf16 {vr(V_ACC+16*i,16)}, {vr(V_WF+28*wset+4*i,4)}, {x}, {'0' if first else vr(V_ACC+16*i,16)}") for i in range(7)]

    def phase1(self, extra):
        p=self.p
        X={};B={};W={}
        def issue(lst):
            for kind,ch in lst:
                L,t={"x":self.dma_x,"b":self.dma_b,"w":self.dma_w}[kind](ch); p.add(L); {"x":X,"b":B,"w":W}[kind][ch]=t
        fs=lambda i: p.add(self.stamp(i)) if self.o.get("fine") else None
        fs(32)
        w0_late=self.o.get("w0_late",1)
        for tokn in self.o.get("pro","x0,b0,sm,x1,b1,pb,pc,pp,cp,ts,tw").split(","):
            if tokn[0] in "xbw" and tokn[1:].isdigit(): issue([(tokn[0],int(tokn[1:]))]); w0_late = 0 if tokn=="w0" else w0_late
            elif tokn=="sm": self.small_loads()
            elif tokn=="pb": self.prologue_b()
            elif tokn=="pc": self.prologue_c()
            elif tokn=="cp":
                if not self.o.get("nocodepf"): self.code_prefetch()
            elif tokn=="pp": p.add(self.p3_patterns_pro())
            elif tokn=="ts":
                if self.o.get("touch_p3",1): p.add(self.touch_setup_w())
            elif tokn=="tw": p.add(self.touch_w())
            elif tokn=="ta": p.add(self.touch_w_rows(0,4))
            elif tokn=="t2": p.add(self.touch_w_rows(64,2))
            elif tokn=="tb": p.add(self.touch_w_rows(128,12))
            elif tokn=="tB": p.add(self.touch_b())
            elif tokn=="mx": p.add(self.touch_mall("x"))
            elif tokn=="md": p.add(self.touch_mall("d"))
            else: raise ValueError(tokn)
        fs(36)
        self.late(); self.late2()
        if hasattr(self,"late3"): self.late3()
        if not self.o.get("cyc"): p.add(self.stamp(1))
        nS=self.o.get("nS",[2,2,2,2,0,0,0,0])
        groups=[]; c0=0
        for g in range(8):
            groups.append(list(range(c0,c0+nS[g]))); c0+=nS[g]
        assert c0==8
        steps=[]
        for g in range(8):
            for ch in groups[g]:
                for d in range(2): steps.append(("S",ch,d))
            for s in range(4): steps.append(("F",g,s))
        setof={}; cnt={"S":0,"F":0}
        for st in steps:
            setof[st]=cnt[st[0]]&1; cnt[st[0]]+=1
        reads={}
        for st in steps:
            k,ch,s=st
            reads[st]=self.rd_b(ch,s,setof[st]) if k=="S" else self.rd_w(ch,s,setof[st])
        xr={ch:self.rd_x(ch) for ch in range(8)}
        rfill={st:[] for st in steps}
        fill={st:[] for st in steps}
        head={st:[] for st in steps}
        for i,st in enumerate(steps[:-1]):
            nx=steps[i+1]
            if st[0]=="S" and nx[0]=="F":
                rfill[steps[i-1]]+=reads[nx][:6]; rfill[st]+=reads[nx][6:]
            else: rfill[st]=reads[nx]+rfill[st]
        if nS[0]==2:
            p.wait(vm=X[0]+B[0]); p.I("s_barrier")
            p.add(xr[0][0:2]); p.add(reads[steps[0]][:2]); p.add(xr[0][2:]); p.add(reads[steps[0]][2:])
            if w0_late:
                L,W[0]=self.dma_w(0); fill[("S",0,0)]+=L
            if self.o.get("tb_late"): fill[self.o["tb_late"]]+=self.touch_w_rows(128,12,a=30,b=31,s0=S_T2,s1=S_T3)
            L,B[2]=self.dma_b(2); fill[("S",0,0)]+=L
            L,B[3]=self.dma_b(3); fill[("S",1,0)]+=L
            L,W[1]=self.dma_w(1); fill[("S",1,1)]+=L[:6]; w1b=L[6:]
            head[("S",0,1)]+=[Wait(vm=X[1]+B[1]), mk("s_barrier")]
            rfill[("S",0,1)]=xr[1][0:2]+rfill[("S",0,1)]+xr[1][2:]
            L,X[2]=self.dma_x(2); fill[("S",0,1)]+=[Wait(lgkm=xr[0])]+L
            L,X[3]=self.dma_x(3); fill[("S",1,1)]+=[Wait(lgkm=xr[1])]+L
            head[("S",1,0)]+=[Wait(vm=W[0]), mk("s_barrier")]
            fill[("F",0,0)]+=w1b
            L,W[2]=self.dma_w(2); fill[("F",0,1)]+=L[:6]; fill[("F",0,2)]+=L[6:]
            xissued=4; bissued=4
        else:
            assert nS[0]==1 and 0 in W
            p.wait(vm=X[0]+B[0]+W[0]); p.I("s_barrier")
            p.add(xr[0][0:2]); p.add(reads[steps[0]][:2]); p.add(xr[0][2:]); p.add(reads[steps[0]][2:])
            late_tw=self.o.get("tw_late")
            L,X[1]=self.dma_x(1); fill[("S",0,0)]+=L
            L,B[1]=self.dma_b(1); fill[("S",0,0)]+=L
            L,W[1]=self.dma_w(1); fill[("S",0,1)]+=L[:6]; fill[("F",0,0)]+=L[6:]
            nxt=2
            L,X[2]=self.dma_x(2); fill[("F",0,0)]+=[Wait(lgkm=xr[0])]+L
            L,B[2]=self.dma_b(2); fill[("F",0,1)]+=L
            L,W[2]=self.dma_w(2); fill[("F",0,1)]+=L[:6]; fill[("F",0,2)]+=L[6:]
            if late_tw: fill[late_tw]+=self.touch_w_rows(192,10,a=30,b=31,s0=S_T2,s1=S_T3)
            xissued=3; bissued=3
        xread={0,1} if nS[0]==2 else {0}
        for g in range(1,8):
            chs=groups[g]; last=("F",g-1,3)
            need=[c for c in chs if c not in xread]
            if need:
                rfill[("F",g-1,1)]+=[Wait(vm=sum([X[c] for c in need],[]))]+sum([xr[c] for c in need],[])
                xread|=set(need)
            head[last]+=[Wait(vm=sum([B[c] for c in chs],[])+W[g], lgkm=reads[last]+sum([xr[c] for c in need],[])), mk("s_barrier")]
            slots_steps=[last]+[("S",c,d) for c in chs for d in range(2)]+[("F",g,0),("F",g,1)]
            k=0
            nxtchs=groups[g+1] if g+1<8 else []
            for c in nxtchs:
                if c>=xissued:
                    L,X[c]=self.dma_x(c); fill[slots_steps[min(k,len(slots_steps)-1)]]+=L; k+=1; xissued=c+1
            for c in nxtchs+(groups[g+2] if g+2<8 and len(nxtchs)<2 and False else []):
                if c>=bissued:
                    L,B[c]=self.dma_b(c); fill[slots_steps[min(k,len(slots_steps)-1)]]+=L; k+=1; bissued=c+1
            if g+2<8:
                L,W[g+2]=self.dma_w(g+2)
                if chs: fill[("F",g,0)]+=L
                else: fill[last]+=L[:6]; fill[("F",g,0)]+=L[6:]
        for k,v in getattr(self,"extra_head",{}).items(): head[k]=list(v)+head[k]
        if getattr(self,"end_barrier",False):
            last=("F",7,3); head[last]+=[Wait(lgkm=reads[last]), mk("s_barrier")]
        self.steps=steps
        gap0={}; mfs={}; ng=0
        for st in steps:
            k,ch,s_=st
            mfs[st]=self.mf_s(ch,s_,setof[st]) if k=="S" else self.mf_f(ch,s_,setof[st])
            gap0[st]=ng; ng+=len(mfs[st])
        slots=[[] for _ in range(ng)]; free=[24.0]*ng
        cost=lambda it: sum(cost(x) for x in it) if isinstance(it,list) else (0 if isinstance(it,Wait) and False else self.cost2(it))
        def put(g,it): slots[g].append(it); free[g]-=cost(it)
        for st in steps:
            if gap0[st]>0: free[gap0[st]-1]-=sum(cost(x) for x in head[st])+4
        for st in steps:
            n=len(mfs[st]); rf=rfill[st]
            per=max(3 if st[0]=="F" else 2, -(-len(rf)//n))
            for t,it in enumerate(rf): put(gap0[st]+min(t//per,n-1),it)
        def atoms(items):
            out=[]
            for it in items:
                glue = out and (not isinstance(it,(Wait,list))) and (it.kind=="label" or it.op.startswith("s_cselect") or it.op.startswith("s_cbranch") or it.op.startswith("s_addc"))
                if glue: out[-1]=(out[-1] if isinstance(out[-1],list) else [out[-1]])+[it]
                else: out.append(it)
            return out
        def spread(items,g0,g1):
            at=atoms(items)
            C=sum(cost(x) for x in at)
            F=[max(free[g],0.0) for g in range(g0,g1)]
            tot=sum(F)
            if C>tot:
                ex_=(C-tot)/(g1-g0); F=[f+ex_ for f in F]; tot=C
            scale=C/tot if tot>0 else 1
            acc=0; g=g0; cap=F[0]*scale if scale<1 and self.o.get("even",0) else F[0]; last=g0
            cum=0
            for it in at:
                c=cost(it)
                while g<g1-1 and cum+c/2>cap:
                    g+=1; cap+=F[g-g0]*(scale if self.o.get("even",0) else 1)
                put(g,it); cum+=c; last=g
            return last
        endgap=lambda st: gap0[st]+len(mfs[st])
        lastg=0
        for st in steps:
            if fill[st]:
                g0=max(gap0[st],lastg); lastg=spread(fill[st],g0,max(endgap(st),g0+1))
        lastg=0
        for (items,a,b) in self.tsegs:
            g0=max(gap0[a],lastg); lastg=spread(items,g0,max(endgap(b),g0+1))
        lastg=0
        for (items,a,b) in self.segs:
            g0=max(gap0[a],lastg); g1=max(endgap(b),g0+1)
            lastg=spread(items,g0,g1)
        for st in steps:
            k,ch,s=st
            p.add(head[st])
            r=reads[st]
            for m,ins in enumerate(mfs[st]):
                if k=="S":
                    if m==0: p.wait(lgkm=r[0:2]+[xr[ch][2*s]])
                    if m==2: p.wait(lgkm=r[2:4]+[xr[ch][2*s+1]])
                else:
                    if m==0: p.wait(lgkm=r[0:6]+[xr[ch][s]])
                    if m==3: p.wait(lgkm=r[6:14])
                p.add(ins)
                p.add(slots[gap0[st]+m])

    def cost2(self,it):
        if isinstance(it,Wait): return 4
        if it.kind=="label": return 0
        if it.op in TRANS: return 8
        if it.kind=="vmem": return self.o.get("vmcost",16)
        return 4

    LOG2E=1.4426950408889634
    def fconst(self, sreg, val):
        import struct
        return f"s_mov_b32 s{sreg}, 0x{struct.unpack('<I',struct.pack('<f',val))[0]:08x}"

    def small_loads(self):
        p=self.p; l=f"v{V_L}"
        srd(p,R_T,P_GW,1024)
        p.I(f"v_lshlrev_b32 v{V_AO}, 4, {l}")
        p.I(f"s_lshl_b32 s{S_T0}, s{S_C}, 7\ns_lshl_b32 s{S_T1}, s{S_J}, 3\ns_add_u32 s{S_T0}, s{S_T0}, s{S_T1}\ns_lshl_b32 s{S_T1}, s{S_W}, 1\ns_add_u32 s{S_GT}, s{S_T0}, s{S_T1}")
        p.I(f"s_lshl_b32 s{S_T0}, s{S_GT}, 10")
        X0,X1,GW=232,236,240
        self.gl=[p.I(f"buffer_load_dwordx4 {vr(X0,4)}, v{V_AO}, {sr(R_X)}, s{S_T0} offen"),
                 p.I(f"buffer_load_dwordx4 {vr(X1,4)}, v{V_AO}, {sr(R_X)}, s{S_T0} offen offset:1024"),
                 p.I(f"buffer_load_dwordx4 {vr(GW,4)}, v{V_AO}, {sr(R_T)}, 0 offen")]
        p.I(f"v_and_b32 v{V_T}, 31, {l}\ns_lshl_b32 s{S_T1}, s{S_J}, 6\nv_lshlrev_b32 v{V_T}, 1, v{V_T}\nv_add_u32 v{V_T}, s{S_T1}, v{V_T}")
        self.kl=[]
        for i,ptr in enumerate((P_LRE,P_LIM,P_LDT)):
            srd(p,R_T2,ptr,1024)
            self.kl.append(p.I(f"buffer_load_ushort v{244+i}, v{V_T}, {sr(R_T2)}, 0 offen"))

    def gate_items(self):
        l=f"v{V_L}"; L=[]; A=lambda x: L.append(mk(x))
        X0,X1,GW=232,236,240
        A0,A1=248,249; u=250
        L.append(Wait(vm=self.gl))
        for i in range(4):
            A(f"v_lshlrev_b32 v{u+2}, 16, v{GW+i}"); A(f"v_and_b32 v{u+3}, 0xffff0000, v{GW+i}")
            for X,Ac in ((X0,A0),(X1,A1)):
                A(f"v_lshlrev_b32 v{u}, 16, v{X+i}"); A(f"v_and_b32 v{u+1}, 0xffff0000, v{X+i}"); A(f"v_mul_f32 v{u}, v{u}, v{u+2}"); A(f"v_mul_f32 v{u+1}, v{u+1}, v{u+3}")
                A(f"v_cvt_pk_bf16_f32 v{X+i}, v{u}, v{u+1}"); A(f"v_lshlrev_b32 v{u}, 16, v{X+i}"); A(f"v_and_b32 v{u+1}, 0xffff0000, v{X+i}")
                if i==0: A(f"v_add_f32 v{Ac}, v{u}, v{u+1}")
                else: A(f"v_add_f32 v{Ac}, v{Ac}, v{u}"); A(f"v_add_f32 v{Ac}, v{Ac}, v{u+1}")
        for sh in (8,4,2,1):
            for Ac in (A0,A1): A(f"v_add_f32_dpp v{Ac}, v{Ac}, v{Ac} row_ror:{sh} row_mask:0xf bank_mask:0xf")
        for Ac,sb in ((A0,0),(A1,4)):
            for q in range(4): A(f"v_readlane_b32 s{SGT[sb+q]}, v{Ac}, {16*q}")
        for Ac,sb in ((A0,0),(A1,4)):
            A(f"v_mov_b32 v{Ac}, s{SGT[sb]}"); A(f"v_add_f32 v{Ac}, s{SGT[sb+1]}, v{Ac}"); A(f"v_add_f32 v{Ac}, s{SGT[sb+2]}, v{Ac}"); A(f"v_add_f32 v{Ac}, s{SGT[sb+3]}, v{Ac}")
        A(f"v_cmp_eq_u32 vcc, 1, {l}"); A(f"v_cndmask_b32 v{A0}, v{A0}, v{A1}, vcc")
        A(f"v_cvt_pk_bf16_f32 v{A0}, v{A0}, v{A0}"); A(f"v_lshlrev_b32 v{A0}, 16, v{A0}")
        A(self.fconst(SGT[0],-self.LOG2E))
        A(f"v_mul_f32 v{A0}, s{SGT[0]}, v{A0}"); A(f"v_exp_f32 v{A0}, v{A0}"); A(f"v_add_f32 v{A0}, 1.0, v{A0}"); A(f"v_rcp_f32 v{A0}, v{A0}")
        A(f"v_cvt_pk_bf16_f32 v{A0}, v{A0}, v{A0}"); A(f"v_lshlrev_b32 v{A0}, 16, v{A0}")
        A(f"v_lshlrev_b32 v{u}, 3, {l}"); A(f"s_lshl_b32 s{SGT[0]}, s{S_C}, 7"); A(f"s_lshr_b32 s{SGT[1]}, s{S_J}, 1"); A(f"s_lshl_b32 s{SGT[1]}, s{SGT[1]}, 4"); A(f"s_add_u32 s{SGT[0]}, s{SGT[0]}, s{SGT[1]}")
        A(f"s_lshl_b32 s{SGT[1]}, s{S_W}, 2"); A(f"s_add_u32 s{SGT[0]}, s{SGT[0]}, s{SGT[1]}"); A(f"s_and_b32 s{SGT[1]}, s{S_J}, 1"); A(f"s_add_u32 s{SGT[0]}, s{SGT[0]}, s{SGT[1]}")
        A(f"s_lshl_b32 s{SGT[0]}, s{SGT[0]}, 2"); A(f"s_add_u32 s{SGT[0]}, s{SGT[0]}, {WS_G}"); A(f"v_add_u32 v{u}, s{SGT[0]}, v{u}")
        A(f"v_mov_b32 v{u+1}, {OOB}"); A(f"v_cmp_gt_u32 vcc, 2, {l}"); A(f"v_cndmask_b32 v{u}, v{u+1}, v{u}, vcc")
        A(f"buffer_store_dword v{A0}, v{u}, {sr(R_WS)}, 0 offen sc1"); self.g_store=L[-1]
        A(f"s_lshl_b32 s{SGT[0]}, s{S_C}, 7"); A(f"s_add_u32 s{SGT[0]}, s{SGT[0]}, {WS_CNT}"); A(f"s_or_b32 s{SGT[1]}, s{S_J}, s{S_W}"); A(f"s_cmp_eq_u32 s{SGT[1]}, 0"); A(f"s_cselect_b32 s{SGT[0]}, s{SGT[0]}, {OOB}")
        A(f"v_mov_b32 v{u}, {OOB}"); A(f"v_mov_b32 v{u+1}, s{SGT[0]}"); A(f"v_cmp_eq_u32 vcc, 0, {l}"); A(f"v_cndmask_b32 v{u}, v{u}, v{u+1}, vcc"); A(f"v_mov_b32 v{u+2}, 0"); A(f"v_mov_b32 v{u+3}, 0")
        A(f"buffer_store_dwordx2 {vr(u+2,2)}, v{u}, {sr(R_WS)}, 0 offen sc1")
        self.c_store=L[-1]
        A(f"s_lshl_b32 s{SGT[0]}, s{S_C}, 12"); A(f"s_lshl_b32 s{SGT[1]}, s{S_J}, 8"); A(f"s_add_u32 s{SGT[0]}, s{SGT[0]}, s{SGT[1]}"); A(f"s_add_u32 s{SGT[0]}, s{SGT[0]}, {WS_E}")
        A(f"s_cmp_eq_u32 s{S_W}, 0"); A(f"s_cselect_b32 s{SGT[0]}, s{SGT[0]}, {OOB}")
        A(f"v_lshlrev_b32 v{u}, 3, {l}"); A(f"v_add_u32 v{u}, s{SGT[0]}, v{u}"); A(f"v_mov_b32 v{u+1}, {OOB}"); A(f"v_cmp_gt_u32 vcc, 32, {l}"); A(f"v_cndmask_b32 v{u}, v{u+1}, v{u}, vcc")
        A(f"v_mov_b32 v{u+2}, -1"); A(f"v_mov_b32 v{u+3}, -1")
        A(f"buffer_store_dwordx2 {vr(u+2,2)}, v{u}, {sr(R_WS)}, 0 offen sc1"); self.e_init=L[-1]
        return L

    def const_items(self):
        l=f"v{V_L}"; L=[]; A=lambda x: L.append(mk(x))
        LR,LI,DT=244,245,246
        AE,AN,SG,M,AG=232,233,234,235,236
        R=238
        C,S=238,239
        L.append(Wait(vm=self.kl))
        A(f"v_lshlrev_b32 v{LR}, 16, v{LR}"); A(f"v_lshlrev_b32 v{LI}, 16, v{LI}"); A(f"v_lshlrev_b32 v{DT}, 16, v{DT}")
        A(self.fconst(SGT[0],self.LOG2E)); A(self.fconst(SGT[1],0.15915494309189535)); A(self.fconst(SGT[2],16.0)); A(self.fconst(SGT[3],128.0))
        A(f"v_mul_f32 v{DT}, s{SGT[0]}, v{DT}"); A(f"v_exp_f32 v{DT}, v{DT}"); A(f"v_lshrrev_b32 v{SG}, 5, {l}"); A(f"v_cvt_pk_bf16_f32 v{DT}, v{DT}, v{DT}"); A(f"v_lshlrev_b32 v{DT}, 16, v{DT}")
        A(f"v_mul_f32 v{AE}, v{DT}, v{LR}"); A(f"v_mul_f32 v{AN}, v{DT}, v{LI}"); A(f"v_mul_f32 v{AE}, s{SGT[0]}, v{AE}"); A(f"v_mul_f32 v{AN}, s{SGT[1]}, v{AN}")
        A(f"s_lshl_b32 s{SGT[4]}, s{S_W}, 1"); A(f"v_add_u32 v{SG}, s{SGT[4]}, v{SG}"); A(f"v_lshlrev_b32 v{SG}, 4, v{SG}"); A(f"v_cvt_f32_u32 v{SG}, v{SG}")
        def cexp(k, mul, keep=None):
            if mul is None: A(f"v_mov_b32 v{M}, v{AE}"); A(f"v_mov_b32 v{AG}, v{AN}")
            else: A(f"v_mul_f32 v{M}, {mul}, v{AE}"); A(f"v_mul_f32 v{AG}, {mul}, v{AN}")
            A(f"v_exp_f32 v{M}, v{M}"); A(f"v_fract_f32 v{AG}, v{AG}"); A(f"v_cos_f32 v{C}, v{AG}"); A(f"v_sin_f32 v{S}, v{AG}"); A("s_nop 0")
            A(f"v_mul_f32 v{C}, v{M}, v{C}"); A(f"v_mul_f32 v{S}, v{M}, v{S}")
            A(f"v_accvgpr_write_b32 a{A_K+k}, v{C}"); A(f"v_accvgpr_write_b32 a{A_K+k+1}, v{S}")
        A(self.fconst(SGT[5],8.0))
        cexp(2,f"s{SGT[2]}"); cexp(4,f"s{SGT[3]}"); cexp(6,f"v{SG}"); cexp(12,f"s{SGT[5]}"); cexp(0,None)
        NR,DEN,u2=235,236,240
        A(f"v_add_f32 v{NR}, -1.0, v{C}"); A(f"v_mul_f32 v{DEN}, v{LR}, v{LR}"); A(f"v_fmac_f32 v{DEN}, v{LI}, v{LI}"); A(f"v_rcp_f32 v{DEN}, v{DEN}")
        A(f"v_mul_f32 v{u2}, v{NR}, v{LR}"); A(f"v_fmac_f32 v{u2}, v{S}, v{LI}"); A(f"v_mul_f32 v{u2+1}, v{S}, v{LR}"); A(f"v_fma_f32 v{u2+1}, -v{NR}, v{LI}, v{u2+1}")
        A(f"v_add_f32 v{DEN}, v{DEN}, v{DEN}"); A(f"v_mul_f32 v{u2}, v{u2}, v{DEN}"); A(f"v_mul_f32 v{u2+1}, v{u2+1}, v{DEN}")
        A(f"v_accvgpr_write_b32 a{A_K+8}, v{u2}"); A(f"v_accvgpr_write_b32 a{A_K+9}, v{u2+1}")
        return L

    def touch(self, items_addr, R, soff, vreg):
        return items_addr+[mk(f"buffer_load_dword a{A_JUNK}, v{vreg}, {sr(R)}, {soff} offen")]
    def touch_w(self):
        l=f"v{V_L}"; a,b=V_T,V_T+1; L=[]; A=lambda x: L.append(mk(x))
        A(f"v_lshrrev_b32 v{a}, 2, {l}"); A(f"v_mul_u32_u24 v{a}, 3584, v{a}"); A(f"v_and_b32 v{b}, 3, {l}"); A(f"v_cmp_eq_u32 vcc, 3, v{b}"); A(f"v_lshlrev_b32 v{b}, 7, v{b}"); A(f"v_add_u32 v{a}, v{a}, v{b}")
        A(f"v_mov_b32 v{b}, {OOB}"); A(f"v_cndmask_b32 v{a}, v{a}, v{b}, vcc")
        A(f"s_lshl_b32 s{S_T0}, s{S_C}, 1"); A(f"s_and_b32 s{S_T1}, s{S_W}, 1"); A(f"s_add_u32 s{S_T0}, s{S_T0}, s{S_T1}"); A(f"s_mul_i32 s{S_T0}, s{S_T0}, {16*3584}")
        A(f"s_mul_i32 s{S_T1}, s{S_J}, 224"); A(f"s_and_b32 s{S_T1}, s{S_T1}, 0xffffff80"); A(f"s_add_u32 s{S_T0}, s{S_T0}, s{S_T1}")
        if self.o.get("map",1)==2:
            A(f"s_and_b32 s{S_T0}, s{S_C}, 7"); A(f"s_lshl_b32 s{S_T0}, s{S_T0}, 1"); A(f"s_and_b32 s{S_T2}, s{S_W}, 1"); A(f"s_add_u32 s{S_T0}, s{S_T0}, s{S_T2}"); A(f"s_mul_i32 s{S_T0}, s{S_T0}, {32*3584}"); A(f"s_add_u32 s{S_T0}, s{S_T0}, s{S_T1}")
            A(f"buffer_load_dword a{A_JUNK}, v{a}, {sr(R_W)}, s{S_T0} offen")
            if self.o.get("tw2",1):
                A(f"s_add_u32 s{S_T0}, s{S_T0}, {16*3584}")
                A(f"buffer_load_dword a{A_JUNK}, v{a}, {sr(R_W)}, s{S_T0} offen")
            return L
        A(f"buffer_load_dword a{A_JUNK}, v{a}, {sr(R_W)}, s{S_T0} offen")
        if not self.o.get("touch_b",1): return L
        A(f"v_and_b32 v{a}, 7, {l}"); A(f"v_lshlrev_b32 v{a}, 7, v{a}")
        A(f"s_lshl_b32 s{S_T0}, s{S_J}, 4"); A(f"s_add_u32 s{S_T0}, s{S_T0}, s{S_C}"); A(f"s_lshl_b32 s{S_T0}, s{S_T0}, 1"); A(f"s_and_b32 s{S_T1}, s{S_W}, 1"); A(f"s_add_u32 s{S_T0}, s{S_T0}, s{S_T1}"); A(f"s_lshl_b32 s{S_T0}, s{S_T0}, 10")
        A(f"buffer_load_dword a{A_JUNK}, v{a}, {sr(R_B)}, s{S_T0} offen")
        return L
    def touch_w_rows(self, r0, nrows_per_wave, a=V_T, b=V_T+1, s0=S_T0, s1=S_T1):
        l=f"v{V_L}"; L=[]; A=lambda x: L.append(mk(x))
        A(f"v_lshrrev_b32 v{a}, 2, {l}"); A(f"v_and_b32 v{b}, 3, {l}"); A(f"v_cmp_eq_u32 vcc, 3, v{b}"); A(f"v_lshlrev_b32 v{b}, 7, v{b}")
        A(f"v_cmp_le_u32 s[{S_M0}:{S_M0+1}], {nrows_per_wave}, v{a}"); A(f"v_mul_u32_u24 v{a}, 3584, v{a}"); A(f"v_add_u32 v{a}, v{a}, v{b}")
        A(f"s_or_b64 vcc, vcc, s[{S_M0}:{S_M0+1}]"); A(f"v_mov_b32 v{b}, {OOB}"); A(f"v_cndmask_b32 v{a}, v{a}, v{b}, vcc")
        A(f"s_lshl_b32 s{s0}, s{S_C}, 1"); A(f"s_and_b32 s{s1}, s{S_W}, 1"); A(f"s_add_u32 s{s0}, s{s0}, s{s1}"); A(f"s_mul_i32 s{s0}, s{s0}, {nrows_per_wave*3584}")
        A(f"s_mul_i32 s{s1}, s{S_J}, 224"); A(f"s_and_b32 s{s1}, s{s1}, 0xffffff80"); A(f"s_add_u32 s{s0}, s{s0}, s{s1}"); A(f"s_add_u32 s{s0}, s{s0}, {r0*3584}")
        A(f"buffer_load_dword a{A_JUNK}, v{a}, {sr(R_W)}, s{s0} offen")
        return L
    def touch_b(self):
        l=f"v{V_L}"; a=V_T; L=[]; A=lambda x: L.append(mk(x))
        A(f"v_and_b32 v{a}, 7, {l}"); A(f"v_lshlrev_b32 v{a}, 7, v{a}")
        A(f"s_lshl_b32 s{S_T0}, s{S_J}, 4"); A(f"s_add_u32 s{S_T0}, s{S_T0}, s{S_C}"); A(f"s_lshl_b32 s{S_T0}, s{S_T0}, 1"); A(f"s_and_b32 s{S_T1}, s{S_W}, 1"); A(f"s_add_u32 s{S_T0}, s{S_T0}, s{S_T1}"); A(f"s_lshl_b32 s{S_T0}, s{S_T0}, 10")
        A(f"buffer_load_dword a{A_JUNK}, v{a}, {sr(R_B)}, s{S_T0} offen")
        return L
    def touch_mall(self, what):
        l=f"v{V_L}"; a,b=V_T,V_T+1; L=[]; A=lambda x: L.append(mk(x))
        A(f"s_lshl_b32 s{S_T2}, s2, 2"); A(f"s_add_u32 s{S_T2}, s{S_T2}, s{S_W}")
        def lanes(n):
            A(f"v_lshlrev_b32 v{a}, 7, {l}"); A(f"v_mov_b32 v{b}, {OOB}"); A(f"v_cmp_gt_u32 vcc, {n}, {l}"); A(f"v_cndmask_b32 v{a}, v{b}, v{a}, vcc")
        if "x" in what:
            lanes(16); A(f"s_lshl_b32 s{S_T0}, s{S_T2}, 11")
            A(f"buffer_load_dword a{A_JUNK}, v{a}, {sr(R_X)}, s{S_T0} offen")
        if "d" in what:
            lanes(14); A(f"s_mul_i32 s{S_T0}, s{S_T2}, {14*128}")
            for k,v in enumerate((f"s{P_WD}",f"s{P_WD+1}",1792*1024,"0x20000")): A(f"s_mov_b32 s{R_T+k}, {v}")
            A(f"buffer_load_dword a{A_JUNK}, v{a}, {sr(R_T)}, s{S_T0} offen")
            lanes(8); A(f"s_cmp_lt_u32 s{S_T2}, 512")
            A(f"s_cselect_b32 s{R_T2}, s{P_CRE}, s{P_CIM}"); A(f"s_cselect_b32 s{R_T2+1}, s{P_CRE+1}, s{P_CIM+1}"); A(f"s_mov_b32 s{R_T2+2}, {512*1024}"); A(f"s_mov_b32 s{R_T2+3}, 0x20000")
            A(f"s_and_b32 s{S_T0}, s{S_T2}, 511"); A(f"s_lshl_b32 s{S_T0}, s{S_T0}, 10")
            A(f"buffer_load_dword a{A_JUNK}, v{a}, {sr(R_T2)}, s{S_T0} offen")
        return L
    def touch_x(self):
        l=f"v{V_L}"; a,b=V_T,V_T+1; L=[]; A=lambda x: L.append(mk(x))
        A(f"v_and_b32 v{a}, 31, {l}"); A(f"v_lshlrev_b32 v{a}, 10, v{a}"); A(f"v_lshrrev_b32 v{b}, 5, {l}"); A(f"v_lshlrev_b32 v{b}, 7, v{b}"); A(f"v_add_u32 v{a}, v{a}, v{b}")
        A(f"s_lshr_b32 s{S_T0}, s{S_J}, 3"); A(f"s_mul_i32 s{S_T0}, s{S_T0}, 384"); A(f"s_add_u32 s{S_T0}, s{S_T0}, 256"); A(f"s_add_u32 s{S_T0}, s{S_T0}, s{S_XROW}")
        A(f"buffer_load_dword a{A_JUNK}, v{a}, {sr(R_X)}, s{S_T0} offen")
        A(f"v_and_b32 v{a}, 31, {l}"); A(f"v_lshlrev_b32 v{a}, 10, v{a}"); A(f"v_mov_b32 v{b}, {OOB}"); A(f"v_cmp_gt_u32 vcc, 32, {l}"); A(f"v_cndmask_b32 v{a}, v{b}, v{a}, vcc")
        A(f"buffer_load_dword a{A_JUNK}, v{a}, {sr(R_X)}, s{S_T0} offen offset:256")
        return L
    def touch_setup_w(self):
        l=f"v{V_L}"; L=[]; A=lambda x: L.append(mk(x))
        A(f"v_lshlrev_b32 v{V_TCH}, 7, {l}"); A(f"v_mov_b32 v{V_T}, {OOB}"); A(f"v_cmp_gt_u32 vcc, 16, {l}"); A(f"v_cndmask_b32 v{V_TCH}, v{V_T}, v{V_TCH}, vcc")
        A(f"s_lshr_b32 s{S_TW}, s2, 3"); A(f"s_lshl_b32 s{S_TW}, s{S_TW}, 2"); A(f"s_add_u32 s{S_TW}, s{S_TW}, s{S_W}"); A(f"s_mul_i32 s{S_TW}, s{S_TW}, {112*128}")
        for k,v in enumerate((f"s{P_WD}",f"s{P_WD+1}",1792*1024,"0x20000")): A(f"s_mov_b32 s{R_T+k}, {v}")
        return L
    def touch_setup_c(self):
        L=[]; A=lambda x: L.append(mk(x))
        A(f"s_lshr_b32 s{S_TW}, s2, 3"); A(f"s_lshl_b32 s{S_TW}, s{S_TW}, 2"); A(f"s_add_u32 s{S_TW}, s{S_TW}, s{S_W}")
        A(f"s_cmp_lt_u32 s{S_TW}, 64")
        A(f"s_cselect_b32 s{R_T2}, s{P_CRE}, s{P_CIM}"); A(f"s_cselect_b32 s{R_T2+1}, s{P_CRE+1}, s{P_CIM+1}"); A(f"s_mov_b32 s{R_T2+2}, {512*1024}"); A(f"s_mov_b32 s{R_T2+3}, 0x20000")
        A(f"s_and_b32 s{S_TW}, s{S_TW}, 63"); A(f"s_lshl_b32 s{S_TW}, s{S_TW}, 13")
        return L
    def touch_one(self, R):
        return [mk(f"buffer_load_dword a{A_JUNK}, v{V_TCH}, {sr(R)}, s{S_TW} offen"), mk(f"s_add_u32 s{S_TW}, s{S_TW}, 2048")]
    def touch_a(self):
        l=f"v{V_L}"; a,b=V_T,V_T+1; L=[]; A=lambda x: L.append(mk(x))
        A(f"v_lshlrev_b32 v{a}, 7, {l}"); A(f"v_mov_b32 v{b}, {OOB}"); A(f"v_cmp_gt_u32 vcc, 44, {l}"); A(f"v_cndmask_b32 v{a}, v{b}, v{a}, vcc")
        A(f"s_mul_i32 s{S_T0}, s{S_CB}, {44*128}"); A(f"s_add_u32 s{S_T1}, s{S_T0}, s{S_A0+1}"); A(f"s_add_u32 s{S_T0}, s{S_T0}, s{S_A0}")
        A(f"buffer_load_dword v{V_JUNK}, v{a}, {sr(R_WS)}, s{S_T0} offen sc1")
        A(f"buffer_load_dword v{V_JUNK}, v{a}, {sr(R_WS)}, s{S_T1} offen sc1")
        return L

    def code_prefetch(self):
        p=self.p
        p.I(f"s_getpc_b64 s[{R_T2}:{R_T2+1}]\nL_pc:")
        p.I(f"s_mov_b32 s{R_T2+2}, L_codeend-L_pc\ns_mov_b32 s{R_T2+3}, 0x20000")
        p.I(f"s_bfe_u32 s{S_T0}, s2, 0x30003\ns_lshl_b32 s{S_T0}, s{S_T0}, 12\nv_lshlrev_b32 v{V_T}, 4, v0")
        p.I(f"buffer_load_dwordx4 a[252:255], v{V_T}, {sr(R_T2)}, s{S_T0} offen")

    def flag_op(self, op, idx_sgpr_expr_items, valsrc, R=R_DBG):
        L=[mk(x) for x in idx_sgpr_expr_items]
        L+=[mk(f"s_cmp_eq_u32 s{S_W}, 0"), mk(f"s_cselect_b32 s{S_T0}, s{S_T0}, {OOB}"),
            mk(f"v_mov_b32 v{V_U+6}, {OOB}"), mk(f"v_mov_b32 v{V_U+7}, s{S_T0}"), mk(f"v_cmp_eq_u32 vcc, 0, v{V_L}"),
            mk(f"v_cndmask_b32 v{V_U+6}, v{V_U+6}, v{V_U+7}, vcc"), mk(f"v_mov_b32 v{V_U+7}, {valsrc}"),
            mk(f"buffer_atomic_{op} v{V_U+7}, v{V_U+6}, {sr(R)}, 0 offen sc1")]
        return L

    @staticmethod
    def cfma(dst, c, x, add):
        return [mk(f"v_pk_fma_f32 {vr(dst,2)}, {vr(c,2)}, {vr(x,2)}, {vr(add,2)} op_sel:[0,0,0] op_sel_hi:[0,1,1]"),
                mk(f"v_pk_fma_f32 {vr(dst,2)}, {vr(c,2)}, {vr(x,2)}, {vr(dst,2)} op_sel:[1,1,0] op_sel_hi:[1,0,1] neg_lo:[1,0,0]")]
    @staticmethod
    def scan_step(nre, nim, lam, hre, him, ure, uim):
        return [mk(f"v_pk_fma_f32 {vr(nre,2)}, {vr(lam,2)}, {vr(hre,2)}, {vr(ure,2)} op_sel:[0,0,0] op_sel_hi:[0,1,1]"),
                mk(f"v_pk_fma_f32 {vr(nim,2)}, {vr(lam,2)}, {vr(him,2)}, {vr(uim,2)} op_sel:[0,0,0] op_sel_hi:[0,1,1]"),
                mk(f"v_pk_fma_f32 {vr(nre,2)}, {vr(lam,2)}, {vr(him,2)}, {vr(nre,2)} op_sel:[1,0,0] op_sel_hi:[1,1,1] neg_lo:[1,0,0] neg_hi:[1,0,0]"),
                mk(f"v_pk_fma_f32 {vr(nim,2)}, {vr(lam,2)}, {vr(hre,2)}, {vr(nim,2)} op_sel:[1,0,0] op_sel_hi:[1,1,1]")]

    @staticmethod
    def cfma_s(dst, c, x, add):
        return [mk(f"v_fma_f32 v{dst}, v{c}, v{x}, v{add}"), mk(f"v_fma_f32 v{dst+1}, v{c}, v{x+1}, v{add+1}"),
                mk(f"v_fma_f32 v{dst}, -v{c+1}, v{x+1}, v{dst}"), mk(f"v_fma_f32 v{dst+1}, v{c+1}, v{x}, v{dst+1}")]
    @staticmethod
    def scan_step_s(nre, nim, lam, hre, him, ure, uim):
        L=[]
        for e in range(2): L+=[mk(f"v_fma_f32 v{nre+e}, v{lam}, v{hre+e}, v{ure+e}"), mk(f"v_fma_f32 v{nim+e}, v{lam}, v{him+e}, v{uim+e}")]
        for e in range(2): L+=[mk(f"v_fma_f32 v{nre+e}, -v{lam+1}, v{him+e}, v{nre+e}"), mk(f"v_fma_f32 v{nim+e}, v{lam+1}, v{hre+e}, v{nim+e}")]
        return L
    def pass1(self):
        lam=V_U; l8=26
        L=[mk(f"v_accvgpr_read_b32 v{lam}, a{A_K}"), mk(f"v_accvgpr_read_b32 v{lam+1}, a{A_K+1}"),
           mk(f"v_accvgpr_read_b32 v{l8}, a{A_K+12}"), mk(f"v_accvgpr_read_b32 v{l8+1}, a{A_K+13}")]
        L+=[mk(f"v_lshrrev_b32 v{V_U+2}, 5, v{V_L}"), mk(f"s_lshl_b32 s{S_T0}, s{S_W}, 1"), mk(f"v_add_u32 v{V_U+2}, s{S_T0}, v{V_U+2}"), mk(f"v_lshlrev_b32 v{V_U+2}, 8, v{V_U+2}"),
            mk(f"v_and_b32 v{V_U+3}, 31, v{V_L}"), mk(f"v_lshlrev_b32 v{V_U+3}, 3, v{V_U+3}"), mk(f"v_add_u32 v{V_U+3}, {L_EX}, v{V_U+3}"), mk(f"v_add_u32 v{V_U+2}, v{V_U+2}, v{V_U+3}")]
        e=[(232,234),(236,238)]
        cr,ci=V_SRE,V_SIM
        for i in range(1,8):
            nr,ni=e[i&1]
            L+=self.scan_step_s(nr,ni,lam,cr,ci,V_SRE+2*i,V_SIM+2*i)
            cr,ci=nr,ni
        L+=[mk(f"v_fma_f32 v28, v{l8}, v{cr}, v{cr+1}"), mk(f"v_fma_f32 v29, v{l8}, v{ci}, v{ci+1}"),
            mk(f"v_fma_f32 v28, -v{l8+1}, v{ci}, v28"), mk(f"v_fma_f32 v29, v{l8+1}, v{cr}, v29"),
            mk(f"v_accvgpr_write_b32 a{A_K+14}, v{cr}"), mk(f"v_accvgpr_write_b32 a{A_K+15}, v{ci}")]
        w=mk(f"ds_write_b64 v{V_U+2}, v[28:29]"); L.append(w)
        return L,w

    def exchange(self):
        ER=V_U+3
        l16=V_U
        L=[mk(f"v_accvgpr_read_b32 v{l16}, a{A_K+2}"), mk(f"v_accvgpr_read_b32 v{l16+1}, a{A_K+3}")]
        P,N=26,28; S2=V_U+4
        rd=[mk(f"ds_read_b64 {vr(P,2)}, v{ER}")]+[mk(f"ds_read_b64 {vr(232+2*(k-1),2)}, v{ER} offset:{256*k}") for k in range(1,8)]
        L+=rd
        L+=[mk(f"v_mov_b32 v{S2}, 0"), mk(f"v_mov_b32 v{S2+1}, 0"), mk(f"s_lshl_b32 s{S_GT}, s{S_W}, 1"), mk(f"s_add_u32 s{S_PO}, s{S_GT}, 1"), Wait(lgkm=rd[:2])]
        for k in range(1,8):
            L+=[mk(f"s_cmp_eq_u32 s{S_GT}, {k}"), mk(f"s_cselect_b32 s{S_M0}, -1, 0"), mk(f"s_cmp_eq_u32 s{S_PO}, {k}"), mk(f"s_cselect_b32 s{S_M0+1}, -1, 0"), Wait(lgkm=rd[k]),
                mk(f"v_cndmask_b32 v{S2}, v{S2}, v{P}, s[{S_M0}:{S_M0+1}]"), mk(f"v_cndmask_b32 v{S2+1}, v{S2+1}, v{P+1}, s[{S_M0}:{S_M0+1}]")]
            L+=self.cfma_s(N,l16,P,232+2*(k-1))
            P,N=N,P
        L+=[mk(f"v_accvgpr_write_b32 a{A_KS+10}, v{S2}"), mk(f"v_accvgpr_write_b32 a{A_KS+11}, v{S2+1}"),
            mk(f"v_accvgpr_mov_b32 a{A_KS+2}, a{A_K+14}"), mk(f"v_accvgpr_mov_b32 a{A_KS+3}, a{A_K+15}")]
        Er,Ei=30,31
        L+=[mk(f"s_lshl_b32 s{S_T0}, s{S_C}, 12"), mk(f"s_lshl_b32 s{S_T1}, s{S_J}, 8"), mk(f"s_add_u32 s{S_T0}, s{S_T0}, s{S_T1}"), mk(f"s_add_u32 s{S_T0}, s{S_T0}, {WS_E}"),
            mk(f"s_cmp_eq_u32 s{S_W}, 0"), mk(f"s_cselect_b32 s{S_T0}, s{S_T0}, {OOB}"),
            mk(f"v_lshlrev_b32 v{Er}, 3, v{V_L}"), mk(f"v_add_u32 v{Er}, s{S_T0}, v{Er}"), mk(f"v_mov_b32 v{Ei}, {OOB}"), mk(f"v_cmp_gt_u32 vcc, 32, v{V_L}"),
            mk(f"v_cndmask_b32 v{Er}, v{Ei}, v{Er}, vcc")]
        st=mk(f"buffer_store_dwordx2 {vr(P,2)}, v{Er}, {sr(R_WS)}, 0 offen sc1"); L.append(st)
        return L,st

    def poll_issue(self, vdst, off_items, R=R_DBG, w0only=False, off2=None):
        L=[mk(x) for x in off_items]
        if w0only:
            L+=[mk(f"s_cmp_eq_u32 s{S_W}, 0"), mk(f"s_cselect_b32 s{S_T0}, s{S_T0}, {OOB}")]
            if off2: L+=[mk(f"s_cselect_b32 s{S_T1}, s{S_T1}, {OOB}")]
        L+=[mk(f"v_mov_b32 v{vdst+1}, {OOB}"), mk(f"v_mov_b32 v{V_U+7}, s{S_T0}"), mk(f"v_cmp_eq_u32 vcc, 0, v{V_L}"), mk(f"v_cndmask_b32 v{vdst+1}, v{vdst+1}, v{V_U+7}, vcc")]
        if off2:
            L+=[mk(f"v_mov_b32 v{V_U+7}, s{S_T1}"), mk(f"v_cmp_eq_u32 vcc, 1, v{V_L}"), mk(f"v_cndmask_b32 v{vdst+1}, v{vdst+1}, v{V_U+7}, vcc")]
        t=mk(f"buffer_load_dword v{vdst}, v{vdst+1}, {sr(R)}, 0 offen sc1"); L.append(t)
        return L,t
    def poll_check(self, name, vdst, tok, cond_items, R=R_DBG, w0only=False, two=False, sleep=1):
        sid={"g":20,"e":24,"a":28,"s":24}[name]
        rl=[f"v_readlane_b32 s{S_T0}, v{vdst}, 0"]+([f"v_readlane_b32 s{S_T1}, v{vdst}, 1"] if two else [])
        L=self.stamp(sid)+([mk(f"s_mov_b32 s{S_CNT}, 0")] if self.o.get("stamps") else [])+[Wait(vm=tok)]+self.stamp(sid+1)
        if w0only: L+=[mk(f"s_cmp_lg_u32 s{S_W}, 0"), mk(f"s_cbranch_scc1 L_back_{name}")]
        L+=[mk(x) for x in rl]+[mk(x) for x in cond_items]
        L+=[mk(f"s_cbranch_scc0 L_slow_{name}"), mk(f"L_back_{name}:")]+self.stamp(sid+2)+self.note(sid+3,S_CNT)
        S=[f"L_slow_{name}:", f"s_mov_b32 s{S_CNT}, 0", f"L_loop_{name}:"]+([f"s_sleep {sleep}"] if sleep else [])+[
           f"buffer_load_dword v{vdst}, v{vdst+1}, {sr(R)}, 0 offen sc1", "s_waitcnt vmcnt(0)"]+rl+["s_nop 1",
           f"s_add_u32 s{S_CNT}, s{S_CNT}, 1", f"s_cmp_gt_u32 s{S_CNT}, 100000", f"s_cbranch_scc1 L_back_{name}"]
        S+=cond_items+[f"s_cbranch_scc1 L_back_{name}", f"s_branch L_loop_{name}"]
        self.slow+=S
        return L

    def gpoll_issue(self, vdst):
        L=[mk(f"v_lshlrev_b32 v{vdst+1}, 4, v{V_L}"), mk(f"v_mov_b32 v{V_U+7}, {OOB}"), mk(f"s_cmp_eq_u32 s{S_W}, 0"), mk(f"s_cselect_b32 s{S_T0}, 16, 0"),
           mk(f"v_cmp_gt_u32 vcc, s{S_T0}, v{V_L}"), mk(f"v_cndmask_b32 v{vdst+1}, v{V_U+7}, v{vdst+1}, vcc")]
        t=mk(f"buffer_load_dword v{vdst}, v{vdst+1}, {sr(R_DBG)}, 0 offen sc1"); L.append(t)
        return L,t
    def gpoll_check(self, vdst, tok):
        cond=[f"v_cmp_eq_u32 vcc, 16, v{vdst}", f"s_lshl_b32 s{S_T0}, 2, s{S_C}", f"s_sub_u32 s{S_T0}, s{S_T0}, 1", f"s_lshl_b32 s{S_T1}, 1, s{S_C3}", f"s_or_b32 s{S_T0}, s{S_T0}, s{S_T1}",
              f"s_and_b32 s{S_T1}, vcc_lo, s{S_T0}", f"s_cmp_eq_u32 s{S_T1}, s{S_T0}"]
        L=self.stamp(20)+[Wait(vm=tok)]+self.stamp(21)+[mk(f"s_cmp_lg_u32 s{S_W}, 0"), mk("s_cbranch_scc1 L_back_g")]+[mk(x) for x in cond]
        L+=[mk("s_cbranch_scc0 L_slow_g"), mk("L_back_g:")]+self.stamp(22)
        self.slow+=["L_slow_g:", f"s_mov_b32 s{S_CNT}, 0", "L_loop_g:", "s_sleep 1", f"buffer_load_dword v{vdst}, v{vdst+1}, {sr(R_DBG)}, 0 offen sc1", "s_waitcnt vmcnt(0)",
                    f"s_add_u32 s{S_CNT}, s{S_CNT}, 1", f"s_cmp_gt_u32 s{S_CNT}, 100000", "s_cbranch_scc1 L_back_g", cond[0], "s_nop 4"]+cond[1:]+["s_cbranch_scc1 L_back_g", "s_branch L_loop_g"]
        return L

    def g_loads(self):
        L=[]
        T=V_T
        L+=[mk(f"v_bfe_u32 v{T}, v{V_L}, 2, 1"), mk(f"v_lshlrev_b32 v{T}, 4, v{T}"), mk(f"v_bfe_u32 v{T+1}, v{V_L}, 3, 2"), mk(f"v_lshlrev_b32 v{T+1}, 2, v{T+1}"),
            mk(f"v_add_u32 v{T}, v{T}, v{T+1}"), mk(f"v_and_b32 v{T+1}, 3, v{V_L}"), mk(f"v_add_u32 v{T}, v{T}, v{T+1}"), mk(f"v_lshlrev_b32 v{T}, 2, v{T}"),
            mk(f"s_lshl_b32 s{S_T0}, s{S_C}, 2"), mk(f"s_add_u32 s{S_T0}, s{S_T0}, s{S_W}"), mk(f"s_lshl_b32 s{S_T0}, s{S_T0}, 7"), mk(f"s_add_u32 s{S_T0}, s{S_T0}, {WS_G}")]
        t0=mk(f"buffer_load_dword v14, v{T}, {sr(R_WS)}, s{S_T0} offen sc1"); L.append(t0)
        L+=[mk(f"v_lshrrev_b32 v{T+1}, 5, v{V_L}"), mk(f"v_lshlrev_b32 v{T+1}, 6, v{T+1}")]
        toks=[t0]
        for i,r in enumerate((2,6,10,18)):
            t=mk(f"buffer_load_dwordx4 {vr(r,4)}, v{T+1}, {sr(R_WS)}, s{S_T0} offen offset:{16*i} sc1"); L.append(t); toks.append(t)
        return L,toks
    GREG=[2,3,4,5,6,7,8,9,10,11,12,13,18,19,20,21]

    EREG=[36,38,40,42,44,46,52,54,56,58,60,62,68,70,72]
    def e_loads(self):
        T=V_T
        L=[mk(f"s_add_u32 s{R_T2}, s{P_WS}, {WS_E}"), mk(f"s_addc_u32 s{R_T2+1}, s{P_WS+1}, 0"), mk(f"s_mov_b32 s{R_T2+2}, 65536"), mk(f"s_mov_b32 s{R_T2+3}, 0x20000"),
           mk(f"v_and_b32 v{T+2}, 31, v{V_L}"), mk(f"v_lshlrev_b32 v{T+2}, 3, v{T+2}"), mk(f"s_lshl_b32 s{S_T1}, s{S_J}, 8"), mk(f"s_lshl_b32 s{S_T0}, s{S_C}, 12"),
           mk(f"s_add_u32 s{S_T0}, s{S_T0}, s{S_T1}"), mk(f"s_sub_u32 s{S_T0}, s{S_T0}, 4096"), mk(f"v_add_u32 v{T+2}, s{S_T0}, v{T+2}")]
        toks=[]
        for m in range(15):
            a=T+2+(m&1); b=T+2+((m+1)&1)
            t=mk(f"buffer_load_dwordx2 {ar(2*m,2)}, v{a}, {sr(R_T2)}, 0 offen sc1"); L.append(t); toks.append(t)
            if m<14: L.append(mk(f"v_subrev_u32 v{b}, 4096, v{a}"))
        self.e_reload=[mk(x.text) for x in L]
        return L,toks

    def ffn_epilogue(self, gtok):
        pre=[]; st=[]
        KC=V_WF; IR=V_WF+2; T=V_WF+4
        k0=-2.0*0.7978845608028654*self.LOG2E
        pre+=[Wait(vm=gtok), mk(f"v_sub_f32 v{IR}, 1.0, v14"), mk(self.fconst(S_T0,k0*0.044715)), mk(f"v_cvt_pk_bf16_f32 v{IR}, v{IR}, v{IR}"), mk(f"v_mov_b32 v{KC}, s{S_T0}"),
             mk(f"v_lshlrev_b32 v{IR}, 16, v{IR}"), mk(self.fconst(S_T0,k0)), mk(f"v_rcp_f32 v{IR}, v{IR}"), mk(f"v_mov_b32 v{KC+1}, s{S_T0}"),
             mk(self.fconst(S_T0,1e30)), mk(f"v_min_f32 v{IR}, s{S_T0}, v{IR}")]
        pre+=[mk(f"s_lshl_b32 s{S_AO}, s{S_C}, 2"), mk(f"s_add_u32 s{S_AO}, s{S_AO}, s{S_W}"), mk(f"s_mul_i32 s{S_AO}, s{S_AO}, 176"), mk(f"s_mul_i32 s{S_T0}, s{S_J}, 11"),
            mk(f"s_add_u32 s{S_AO}, s{S_AO}, s{S_T0}"), mk(f"s_lshl_b32 s{S_AO}, s{S_AO}, 10"), mk(f"v_lshlrev_b32 v{V_AO}, 4, v{V_L}")]
        tiles=[]
        for i in range(7):
            L=[]
            a=V_ACC+16*i
            o=T+16*(i&1)
            Z,Pd=o,o+8
            pr=[(a,a+4),(a+2,a+6),(a+8,a+12),(a+10,a+14)]
            for e,(g,u) in enumerate(pr): L.append(mk(f"v_pk_mul_f32 {vr(Z+2*e,2)}, {vr(g,2)}, {vr(g,2)}"))
            for e,(g,u) in enumerate(pr): L.append(mk(f"v_pk_fma_f32 {vr(Z+2*e,2)}, {vr(Z+2*e,2)}, {vr(KC,2)}, {vr(KC,2)} op_sel:[0,0,1] op_sel_hi:[1,0,1]"))
            for e,(g,u) in enumerate(pr): L.append(mk(f"v_pk_mul_f32 {vr(Z+2*e,2)}, {vr(g,2)}, {vr(Z+2*e,2)}"))
            for e,(g,u) in enumerate(pr):
                L.append(mk(f"v_exp_f32 v{Z+2*e}, v{Z+2*e}")); L.append(mk(f"v_exp_f32 v{Z+2*e+1}, v{Z+2*e+1}")); L.append(mk(f"v_pk_mul_f32 {vr(Pd+2*e,2)}, {vr(g,2)}, {vr(u,2)}"))
            for e in range(4): L.append(mk(f"v_pk_fma_f32 {vr(Z+2*e,2)}, {vr(Z+2*e,2)}, {vr(IR,2)}, {vr(IR,2)} op_sel:[0,0,0] op_sel_hi:[1,0,0]"))
            for e in range(8): L.append(mk(f"v_rcp_f32 v{Z+e}, v{Z+e}"))
            for e in range(4): L.append(mk(f"v_pk_mul_f32 {vr(Pd+2*e,2)}, {vr(Pd+2*e,2)}, {vr(Z+2*e,2)}"))
            for e in range(4): L.append(mk(f"v_cvt_pk_bf16_f32 v{a+e}, v{Pd+2*e}, v{Pd+2*e+1}"))
            tiles.append(L)
        S=[]
        for i in range(7):
            t=mk(f"buffer_store_dwordx4 {vr(V_ACC+16*i,4)}, v{V_AO}, {sr(R_WS)}, s{S_AO} offen offset:{1024*(i&3)} sc1"); st.append(t)
            S.append(([mk(f"s_add_u32 s{S_AO}, s{S_AO}, 4096")] if i==4 else [])+[t])
        return pre,tiles,S,st

    def ssm_epilogue(self, etok, gtok, tbase_items):
        L=[]; st=[]
        LAM,Q,S2=176,178,180
        H,N=182,184
        rd=lambda v,a: mk(f"v_accvgpr_read_b32 v{v}, a{a}")
        L+=[rd(Q,A_KS+4), rd(Q+1,A_KS+5), rd(LAM,A_KS), rd(LAM+1,A_KS+1), rd(S2,A_KS+8), rd(S2+1,A_KS+9), Wait(vm=etok)]
        L+=[rd(H,28), rd(H+1,29)]
        cur=H
        EB=[204,206]
        for m in range(13,-1,-1):
            e=EB[m&1]
            L+=[rd(e,2*m), rd(e+1,2*m+1)]
            L+=self.cfma(N,Q,cur,e); cur=N; H,N=N,H
        Hin=cur
        L+=[mk(f"v_cmp_u_f32 vcc, v{Hin}, v{Hin}"), mk("s_nop 3"), mk("s_cmp_eq_u64 vcc, 0"), mk("s_cbranch_scc0 L_slow_e"), mk("L_back_e:")]
        S=["L_slow_e:", f"s_mov_b32 s{S_CNT}, 0", "L_loop_e:"]
        S+=[x.text for x in self.e_reload]
        S+=["s_waitcnt vmcnt(0)", f"v_accvgpr_read_b32 v{Hin}, a28", f"v_accvgpr_read_b32 v{Hin+1}, a29"]
        cur2=Hin; oth=H if Hin==N else N
        seq=[]; a_,b_=(Hin,oth)
        regs=[]; c=Hin
        for m in range(13,-1,-1):
            e=EB[m&1]; d=oth if c==Hin else Hin
            S+=[f"v_accvgpr_read_b32 v{e}, a{2*m}", f"v_accvgpr_read_b32 v{e+1}, a{2*m+1}", "s_nop 0"]+[x.text for x in self.cfma(d,Q,c,e)]
            c=d
        assert c==Hin
        S+=[f"v_cmp_u_f32 vcc, v{Hin}, v{Hin}", f"s_add_u32 s{S_CNT}, s{S_CNT}, 1", "s_nop 3", f"s_cmp_gt_u32 s{S_CNT}, 20000", "s_cbranch_scc1 L_back_e", "s_cmp_eq_u64 vcc, 0", "s_cbranch_scc1 L_back_e", "s_branch L_loop_e"]
        self.slow+=S
        W,X=186,188
        L+=[rd(Q,A_KS+6), rd(Q+1,A_KS+7), rd(W,A_KS+10), rd(W+1,A_KS+11)]
        L+=self.cfma(X,Q,Hin,W)
        L+=[rd(Q,A_KS+12), rd(Q+1,A_KS+13), rd(W,A_KS+2), rd(W+1,A_KS+3)]
        L+=self.cfma(190,Q,X,W)
        HR,HI,NR,NI=192,194,196,198
        L+=[mk(f"v_mov_b32 v{HR}, v{X}"), mk(f"v_mov_b32 v{HR+1}, v190"), mk(f"v_mov_b32 v{HI}, v{X+1}"), mk(f"v_mov_b32 v{HI+1}, v191"), Wait(vm=gtok)]
        PK=214
        OR,OI=200,202
        for i in range(8):
            g=self.GREG[2*i]
            L+=self.scan_step(NR,NI,LAM,HR,HI,V_SRE+2*i,V_SIM+2*i)
            HR,HI,NR,NI=NR,NI,HR,HI
            L+=[mk(f"v_pk_mul_f32 {vr(OR,2)}, {vr(S2,2)}, {vr(HR,2)} op_sel:[0,0] op_sel_hi:[0,1]"), mk(f"v_pk_mul_f32 {vr(OI,2)}, {vr(S2,2)}, {vr(HI,2)} op_sel:[0,0] op_sel_hi:[0,1]"),
                mk(f"v_pk_fma_f32 {vr(OR,2)}, {vr(S2,2)}, {vr(HI,2)}, {vr(OR,2)} op_sel:[1,0,0] op_sel_hi:[1,1,1] neg_lo:[1,0,0] neg_hi:[1,0,0]"),
                mk(f"v_pk_fma_f32 {vr(OI,2)}, {vr(S2,2)}, {vr(HR,2)}, {vr(OI,2)} op_sel:[1,0,0] op_sel_hi:[1,1,1]"),
                mk(f"v_pk_mul_f32 {vr(OR,2)}, {vr(g,2)}, {vr(OR,2)}"), mk(f"v_pk_mul_f32 {vr(OI,2)}, {vr(g,2)}, {vr(OI,2)} neg_lo:[1,0] neg_hi:[1,0]"),
                mk(f"v_cvt_pk_bf16_f32 v{PK+i}, v{OR}, v{OR+1}"), mk(f"v_cvt_pk_bf16_f32 v{PK+8+i}, v{OI}, v{OI+1}")]
        TW,TW2,TR0,TR1=204,205,206,207
        L+=[rd(TW,A_PAT+12), rd(TW2,A_PAT+13), rd(TR0,A_PAT+14), rd(TR1,A_PAT+15)]
        wr=[]
        for m in range(2):
            wr.append(mk(f"ds_write_b128 v{TW}, {vr(PK+8*m,4)} offset:{2048*m}")); wr.append(mk(f"ds_write_b128 v{TW2}, {vr(PK+8*m+4,4)} offset:{2048*m}"))
        L+=wr
        L+=[Wait(lgkm=wr)]
        OUT=V_SRE
        rd=[]
        for b in range(4):
            m,mu=b>>1,b&1
            rd.append(mk(f"ds_read_b64_tr_b16 {vr(OUT+4*b,2)}, v{TR0} offset:{2048*m+1024*mu}")); rd.append(mk(f"ds_read_b64_tr_b16 {vr(OUT+4*b+2,2)}, v{TR1} offset:{2048*m+1024*mu}"))
        L+=rd
        L+=[mk(f"s_add_u32 s{S_AO}, s{S_AO}, 3072")]
        for b in range(4):
            t=mk(f"buffer_store_dwordx4 {vr(OUT+4*b,4)}, v{V_AO}, {sr(R_WS)}, s{S_AO} offen offset:{1024*b} sc1")
            L+=[Wait(lgkm=rd[2*b:2*b+2]), t]; st.append(t)
        self.t_reads=rd
        return L,st

    def copy_consts(self):
        return [mk(f"v_accvgpr_mov_b32 a{A_KS+i}, a{A_K+i}") for i in (0,1,4,5,6,7,8,9,12,13)]

    def blk_areg(self,b):
        if not self.o.get("tail"): return 64+8*b
        return 192+8*b if b<8 else (64+8*(b-8) if b<16 else 128+8*(b-16))
    def p3_patterns_pro(self):
        l=f"v{V_L}"; a,b,c,d=32,33,34,35
        L=[]; A=lambda x: L.append(mk(x))
        W=lambda k,v: A(f"v_accvgpr_write_b32 a{A_PAT+k}, v{v}")
        A(f"s_mul_i32 s{S_RG}, s{S_W}, {REGION}")
        base=S_RG
        if self.o.get("tail"):
            A(f"s_lshl_b32 s{S_T3}, s{S_W}, 14"); A(f"s_add_u32 s{S_T3}, s{S_T3}, {L_B}"); base=S_T3
        A(f"v_lshrrev_b32 v{a}, 3, {l}"); A(f"v_lshlrev_b32 v{a}, 10, v{a}"); A(f"v_bfe_u32 v{b}, {l}, 4, 1"); A(f"v_lshlrev_b32 v{b}, 2, v{b}"); A(f"v_and_b32 v{c}, 7, {l}")
        A(f"v_xor_b32 v{b}, v{b}, v{c}"); A(f"v_lshl_add_u32 v{d}, v{b}, 4, v{a}"); W(0,d); A(f"v_add_u32 v{d}, 7168, v{d}"); W(1,d)
        A(f"v_lshrrev_b32 v{b}, 4, {l}"); A(f"v_xor_b32 v{b}, v{b}, v{c}"); A(f"v_xor_b32 v{c}, 4, v{b}"); A(f"v_lshlrev_b32 v{b}, 4, v{b}"); A(f"v_lshlrev_b32 v{c}, 4, v{c}")
        for q in range(4):
            A(f"v_add_u32 v{d}, v{a}, v{b if q%2==0 else c}")
            if q: A(f"v_add_u32 v{d}, {7168*q}, v{d}")
            W(2+q,d)
        A(f"v_lshrrev_b32 v{a}, 5, {l}"); A(f"v_lshlrev_b32 v{a}, 2, v{a}"); A(f"v_bfe_u32 v{b}, {l}, 2, 2"); A(f"v_add_u32 v{a}, v{a}, v{b}"); A(f"v_lshlrev_b32 v{a}, 7, v{a}")
        A(f"v_bfe_u32 v{b}, {l}, 4, 1"); A(f"v_lshl_add_u32 v{a}, v{b}, 5, v{a}"); A(f"v_and_b32 v{b}, 3, {l}"); A(f"v_lshl_add_u32 v{a}, v{b}, 3, v{a}")
        A(f"v_add_u32 v{a}, s{base}, v{a}"); A(f"v_bfe_u32 v{b}, {l}, 3, 1"); A(f"v_lshlrev_b32 v{b}, 6, v{b}"); A(f"s_and_b32 s{S_T2}, s{S_W}, 1"); A(f"s_lshl_b32 s{S_T2}, s{S_T2}, 6"); A(f"v_xor_b32 v{b}, s{S_T2}, v{b}")
        A(f"v_add_u32 v{d}, v{a}, v{b}"); W(6,d); A(f"v_xor_b32 v{b}, 64, v{b}"); A(f"v_add_u32 v{d}, v{a}, v{b}"); W(7,d)
        A(f"v_and_b32 v{a}, 31, {l}"); A(f"v_lshlrev_b32 v{a}, 7, v{a}"); A(f"v_add_u32 v{a}, s{S_RG}, v{a}"); A(f"v_bfe_u32 v{b}, {l}, 1, 3"); A(f"v_lshrrev_b32 v{c}, 5, {l}"); A(f"v_xor_b32 v{b}, v{b}, v{c}")
        for s in range(4):
            A(f"v_xor_b32 v{c}, {2*s}, v{b}"); A(f"v_lshl_add_u32 v{d}, v{c}, 4, v{a}"); W(8+s,d)
        A(f"s_add_u32 s{S_T2}, s{S_RG}, 36864")
        A(f"v_and_b32 v{a}, 31, {l}"); A(f"v_lshlrev_b32 v{a}, 6, v{a}"); A(f"v_add_u32 v{a}, s{S_T2}, v{a}"); A(f"v_bfe_u32 v{b}, {l}, 1, 2"); A(f"v_lshrrev_b32 v{c}, 5, {l}"); A(f"v_lshlrev_b32 v{c}, 1, v{c}")
        A(f"v_xor_b32 v{c}, v{c}, v{b}"); A(f"v_lshl_add_u32 v{d}, v{c}, 4, v{a}"); W(12,d); A(f"v_xor_b32 v{c}, 1, v{c}"); A(f"v_lshl_add_u32 v{d}, v{c}, 4, v{a}"); W(13,d)
        A(f"v_lshrrev_b32 v{a}, 5, {l}"); A(f"v_lshlrev_b32 v{a}, 3, v{a}"); A(f"v_bfe_u32 v{b}, {l}, 2, 2"); A(f"v_add_u32 v{a}, v{a}, v{b}"); A(f"v_lshlrev_b32 v{a}, 6, v{a}")
        A(f"v_and_b32 v{b}, 1, {l}"); A(f"v_lshlrev_b32 v{b}, 1, v{b}"); A(f"v_bfe_u32 v{c}, {l}, 4, 1"); A(f"v_add_u32 v{b}, v{b}, v{c}"); A(f"v_bfe_u32 v{c}, {l}, 3, 1"); A(f"v_xor_b32 v{b}, v{b}, v{c}")
        A(f"v_bfe_u32 v{c}, {l}, 1, 1"); A(f"v_lshl_add_u32 v{a}, v{c}, 3, v{a}"); A(f"v_add_u32 v{a}, s{S_T2}, v{a}")
        A(f"v_lshl_add_u32 v{d}, v{b}, 4, v{a}"); W(14,d); A(f"v_xor_b32 v{b}, 2, v{b}"); A(f"v_lshl_add_u32 v{d}, v{b}, 4, v{a}"); A(f"v_add_u32 v{d}, 256, v{d}"); W(15,d)
        A(f"s_mul_i32 s{S_FO}, s{S_W}, {448*1024}"); A(f"s_lshl_b32 s{S_T2}, s{S_CB}, 7"); A(f"s_add_u32 s{S_FO}, s{S_FO}, s{S_T2}")
        A(f"s_lshl_b32 s{S_CO}, s{S_CB}, 16"); A(f"s_lshl_b32 s{S_T2}, s{S_W}, 8"); A(f"s_add_u32 s{S_CO}, s{S_CO}, s{S_T2}")
        A(f"s_and_b32 s{S_T2}, s{S_W}, 1"); A(f"s_lshl_b32 s{S_T2}, s{S_T2}, 15"); A(f"s_xor_b32 s{S_CO1}, s{S_T2}, 0x8000"); A(f"s_add_u32 s{S_CO1}, s{S_CO1}, s{S_CO}"); A(f"s_add_u32 s{S_CO}, s{S_CO}, s{S_T2}")
        return L
    def p3_patterns1(self):
        L=[mk(f"v_accvgpr_read_b32 v{V_FD+i}, a{A_PAT+i}") for i in range(2)]+[mk(f"v_accvgpr_read_b32 v{V_FR+i}, a{A_PAT+6+i}") for i in range(2)]
        if self.o.get("tail"): L+=[mk(f"s_lshl_b32 s{S_TB}, s{S_W}, 14"), mk(f"s_add_u32 s{S_TB}, s{S_TB}, {L_B}")]
        for k,v in enumerate((f"s{P_WD}",f"s{P_WD+1}",1792*1024,"0x20000")): L.append(mk(f"s_mov_b32 s{R_T+k}, {v}"))
        return L
    def p3_patterns2(self):
        L=[mk(f"v_accvgpr_read_b32 v{V_CD+i}, a{A_PAT+2+i}") for i in range(4)]+[mk(f"v_accvgpr_read_b32 v{V_CR[i]}, a{A_PAT+8+i}") for i in range(4)]
        for reg,ptr,size in ((R_B,P_CRE,512*1024),(R_W,P_CIM,512*1024)):
            L+=[mk(f"s_mov_b32 s{reg}, s{ptr}"), mk(f"s_mov_b32 s{reg+1}, s{ptr+1}"), mk(f"s_mov_b32 s{reg+2}, {size}"), mk(f"s_mov_b32 s{reg+3}, 0x20000")]
        return L
    def p3_rebase_after(self, rd2):
        return [Wait(lgkm=sum(rd2.values(),[]))]+self.p3_rebase()
    def p3_rebase(self):
        return [mk(f"s_sub_u32 s{S_T0}, s{S_RG}, s{S_TB}"), mk(f"v_add_u32 v{V_FR}, s{S_T0}, v{V_FR}"), mk(f"v_add_u32 v{V_FR+1}, s{S_T0}, v{V_FR+1}")]
    def p3_dma_f(self, b, slot, tail=False):
        L=[mk(f"s_add_u32 m0, s{S_TB if tail else S_RG}, {slot*2048}"), mk(f"s_add_u32 s{S_PO}, s{S_FO}, {b*16*1024}")]
        t=[mk(f"buffer_load_dwordx4 v{V_FD+i}, {sr(R_T)}, s{S_PO} offen offset:{1024*i} lds") for i in range(2)]
        if b in self.o.get("skip_f",()): t=[mk("s_nop 0"),mk("s_nop 0")]
        return L+t,t
    def p3_dma_c(self, k):
        mat,ph,ct=k>>2,(k>>1)&1,k&1
        L=[mk(f"s_add_u32 m0, s{S_RG}, {k*4096}"), mk(f"s_add_u32 s{S_PO}, s{S_CO1 if ct else S_CO}, {ph*128}")]
        t=[mk(f"buffer_load_dwordx4 v{V_CD+q}, {sr(R_W if mat else R_B)}, s{S_PO} offen offset:{1024*q} lds") for q in range(4)]
        if k in self.o.get("skip_c",()): t=[mk("s_nop 0") for q in range(4)]
        return L+t,t
    def p3_rd_f(self, slot, dst, agpr):
        R=ar if agpr else vr
        return [mk(f"ds_read_b64_tr_b16 {R(dst+4*ct+2*q,2)}, v{V_FR+ct} offset:{slot*2048+1024*q}") for ct in range(2) for q in range(2)]
    def p3_rd_c(self, mat, ph, s, dst):
        return [mk(f"ds_read_b128 {vr(dst+4*ct,4)}, v{V_CR[s]} offset:{(4*mat+2*ph+ct)*4096}") for ct in range(2)]

    @staticmethod
    def cost(it):
        if isinstance(it,Wait): return 2
        if it.kind=="label": return 0
        if it.op in TRANS: return 8
        if it.kind=="vmem": return 16
        if it.op.startswith("v_pk_"): return 4
        return 4
    def merge_time(self, stream, ev, t=0):
        out=[]; i=0
        for it in stream:
            sccuse = (not isinstance(it,Wait)) and (it.kind=="label" or it.op.startswith("s_cselect") or it.op.startswith("s_cbranch_scc") or it.op.startswith("s_addc"))
            while (not sccuse) and i<len(ev) and ev[i][0]<=t:
                for x in ev[i][1]:
                    out.append(x); t+=self.cost(x)
                i+=1
            out.append(it); t+=self.cost(it)
        return out,ev[i:],t

    def phase3(self, tok):
        p=self.p
        ACC=32; RING=96; D=self.o.get('ring',12); BJ=96+8*D
        if self.o.get("tail"):
            order=[("f",b) for b in range(24)]+[("c",0,0,s) for s in range(4)]+[("c",0,1,s) for s in range(4)]+[("f",b) for b in range(24,28)]+[("c",1,0,s) for s in range(4)]+[("c",1,1,s) for s in range(4)]
        else: order=[("f",b) for b in range(24)]+[("c",0,1,s) for s in range(4)]+[("c",1,0,s) for s in range(4)]+[("c",1,1,s) for s in range(4)]+[("f",b) for b in range(24,28)]+[("c",0,0,s) for s in range(4)]
        pf={}
        first_use={-2:0,-1:4,0:8,1:12,2:16,3:20}
        rest=self.p3_rest; base=4-len(rest)
        for k,G in enumerate(rest):
            st0=self.o.get("pf0",0)+2*k
            a,b=split(G,2); pf[st0]=pf.get(st0,[])+a; pf[st0+1]=pf.get(st0+1,[])+b
            assert st0+1 < first_use[base+k]
        def krel(st):
            if st[0]=="f": return 11*(st[1]//7)+st[1]%7
            _,mat,ph,s=st
            return 11*(2*ph+(s>>1))+7+2*mat+(s&1)
        gstate={"k":None,"n":0}
        PA,PB=8,18
        def aload(i):
            st=order[i]; r=RING+8*(i%D); k=krel(st)
            if not self.o.get("ga_global",0):
                L=[mk(f"s_add_u32 s{S_T2}, s{S_A0}, {k*1024}"), mk(f"s_add_u32 s{S_T3}, s{S_A0+1}, {k*1024}")]
                t=[mk(f"buffer_load_dwordx4 {vr(r+4*e,4)}, v{V_AO}, {sr(R_WS)}, s{S_T2+e} offen sc1") for e in range(2)]
                return [L[0],t[0],L[1],t[1]],t
            L=[]
            if gstate["k"] is None or not (0<=k-gstate["k"]<=3):
                gstate["k"]=k
                L+=[mk(f"s_add_u32 s{PA}, s6, {k*1024}"), mk(f"s_addc_u32 s{PA+1}, s7, 0"), mk(f"s_add_u32 s{PB}, s30, {k*1024}"), mk(f"s_addc_u32 s{PB+1}, s31, 0")]
            off=(k-gstate["k"])*1024
            t=[mk(f"global_load_dwordx4 {vr(r+4*e,4)}, v{V_AO}, s[{(PA,PB)[e]}:{(PA,PB)[e]+1}] offset:{off} sc1") for e in range(2)]
            return L+t,t
        at={}
        for i in range(D):
            L,at[i]=aload(i); p.add(L)
        for G in self.p3_wait: p.add(G)
        fl=self.final_loads()
        xt=self.xterm_items()
        brd={}
        def bread(i):
            st=order[i]; dst=BJ+8*(i%3)
            if st[0]=="f":
                b=st[1]
                if b<24: return None
                slot=b-8
                return [Wait(vm=tok[("f",b)])]+self.p3_rd_f(slot,dst,False)
            _,mat,ph,s=st
            w=[Wait(vm=tok[("c",4*mat+2*ph+ct)]) for ct in range(2)]
            return w+self.p3_rd_c(mat,ph,s,dst)
        n=len(order)
        x0=self.o.get("xt0",13); xn=8
        xparts=split(xt,xn)
        for i in range(n):
            st=order[i]
            fill=[]
            if i+2<n:
                r=bread(i+2)
                if r: brd[i+2]=[x for x in r if not isinstance(x,Wait)]; fill+=r
            fill+=pf.get(i,[])
            if 2<=i<6: fill+=split(fl,4)[i-2]
            if x0<=i<x0+xn: fill+=xparts[i-x0]
            r=RING+8*(i%D)
            if st[0]=="f" and st[1]<24: B=lambda ct,b=st[1]: ar(self.blk_areg(b)+4*ct,4)
            else: B=lambda ct,i=i: vr(BJ+8*(i%3)+4*ct,4)
            mf=[]
            for tau in range(2):
                for ct in range(2):
                    a=ACC+16*(2*tau+ct)
                    mf.append(mk(f"v_mfma_f32_32x32x16_bf16 {vr(a,16)}, {vr(r+4*tau,4)}, {B(ct)}, {'0' if i==0 else vr(a,16)}"))
            if i==24-D-1: p.add(self.p3_poll2[1])
            if i==max(24-D-1-self.o.get("poll2_lead",6),0): fill+=self.p3_poll2[0]
            p.wait(vm=at[i][0])
            if self.o.get("p3st") and i%8==0: p.add(self.stamp(1 if i==0 else 2+i//8))
            if i in brd: p.wait(lgkm=brd[i])
            k=len(fill); f3=[fill[(k*q)//3:(k*(q+1))//3] for q in range(3)]
            p.add(mf[0]); p.add(f3[0]); p.add(mf[1]); p.add(f3[1])
            p.wait(vm=at[i][1])
            p.add(mf[2]); p.add(f3[2]); p.add(mf[3])
            if i+D<n:
                L,at[i+D]=aload(i+D); p.add(L)

    def a_base(self):
        L=[]; A=lambda x: L.append(mk(x))
        A(f"s_lshl_b32 s{S_A0}, s{S_C3}, 2"); A(f"s_lshl_b32 s{S_T0}, s{S_RH}, 1"); A(f"s_add_u32 s{S_A0}, s{S_A0}, s{S_T0}"); A(f"s_mul_i32 s{S_A0}, s{S_A0}, 176")
        A(f"s_mul_i32 s{S_T0}, s{S_W}, 44"); A(f"s_add_u32 s{S_A0}, s{S_A0}, s{S_T0}"); A(f"s_lshl_b32 s{S_A0}, s{S_A0}, 10")
        A(f"s_lshr_b32 s{S_T0}, s{S_W}, 1"); A(f"s_mul_i32 s{S_T0}, s{S_T0}, {176*1024}"); A(f"s_xor_b32 s{S_T1}, s{S_T0}, {176*1024}")
        A(f"s_add_u32 s{S_A0+1}, s{S_A0}, s{S_T1}"); A(f"s_add_u32 s{S_A0}, s{S_A0}, s{S_T0}")
        if self.o.get("ga_global",0):
            A(f"s_add_u32 s6, s{P_WS}, s{S_A0}"); A(f"s_addc_u32 s7, s{P_WS+1}, 0"); A(f"s_add_u32 s30, s{P_WS}, s{S_A0+1}"); A(f"s_addc_u32 s31, s{P_WS+1}, 0")
        return L

    @staticmethod
    def reg_of_row(rho): return 2*rho if rho<8 else 2*(rho-8)+1
    def final_loads(self):
        L=[]; A=lambda x: L.append(mk(x)) or L[-1]
        XV,GV,DV=2,216,18
        a=V_T
        A(f"s_lshl_b32 s{S_R0}, s{S_C3}, 7"); A(f"s_lshl_b32 s{S_T0}, s{S_RH}, 6"); A(f"s_add_u32 s{S_R0}, s{S_R0}, s{S_T0}"); A(f"s_lshr_b32 s{S_T0}, s{S_W}, 1"); A(f"s_lshl_b32 s{S_T0}, s{S_T0}, 5"); A(f"s_add_u32 s{S_R0}, s{S_R0}, s{S_T0}")
        A(f"s_lshl_b32 s{S_D0}, s{S_CB}, 6"); A(f"s_and_b32 s{S_T0}, s{S_W}, 1"); A(f"s_lshl_b32 s{S_T0}, s{S_T0}, 5"); A(f"s_add_u32 s{S_D0}, s{S_D0}, s{S_T0}")
        A(f"v_lshrrev_b32 v{a}, 5, v{V_L}"); A(f"v_lshlrev_b32 v{a+1}, 6, v{a}"); A(f"s_lshl_b32 s{S_T0}, s{S_R0}, 2"); A(f"s_add_u32 s{S_T0}, s{S_T0}, {WS_G}")
        toks=[]
        for i in range(4): toks.append(A(f"buffer_load_dwordx4 {vr(GV+4*i,4)}, v{a+1}, {sr(R_WS)}, s{S_T0} offen offset:{16*i} sc1"))
        for i,(v) in enumerate((P_DSK,P_DSK+1)): A(f"s_mov_b32 s{R_T2+i}, s{v}")
        A(f"s_mov_b32 s{R_T2+2}, 1024"); A(f"s_mov_b32 s{R_T2+3}, 0x20000")
        A(f"v_and_b32 v{a+2}, 31, v{V_L}"); A(f"v_add_u32 v{a+2}, s{S_D0}, v{a+2}")
        A(f"v_lshlrev_b32 v{V_OO}, 2, v{a+2}"); A(f"v_lshlrev_b32 v{a+2}, 1, v{a+2}")
        toks.append(A(f"buffer_load_ushort v{DV}, v{a+2}, {sr(R_T2)}, 0 offen"))
        A(f"v_lshlrev_b32 v{a}, 14, v{a}"); A(f"v_add_u32 v{a+2}, v{a+2}, v{a}"); A(f"s_lshl_b32 s{S_T0}, s{S_R0}, 10")
        for rho in range(16):
            if rho and rho%4==0: A(f"s_add_u32 s{S_T0}, s{S_T0}, 4096")
            toks.append(A(f"buffer_load_ushort v{XV+self.reg_of_row(rho)}, v{a+2}, {sr(R_X)}, s{S_T0} offen offset:{1024*(rho%4)}"))
        A(f"v_lshl_add_u32 v{V_OO}, v{a}, 1, v{V_OO}")
        self.fin_toks=toks
        return L

    def xterm_items(self):
        XV,GV,DV=2,216,18
        L=[Wait(vm=self.fin_toks), mk(f"v_lshlrev_b32 v{DV}, 16, v{DV}")]
        for r in range(16): L.append(mk(f"v_lshlrev_b32 v{XV+r}, 16, v{XV+r}"))
        for r in range(16): L.append(mk(f"v_mul_f32 v{XV+r}, v{XV+r}, v{DV}"))
        for r in range(0,16,2): L.append(mk(f"v_cvt_pk_bf16_f32 v{XV+r}, v{XV+r}, v{XV+r+1}"))
        for r in range(0,16,2): L+=[mk(f"v_and_b32 v{XV+r+1}, 0xffff0000, v{XV+r}"), mk(f"v_lshlrev_b32 v{XV+r}, 16, v{XV+r}")]
        for r in range(16): L.append(mk(f"v_mul_f32 v{XV+r}, v{XV+r}, v{GV+r}"))
        a=V_T
        L+=[mk(f"v_lshlrev_b32 v{a}, 4, v{V_L}")]
        for k in range(1,4):
            L+=[mk(f"s_xor_b32 s{S_T0}, s{S_W}, {k}"), mk(f"s_mul_i32 s{S_T0}, s{S_T0}, {REGION}"), mk(f"v_add_u32 v{a+k}, s{S_T0}, v{a}")]
        L+=[mk(f"v_add_u32 v{a}, s{S_RG}, v{a}")]
        for k,v in enumerate((f"s{P_OUT}",f"s{P_OUT+1}",2048*2048,"0x20000")): L.append(mk(f"s_mov_b32 s{R_T2+k}, {v}"))
        L+=[mk(f"s_lshl_b32 s{S_R0}, s{S_R0}, 11")]
        return L

    def final(self):
        p=self.p
        ACC=32; XV=2
        a=V_T
        wr=[]
        for k in range(1,4):
            for q in range(4): wr.append(p.I(f"ds_write_b128 v{a}, {vr(ACC+16*k+4*q,4)} offset:{(k-1)*4096+q*1024}"))
        for r in range(0,16,2): p.I(f"v_pk_add_f32 {vr(ACC+r,2)}, {vr(ACC+r,2)}, {vr(XV+r,2)}")
        p.wait(lgkm_all=True); p.I("s_barrier")
        rd=[]
        for k in range(1,4):
            for q in range(4): rd.append(p.I(f"ds_read_b128 {vr(96+16*(k-1)+4*q,4)}, v{a+k} offset:{(k-1)*4096+q*1024}"))
        for k in range(3):
            for q in range(4):
                p.wait(lgkm=rd[4*k+q])
                for r in (4*q,4*q+2): p.I(f"v_pk_add_f32 {vr(ACC+r,2)}, {vr(ACC+r,2)}, {vr(96+16*k+r,2)}")
        fl=self.o.get("out_flags","sc1")
        for rho in range(16):
            if rho and rho%2==0: p.I(f"s_add_u32 s{S_R0}, s{S_R0}, 4096")
            p.I(f"buffer_store_dword v{ACC+self.reg_of_row(rho)}, v{V_OO}, {sr(R_T2)}, s{S_R0} offen offset:{2048*(rho%2)} {fl}")

    def stamp(self, idx):
        if not self.o.get("stamps"): return []
        only=self.o.get("only")
        if only is not None and idx not in only: return []
        L=[mk("s_memrealtime s[100:101]"), mk("s_waitcnt lgkmcnt(0)"), mk(f"v_writelane_b32 v{V_ST}, s100, {idx}")]
        if self.o.get("cyc"): L+=[mk("s_memtime s[100:101]"), mk("s_waitcnt lgkmcnt(0)"), mk(f"v_writelane_b32 v{V_ST}, s100, {idx+16}")]
        return L
    def note(self, idx, sreg):
        if not self.o.get("stamps"): return []
        return [mk("s_nop 0"), mk(f"v_writelane_b32 v{V_ST}, s{sreg}, {idx}")]
    def dump_stamps(self):
        if not self.o.get("stamps"): return
        p=self.p
        p.I(f"s_lshl_b32 s{S_T0}, s2, 2\ns_add_u32 s{S_T0}, s{S_T0}, s{S_W}\ns_lshl_b32 s{S_T0}, s{S_T0}, 8\ns_add_u32 s{S_T0}, s{S_T0}, {WS_DBG}")
        p.I(f"v_lshlrev_b32 v{V_T}, 2, v{V_L}")
        p.I(f"buffer_store_dword v{V_ST}, v{V_T}, {sr(R_WS)}, s{S_T0} offen")
        p.wait(vm_all=True)

    def dump_regs(self, regs, slot_base, agpr=False):
        p=self.p
        n=len(regs)
        p.I(f"s_lshl_b32 s{S_T0}, s2, 2\ns_add_u32 s{S_T0}, s{S_T0}, s{S_W}\ns_mul_i32 s{S_T0}, s{S_T0}, {n*256}\ns_add_u32 s{S_T0}, s{S_T0}, {slot_base}")
        p.I(f"v_lshlrev_b32 v{V_T}, 2, v{V_L}")
        for i,r in enumerate(regs):
            p.I(f"buffer_store_dword {r}, v{V_T}, {sr(R_WS)}, s{S_T0} offen")
            p.I(f"s_add_u32 s{S_T0}, s{S_T0}, 256")
        p.wait(vm_all=True)

    def finish(self):
        p=self.p
        p.I("s_endpgm")
        for x in self.slow: p.I(x)
        p.I("L_exit:\ns_endpgm\nL_codeend:")

    def text(self):
        items,npad,errs=finalize(self.p)
        for e in errs[:20]: print("ERR",e,file=sys.stderr)
        hdr=open("gated_mix__ssm_conv_s5__glu_gated_geglu__prompt.s.ref").read().split("; Override launch")[0]
        out=hdr+"; @launch grid=(256,1,1) block=(256,1,1) lds=163840\n"
        out+='.amdgcn_target "amdgcn-amd-amdhsa--gfx950"\n.text\n'
        out+=f".globl {KNAME}\n.p2align 8\n.type {KNAME},@function\n{KNAME}:\n"
        out+=emit(items)
        out+=f'''.section .rodata,"a"
.p2align 6
.amdhsa_kernel {KNAME}
  .amdhsa_next_free_vgpr 512
  .amdhsa_next_free_sgpr 102
  .amdhsa_accum_offset 256
  .amdhsa_group_segment_fixed_size 0
  .amdhsa_kernarg_size 136
  .amdhsa_user_sgpr_count 2
  .amdhsa_user_sgpr_kernarg_segment_ptr 1
  .amdhsa_system_sgpr_workgroup_id_x 1
.end_amdhsa_kernel
'''
        self.stats=dict(n=len(items),npad=npad,errs=len(errs))
        return out

def cutpt(L,k):
    while k<len(L) and (not isinstance(L[k],Wait)) and (L[k].kind=="label" or L[k].op.startswith("s_cselect") or L[k].op.startswith("s_cbranch") or L[k].op.startswith("s_addc")): k+=1
    return k
def split(L,n):
    k=len(L); c=[0]+[cutpt(L,(k*i)//n) for i in range(1,n)]+[k]; return [L[c[i]:c[i+1]] for i in range(n)]

def build_full(opts=None, stop=None):
    g=Gen(opts=opts); p=g.p; o=g.o
    if o.get("stamps"): p.I(f"v_mov_b32 v{V_ST}, 0")
    p.add(g.stamp(0))
    g.prologue_a()
    ex={}; head={}
    segs=[]; tsegs=[]
    def seg(items,a,b,tag=None):
        items=list(items)
        if tag and tag in o.get("abl",()):
            items=[x for x in items if isinstance(x,Wait) or (not isinstance(x,list) and x.kind in("vmem","ds"))]
        segs.append((items,a,b))
    def addh(key,items): head[key]=head.get(key,[])+list(items)
    F=lambda c,s_: ("F",c,s_)
    S=lambda c,d: ("S",c,d)
    def late():
        G=g.gate_items(); K=g.const_items()
        tp=o.get("touch_p3",1)
        if tp:
            wk=o.get("tw",[(1,1),(1,3),(2,1),(2,2),(3,1),(3,2),(4,1)]); ck=o.get("tc",[(5,0),(5,1),(5,2),(5,3)])
            for (a_,b_) in wk: tsegs.append((g.touch_one(R_T),F(a_,b_),F(a_,b_)))
            tsegs.append((g.touch_setup_c(),F(*ck[0]),F(*ck[0])))
            for (a_,b_) in ck: tsegs.append((g.touch_one(R_T2),F(a_,b_),F(a_,b_)))
        nS=o.get("nS",[2,2,2,2,0,0,0,0])
        z=max(k for k in range(8) if nS[k])-3
        sA=S(2,0) if nS[0]==2 else S(1,0); sB=S(4,0) if nS[0]==2 else S(2,0)
        n3=cutpt(G,len(G)//3); n4=cutpt(G,2*len(G)//3)
        seg(G[:n3],F(0,0),F(0,3),'gate')
        seg(G[n3:n4],sA,F(1,0),'gate')
        seg(G[n4:],F(1,1),F(1,2),'gate')
        addh(F(2,3),[Wait(vm=[g.g_store,g.c_store,g.e_init])])
        half=cutpt(K,len(K)//2)
        seg(K[:half],sB,F(2,1),'const')
        seg(g.flag_op("add",[f"s_lshl_b32 s{S_T0}, s{S_C}, 4"],"1"),F(2,3),F(2,3))
        seg(K[half:],F(2,3),S(7,1),'const')
        Lp,tp_=g.gpoll_issue(23)
        L1,w1=g.pass1()
        seg(L1[:22],F(3+z,0),F(3+z,0),'p1')
        seg(L1[22:48],F(3+z,0),F(3+z,1),'p1')
        seg(L1[48:],F(3+z,1),F(3+z,2),'p1')
        addh(F(3+z,3),[Wait(lgkm=w1)])
        L2,est=g.exchange()
        seg(Lp,F(3+z,3),F(3+z,3))
        c2=cutpt(L2,40); seg(L2[:c2],F(3+z,3),F(4+z,0),'ex')
        seg(L2[c2:],F(4+z,1),F(4+z,2),'ex')
        addh(F(4+z,3),g.gpoll_check(23,tp_))
        Lg,gt=g.g_loads(); g.gt=gt
        seg(g.copy_consts(),F(4+z,3),F(4+z,3))
        seg(Lg,F(5,1) if z==0 else F(4+z,3),F(5,1) if z==0 else F(5+z,0))
        if not o.get("tail"):
            seg(g.p3_patterns1()+g.p3_patterns2(),F(5,3) if z==0 else F(6,1),F(6,2),'pat')
        else:
            seg(g.p3_patterns1(),F(5,1),F(5,1),'pat')
            r1=[]; t1={}
            for b in range(8):
                L,t1[b]=g.p3_dma_f(b,b,tail=True); r1+=L
            r1w=o.get("r1w",((5,1),(5,3))); rdw=o.get("rdw",((6,1),(6,2))); r2w=o.get("r2w",((6,3),(7,1)))
            seg(r1,F(*r1w[0]),F(*r1w[1]))
            seg(g.p3_patterns2(),F(6,0),F(6,0),'pat')
            rd1=sum([g.p3_rd_f(b,g.blk_areg(b),True) for b in range(8)],[])
            seg([Wait(vm=t1[3])]+rd1[:16]+[Wait(vm=t1[7])]+rd1[16:],F(*rdw[0]),F(*rdw[1]))
            r2=[Wait(lgkm=rd1)]; g.t2={}
            for b in range(8,16):
                L,g.t2[b]=g.p3_dma_f(b,b-8,tail=True); r2+=L
            seg(r2,F(*r2w[0]),F(*r2w[1]))
        Le2,et=g.e_loads(); g.et=et
        seg(Le2,F(7,1) if (not o.get('tail') and z==0) else F(7,2),F(7,3))
    g.late=late
    g.late2=lambda: None
    g.segs=segs; g.tsegs=tsegs
    g.ex=ex; g.extra_head=head; g.end_barrier=True
    if o.get("stamps"):
        def st():
            for key,idx in ((("S",0,0),2),(("F",0,0),3),(("S",2,0),4),(("S",4,0),5),(("S",6,0),6),(("F",4,0),7),(("F",7,3),8)):
                head[key]=(g.stamp(idx) if not o.get("p3st") else [])+head.get(key,[])
            if o.get("fine2"):
                k=40
                for key in [S(0,0),S(0,1),S(1,0),S(1,1),F(0,0),F(0,1),F(0,2),F(0,3),S(2,0),S(2,1),S(3,0),S(3,1),F(1,0),F(1,1),F(1,2),F(1,3),S(4,0)]:
                    head[key]=g.stamp(k)+head.get(key,[]); k+=1
            if o.get("fine"):
                k=40
                for ch in range(3,8):
                    for st_ in range(4):
                        head[("F",ch,st_)]=g.stamp(k)+head.get(("F",ch,st_),[]); k+=1
        g.late3=st
    g.phase1(ex)
    p.add(g.stamp(9))
    if o.get("p1only"):
        p.wait(vm_all=True,lgkm_all=True); p.add(g.stamp(15)); g.dump_stamps(); g.finish(); return g
    tok={}
    pre,tiles,Sf,sf=g.ffn_epilogue(g.gt[:1])
    Ls,ss=g.ssm_epilogue(g.et,g.gt[1:],[mk(f"s_add_u32 s{S_T0}, s{S_RG}, 36864")])
    def pub(dw): return g.flag_op("add",[f"s_lshl_b32 s{S_T0}, s{S_C}, 7", f"s_add_u32 s{S_T0}, s{S_T0}, {WS_CNT+4*dw}", f"s_lshr_b32 s{S_K0}, s{S_J}, 2", f"s_lshl_b32 s{S_K0}, s{S_K0}, 3", f"s_lshl_b32 s{S_K0}, 1, s{S_K0}"],f"s{S_K0}",R=R_WS)
    p.I("s_nop 7")
    if o.get("tail"):
        rd2=[]
        for b in range(8,16):
            if b in (8,12): p.wait(vm=g.t2[b+3])
            r=g.p3_rd_f(b-8,g.blk_areg(b),True); rd2+=r; p.add(r)
        g.rd2=rd2
    nA=o.get("nA",0)
    rA=[]
    for b in range(nA):
        L,tok[("f",b)]=g.p3_dma_f(b,b); rA.append(L)
    stream=list(pre)
    for i in range(7):
        stream+=tiles[i]+Sf[i]
        if i==0 and o.get("tail"): stream+=[Wait(lgkm=g.rd2)]+g.p3_rebase()+[mk("s_barrier")]
    evA=[]
    dt=o.get("dtA",75)
    for i,L in enumerate(rA):
        t=o.get("tA0",60)+2*dt*i
        evA+=[(t,L[:3]),(t+dt,L[3:])]
    merged,rest_,t_=g.merge_time(stream,evA)
    p.add(merged)
    g.evA_rest=(rest_,t_)
    if o.get("cyc"): p.add(g.stamp(1))
    cut=[k for k,x in enumerate(Ls) if not isinstance(x,Wait) and x.text.startswith(f"v_accvgpr_read_b32 v204, a{A_PAT+12}")][0]
    if o.get("two",0):
        p.add(Ls[:cut]); p.wait(vm=sf); p.I("s_barrier"); p.add(pub(0)); p.add(Ls[cut:])
        for _,x in g.evA_rest[0]: p.add(x)
    else:
        m2,rest2,_=g.merge_time(Ls,g.evA_rest[0],t=g.evA_rest[1])
        if rest2:
            k=min(i for i,x in enumerate(m2) if x in ss)
            while isinstance(m2[k-1],Wait): k-=1
            m2=m2[:k]+[y for _,x in rest2 for y in x]+m2[k:]
        p.add(m2)
    bytecheck=[f"s_lshl_b32 s{S_T1}, s{S_W}, 3", f"s_lshr_b32 s{S_T0}, s{S_T0}, s{S_T1}", f"s_and_b32 s{S_T0}, s{S_T0}, 0xff", f"s_cmp_eq_u32 s{S_T0}, 4"]
    if o.get("tail"):
        p.add(g.stamp(10))
        p.wait(lgkm=g.t_reads)
        for b in range(16,24):
            L,tok[("f",b)]=g.p3_dma_f(b,b-8); p.add(L)
        p.wait(vm=sf+ss); p.add(g.stamp(11)); p.I("s_barrier")
        p.add(pub(1))
        if not o.get("two",0): p.add(pub(0))
        Lq,tq=g.poll_issue(30,[f"s_lshl_b32 s{S_T0}, s{S_C3}, 7", f"s_add_u32 s{S_T0}, s{S_T0}, {WS_CNT}"],R=R_WS)
        pf_first=o.get("poll_first",0)
        if pf_first==1: p.add(Lq); p.add(g.a_base())
        for b in range(24,28):
            L,tok[("f",b)]=g.p3_dma_f(b,b-8); p.add(L)
        if pf_first==2: p.add(Lq); p.add(g.a_base())
        for k in range(4):
            L,tok[("c",k)]=g.p3_dma_c(k); p.add(L)
        if pf_first==0: p.add(Lq); p.add(g.a_base())
        GX=[Wait(vm=tok[("f",19)])]; rdx=[]
        for b in range(16,24):
            if b==20: GX.append(Wait(vm=tok[("f",23)]))
            r=g.p3_rd_f(b-8,g.blk_areg(b),True); rdx+=r; GX+=r
        GX.append(Wait(lgkm=rdx))
        for k in range(4,8):
            L,tok[("c",k)]=g.p3_dma_c(k); GX+=L
        if o.get("gx_before",1): p.add(GX); Gs=[]
        else: Gs=[GX]
        p.add(g.poll_check("a",30,tq,bytecheck,R=R_WS,sleep=0))
        n_before_check=0; n_after=len(Gs)
    else:
        p.add(g.stamp(10))
        p.wait(lgkm=g.t_reads)
        nb0=max(o.get("nb0",9),nA)
        for b in range(nA,nb0):
            L,tok[("f",b)]=g.p3_dma_f(b,b); p.add(L)
        p.wait(vm=sf+ss); p.add(g.stamp(11)); p.I("s_barrier")
        p.add(pub(1))
        if not o.get("two",0): p.add(pub(0))
        if o.get("fine"): p.add(g.stamp(60))
        Lq,tq=g.poll_issue(30,[f"s_lshl_b32 s{S_T0}, s{S_C3}, 7", f"s_add_u32 s{S_T0}, s{S_T0}, {WS_CNT}"],R=R_WS)
        early=o.get("early_poll",0)
        nb1=max(o.get("nb1",14),nb0)
        for b in range(nb0,nb1):
            L,tok[("f",b)]=g.p3_dma_f(b,b); p.add(L)
        if early: p.add(Lq); p.add(g.a_base())
        for b in range(nb1,20):
            L,tok[("f",b)]=g.p3_dma_f(b,b); p.add(L)
        def group(gi):
            bs=range(4*gi,4*gi+4); L=[Wait(vm=tok[("f",4*gi+3)])]; rd=[]
            for b in bs:
                r=g.p3_rd_f(b if b<20 else b-20,g.blk_areg(b),True); rd+=r; L+=r
            L.append(Wait(lgkm=rd))
            if gi==0:
                for b in range(20,24):
                    l,tok[("f",b)]=g.p3_dma_f(b,b-20); L+=l
            elif gi in (1,2,3):
                for k in (2*gi,2*gi+1):
                    l,tok[("c",k)]=g.p3_dma_c(k); L+=l
            elif gi==5:
                for k in (0,1):
                    l,tok[("c",k)]=g.p3_dma_c(k); L+=l
            return L
        G0=group(0); G1=group(1); G2=group(2); G3=group(3)
        G4=[Wait(vm=tok[("f",19)])]; rd4=[]
        for b in range(16,20):
            r=g.p3_rd_f(b,g.blk_areg(b),True); rd4+=r; G4+=r
        G4.append(Wait(lgkm=rd4))
        for b in range(24,28):
            l,tok[("f",b)]=g.p3_dma_f(b,b-8); G4+=l
        G5=group(5)
        Gs=[G0,G1,G2,G3,G4,G5]
        n_before_check=o.get("gc",2); n_after=o.get("ga",5)
        if not early: p.add(Lq); p.add(g.a_base())
        for x in Gs[:n_before_check]: p.add(x)
        if o.get("fine"): p.add(g.stamp(61))
        bytecheck_=[f"s_lshl_b32 s{S_T1}, s{S_W}, 3", f"s_lshr_b32 s{S_T0}, s{S_T0}, s{S_T1}", f"s_and_b32 s{S_T0}, s{S_T0}, 0xff", f"s_cmp_eq_u32 s{S_T0}, 4"]
        p.add(g.poll_check("a",30,tq,bytecheck,R=R_WS,sleep=0))
    g.p3_wait=Gs[n_before_check:n_after]
    g.p3_rest=Gs[n_after:]
    Lq2,tq2=g.poll_issue(28,[f"s_lshl_b32 s{S_T0}, s{S_C3}, 7", f"s_add_u32 s{S_T0}, s{S_T0}, {WS_CNT+4}"],R=R_WS)
    g.p3_poll2=(Lq2, g.poll_check("s",28,tq2,bytecheck,R=R_WS,sleep=0))
    p.add(g.stamp(12))
    g.phase3(tok)
    p.add(g.stamp(13))
    g.final()
    p.add(g.stamp(14))
    if o.get("stamps"): p.wait(vm_all=True)
    p.add(g.stamp(15))
    g.dump_stamps()
    g.finish()
    return g

if __name__=="__main__":
    opts=eval(sys.argv[2]) if len(sys.argv)>2 else {}
    g=build_full(opts=opts); t=g.text(); open(sys.argv[1] if len(sys.argv)>1 else "full.s","w").write(t); print(g.stats)
```

```python
import sys
from asmb import *

KNAME="gated_mix__ssm_conv_s5__glu_gated_geglu__prompt_kernel"

WS_A=0; WS_E=0xB00000; WS_G=0xB10000; WS_CNT=0xB18000; WS_DBG=0xB20000; WS_SIZE=0x4000000
OOB=0x7ff00000
WSLOT=28928; WUP=14464
L_W=0; L_B=86784; L_X=119552; L_EX=152320; L_GL=154368
P_X,P_LRE,P_LIM,P_BRE,P_BIM,P_CRE,P_CIM,P_LDT=4,6,8,10,12,14,16,18
P_DSK,P_BX,P_WG,P_WU,P_WD,P_GW,P_OUT,P_DBG=20,22,24,26,28,30,32,34
P_WS=36
S_C,S_J,S_W,S_C3,S_RH,S_CB=38,39,40,41,42,43
R_X,R_B,R_W,R_WS,R_DBG,R_T,R_T2=44,48,52,56,60,64,68
S_XO,S_BO,S_WO=72,73,74
S_XROW,S_BROW,S_WROW=75,76,77
S_XM,S_BM,S_WM=78,79,80
S_T0,S_T1,S_T2,S_T3=81,82,83,84
S_GT=85
S_M0=86
S_CNT=88
S_K0=89
S_AO=91
V_AO=22
S_RG,S_FO,S_CO=92,93,94
S_TB,S_PO=6,3
S_A0=96
S_R0,S_D0=98,99
REGION=40960
V_FD=232
V_CD=234
V_FR=238
V_CR=[240,241,242,243]
V_OO=23
V_ST=247
A_JUNK=250
A_PAT=176
V_TCH=0
S_TW=95
S_CO1=90
V_JUNK=24
SGT=[6,7,8,9,18,19,30,31]
A_P3=64
A_KS=48
V_TID,V_L=0,1
V_XG=2
V_BG=6
V_WG=8
V_WA,V_WB=15,16
V_BA=17
V_XA=21
V_T=25
V_ACC=32
V_SRE,V_SIM=144,160
V_WF=176
V_BF=232
V_U=248
A_X=0
A_BF=128
A_K=160

def srd(p, reg, ptr, size):
    p.I(f"s_mov_b32 s{reg}, s{ptr}\ns_mov_b32 s{reg+1}, s{ptr+1}\ns_mov_b32 s{reg+2}, {size}\ns_mov_b32 s{reg+3}, 0x20000")

def sr(r): return f"s[{r}:{r+3}]"
def vr(r,n): return f"v[{r}:{r+n-1}]" if n>1 else f"v{r}"
def ar(r,n): return f"a[{r}:{r+n-1}]" if n>1 else f"a{r}"

class Gen:
    def __init__(self, stop_after=None, opts=None):
        self.p=Prog(); self.stop=stop_after; self.o=opts or {}; self.slow=[]
    def prologue_a(self):
        p=self.p
        p.I("s_cmp_ge_u32 s2, 256\ns_cbranch_scc1 L_exit")
        if self.o.get("cp_first",0): self.code_prefetch(first=True)
        p.I("s_load_dwordx16 s[4:19], s[0:1], 0"); p.I("s_load_dwordx16 s[20:35], s[0:1], 64"); p.I("s_load_dwordx2 s[36:37], s[0:1], 128")
        p.I(f"v_and_b32 v{V_L}, 63, v0\nv_lshrrev_b32 v{V_T}, 6, v0")
        if self.o.get("map",1)==1:
            p.I(f"s_lshr_b32 s{S_C}, s2, 4\ns_and_b32 s{S_J}, s2, 15")
        else:
            p.I(f"s_and_b32 s{S_J}, s2, 3\ns_lshl_b32 s{S_J}, s{S_J}, 2\ns_bfe_u32 s{S_T0}, s2, 0x20003\ns_add_u32 s{S_J}, s{S_J}, s{S_T0}")
            p.I(f"s_bfe_u32 s{S_C}, s2, 0x10002\ns_lshl_b32 s{S_C}, s{S_C}, 3\ns_lshr_b32 s{S_T0}, s2, 5\ns_add_u32 s{S_C}, s{S_C}, s{S_T0}")
        p.I(f"v_readfirstlane_b32 s{S_W}, v{V_T}")
        l=f"v{V_L}"; T=V_T
        p.I(f"v_lshrrev_b32 v{T}, 5, {l}\nv_lshlrev_b32 v{T}, 4, v{T}\nv_bfe_u32 v{T+1}, {l}, 3, 1\nv_lshl_add_u32 v{T}, v{T+1}, 3, v{T}\nv_bfe_u32 v{T+1}, {l}, 4, 1\nv_add_u32 v{T}, v{T}, v{T+1}\nv_lshlrev_b32 v{T}, 10, v{T}")
        p.I(f"v_and_b32 v{T+1}, 7, {l}\nv_lshrrev_b32 v{T+2}, 4, {l}\nv_xor_b32 v{T+3}, v{T+1}, v{T+2}\nv_xor_b32 v{T+4}, 4, v{T+3}")
        p.I(f"v_lshlrev_b32 v{T+3}, 4, v{T+3}\nv_lshlrev_b32 v{T+4}, 4, v{T+4}")
        for q in range(4):
            p.I(f"v_add_u32 v{V_XG+q}, v{T}, v{T+3+(q&1)}")
            if q: p.I(f"v_add_u32 v{V_XG+q}, {1024*q}, v{V_XG+q}")
        p.I(f"v_lshrrev_b32 v{T}, 3, {l}\nv_lshlrev_b32 v{T}, 10, v{T}")
        p.I(f"v_add_u32 v{V_BG}, v{T}, v{T+3}\nv_add_u32 v{V_BG+1}, v{T}, v{T+4}\nv_add_u32 v{V_BG+1}, {7*1024}, v{V_BG+1}")
        p.I(f"s_lshl_b32 s{S_T0}, s{S_W}, 12\ns_add_u32 s{S_XM}, s{S_T0}, {L_X}")
        p.I(f"s_lshl_b32 s{S_T1}, s{S_C}, 2\ns_add_u32 s{S_T1}, s{S_T1}, s{S_W}\ns_lshl_b32 s{S_XROW}, s{S_T1}, 15")
        p.I(f"s_and_b32 s{S_T1}, s{S_W}, 1\ns_lshr_b32 s{S_T2}, s{S_W}, 1")
        p.I(f"s_lshl_b32 s{S_T3}, s{S_J}, 1\ns_add_u32 s{S_T3}, s{S_T3}, s{S_T1}\ns_lshl_b32 s{S_BROW}, s{S_T3}, 14")
        p.I(f"s_lshl_b32 s{S_BM}, s{S_T2}, 12\ns_lshl_b32 s{S_T3}, s{S_T1}, 11\ns_add_u32 s{S_BM}, s{S_BM}, s{S_T3}\ns_add_u32 s{S_BM}, s{S_BM}, {L_B}")
        if self.o.get("hack_align"):
            p.I(f"s_mul_i32 s{S_WROW}, s{S_T1}, {32*3584}\ns_min_u32 s{S_T3}, s{S_J}, 13\ns_lshl_b32 s{S_T3}, s{S_T3}, 8\ns_add_u32 s{S_WROW}, s{S_WROW}, s{S_T3}")
        else:
            p.I(f"s_mul_i32 s{S_WROW}, s{S_T1}, {32*3584}\ns_mul_i32 s{S_T3}, s{S_J}, 224\ns_add_u32 s{S_WROW}, s{S_WROW}, s{S_T3}")
        p.I(f"s_mul_i32 s{S_WM}, s{S_T2}, {WUP}\ns_mul_i32 s{S_T3}, s{S_T1}, 7168\ns_add_u32 s{S_WM}, s{S_WM}, s{S_T3}")
        p.wait(lgkm_all=True)
        srd(p,R_X,P_X,2048*1024)
        p.I(f"s_cmp_eq_u32 s{S_T2}, 0")
        p.I(f"s_cselect_b32 s{R_B}, s{P_BRE}, s{P_BIM}\ns_cselect_b32 s{R_B+1}, s{P_BRE+1}, s{P_BIM+1}\ns_mov_b32 s{R_B+2}, {512*1024}\ns_mov_b32 s{R_B+3}, 0x20000")
        p.I(f"s_cselect_b32 s{R_W}, s{P_WG}, s{P_WU}\ns_cselect_b32 s{R_W+1}, s{P_WG+1}, s{P_WU+1}\ns_mov_b32 s{R_W+2}, {512*3584}\ns_mov_b32 s{R_W+3}, 0x20000")
    def prologue_b(self):
        p=self.p; l=f"v{V_L}"; T=V_T
        p.I(f"s_mov_b32 s{S_T0}, 4682\ns_mov_b32 s{S_T1}, 3584")
        for i in range(7):
            p.I(f"v_add_u32 v{T}, {64*i}, {l}\nv_mul_lo_u32 v{T+1}, v{T}, s{S_T0}\nv_lshrrev_b32 v{T+1}, 16, v{T+1}")
            p.I(f"v_mul_u32_u24 v{T+2}, 14, v{T+1}\nv_sub_u32 v{T+2}, v{T}, v{T+2}\nv_lshlrev_b32 v{T+2}, 4, v{T+2}")
            p.I(f"v_mul_lo_u32 v{T+1}, v{T+1}, s{S_T1}\nv_add_u32 v{V_WG+i}, v{T+1}, v{T+2}")
            if i&3: p.I(f"v_subrev_u32 v{V_WG+i}, {1024*(i&3)}, v{V_WG+i}")
    def prologue_c(self):
        p=self.p; l=f"v{V_L}"; T=V_T
        p.I(f"v_lshrrev_b32 v{T}, 5, {l}\nv_lshlrev_b32 v{T}, 3, v{T}\nv_bfe_u32 v{T+1}, {l}, 2, 2\nv_add_u32 v{T}, v{T}, v{T+1}\nv_mul_u32_u24 v{T}, 224, v{T}")
        p.I(f"v_bfe_u32 v{T+1}, {l}, 1, 1\nv_mul_u32_u24 v{T+1}, {WUP}, v{T+1}\nv_add_u32 v{T}, v{T}, v{T+1}")
        p.I(f"v_bfe_u32 v{T+1}, {l}, 4, 1\nv_lshlrev_b32 v{T+1}, 4, v{T+1}\nv_add_u32 v{T}, v{T}, v{T+1}")
        p.I(f"v_and_b32 v{T+1}, 1, {l}\nv_lshlrev_b32 v{T+1}, 3, v{T+1}\nv_add_u32 v{V_WA}, v{T}, v{T+1}\nv_add_u32 v{V_WB}, {2*WSLOT}, v{V_WA}")
        p.I(f"v_and_b32 v{T}, 31, {l}\nv_lshlrev_b32 v{T+1}, 7, v{T}\nv_bfe_u32 v{T+2}, {l}, 1, 3\nv_lshrrev_b32 v{T+3}, 5, {l}\nv_xor_b32 v{T+2}, v{T+2}, v{T+3}")
        p.I(f"s_lshl_b32 s{S_T0}, s{S_W}, 12\ns_add_u32 s{S_T0}, s{S_T0}, {L_X}")
        for s in range(4):
            p.I(f"v_xor_b32 v{T+3}, {2*s}, v{T+2}\nv_lshlrev_b32 v{T+3}, 4, v{T+3}\nv_add_u32 v{T+3}, v{T+1}, v{T+3}\nv_add_u32 v{V_BA+s}, {L_B}, v{T+3}\nv_add_u32 v{V_XA+s}, s{S_T0}, v{T+3}")
        srd(p,R_WS,P_WS,WS_SIZE); srd(p,R_DBG,P_DBG,256)
        if self.o.get("map",1)==1:
            p.I(f"s_lshr_b32 s{S_T0}, s2, 6\ns_lshl_b32 s{S_T0}, s{S_T0}, 2\ns_bfe_u32 s{S_T1}, s2, 0x20001\ns_add_u32 s{S_C3}, s{S_T0}, s{S_T1}")
            p.I(f"s_and_b32 s{S_RH}, s2, 1\ns_bfe_u32 s{S_CB}, s2, 0x30003")
        else:
            p.I(f"s_bfe_u32 s{S_C3}, s2, 0x10002\ns_lshl_b32 s{S_C3}, s{S_C3}, 3\ns_and_b32 s{S_T0}, s2, 3\ns_lshl_b32 s{S_T0}, s{S_T0}, 1\ns_add_u32 s{S_C3}, s{S_C3}, s{S_T0}\ns_lshr_b32 s{S_T0}, s2, 7\ns_add_u32 s{S_C3}, s{S_C3}, s{S_T0}")
            p.I(f"s_bfe_u32 s{S_RH}, s2, 0x10006\ns_bfe_u32 s{S_CB}, s2, 0x30003")

    def dma_x(self, ch):
        slot=ch&1
        L=[mk(f"s_add_u32 m0, s{S_XM}, {slot*16384}"), mk(f"s_add_u32 s{S_XO}, s{S_XROW}, {ch*128}")]
        toks=[mk(f"buffer_load_dwordx4 v{V_XG+q}, {sr(R_X)}, s{S_XO} offen offset:{1024*q} lds") for q in range(4)]
        return L+toks, toks
    def dma_b(self, ch):
        L=[mk(f"s_add_u32 m0, s{S_BM}, {(ch&3)*8192}"), mk(f"s_add_u32 s{S_BO}, s{S_BROW}, {ch*128}")]
        toks=[mk(f"buffer_load_dwordx4 v{V_BG+i}, {sr(R_B)}, s{S_BO} offen offset:{1024*i} lds") for i in range(2)]
        return L+toks, toks
    def dma_w(self, ch):
        slot=ch%3
        L=[mk(f"s_add_u32 m0, s{S_WM}, {slot*WSLOT}"), mk(f"s_add_u32 s{S_WO}, s{S_WROW}, {ch*64*3584}")]
        toks=[]
        for i in range(7):
            if i==4: L.append(mk(f"s_add_u32 m0, s{S_WM}, {slot*WSLOT+4096}"))
            t=mk(f"buffer_load_dwordx4 v{V_WG+i}, {sr(R_W)}, s{S_WO} offen offset:{1024*(i&3)} lds"); toks.append(t); L.append(t)
        return L,toks
    def rd_x(self, ch):
        return [mk(f"ds_read_b128 {ar(A_X+16*ch+4*s,4)}, v{V_XA+s} offset:{(ch&1)*16384}") for s in range(4)]
    def rd_b(self, ch, d, bset):
        base=(ch&3)*8192
        L=[]
        for e in range(2):
            for m in range(2):
                L.append(mk(f"ds_read_b128 {ar(A_BF+16*bset+8*e+4*m,4)}, v{V_BA+2*d+e} offset:{base+4096*m}"))
        return L
    def rd_w(self, ch, s, wset):
        slot=ch%3; va=V_WB if slot==2 else V_WA; base=0 if slot==2 else slot*WSLOT
        L=[]
        for i in range(7):
            for q in range(2):
                d=V_WF+28*wset+4*i+2*q
                L.append(mk(f"ds_read_b64_tr_b16 {vr(d,2)}, v{va} offset:{base+(16*s+4*q)*224+32*i}"))
        return L
    def mf_s(self, ch, d, bset):
        L=[]
        for e in range(2):
            s=2*d+e
            x=ar(A_X+16*ch+4*s,4)
            first=(ch==0 and s==0)
            for m,a in enumerate((V_SRE,V_SIM)):
                L.append(mk(f"v_mfma_f32_32x32x16_bf16 {vr(a,16)}, {x}, {ar(A_BF+16*bset+8*e+4*m,4)}, {'0' if first else vr(a,16)}"))
        return L
    def mf_f(self, ch, s, wset):
        x=ar(A_X+16*ch+4*s,4)
        first=(ch==0 and s==0)
        return [mk(f"v_mfma_f32_32x32x16_bf16 {vr(V_ACC+16*i,16)}, {vr(V_WF+28*wset+4*i,4)}, {x}, {'0' if first else vr(V_ACC+16*i,16)}") for i in range(7)]

    def phase1(self, extra):
        p=self.p
        X={};B={};W={}
        def issue(lst):
            for kind,ch in lst:
                L,t={"x":self.dma_x,"b":self.dma_b,"w":self.dma_w}[kind](ch); p.add(L); {"x":X,"b":B,"w":W}[kind][ch]=t
        fs=lambda i: p.add(self.stamp(i)) if self.o.get("fine") else None
        fs(32)
        w0_late=self.o.get("w0_late",1)
        for tokn in self.o.get("pro","x0,b0,sm,x1,b1,pb,pc,pp,cp,ts,tw").split(","):
            if tokn[0] in "xbw" and tokn[1:].isdigit(): issue([(tokn[0],int(tokn[1:]))]); w0_late = 0 if tokn=="w0" else w0_late
            elif tokn=="sm": self.small_loads()
            elif tokn=="pb": self.prologue_b()
            elif tokn=="pc": self.prologue_c()
            elif tokn=="cp":
                if not self.o.get("nocodepf"): self.code_prefetch()
            elif tokn=="pp": p.add(self.p3_patterns_pro())
            elif tokn=="ts":
                if self.o.get("touch_p3",1): p.add(self.touch_setup_w())
            elif tokn=="tw": p.add(self.touch_w())
            elif tokn=="ta": p.add(self.touch_w_rows(0,4))
            elif tokn=="t2": p.add(self.touch_w_rows(64,2))
            elif tokn=="tb": p.add(self.touch_w_rows(128,12))
            elif tokn=="tB": p.add(self.touch_b())
            elif tokn=="mx": p.add(self.touch_mall("x"))
            elif tokn=="md": p.add(self.touch_mall("d"))
            else: raise ValueError(tokn)
        fs(36)
        self.late(); self.late2()
        if hasattr(self,"late3"): self.late3()
        if not self.o.get("cyc"): p.add(self.stamp(1))
        nS=self.o.get("nS",[2,2,2,2,0,0,0,0])
        groups=[]; c0=0
        for g in range(8):
            groups.append(list(range(c0,c0+nS[g]))); c0+=nS[g]
        assert c0==8
        steps=[]
        for g in range(8):
            for ch in groups[g]:
                for d in range(2): steps.append(("S",ch,d))
            for s in range(4): steps.append(("F",g,s))
        setof={}; cnt={"S":0,"F":0}
        for st in steps:
            setof[st]=cnt[st[0]]&1; cnt[st[0]]+=1
        reads={}
        for st in steps:
            k,ch,s=st
            reads[st]=self.rd_b(ch,s,setof[st]) if k=="S" else self.rd_w(ch,s,setof[st])
        xr={ch:self.rd_x(ch) for ch in range(8)}
        rfill={st:[] for st in steps}
        fill={st:[] for st in steps}
        head={st:[] for st in steps}
        for i,st in enumerate(steps[:-1]):
            nx=steps[i+1]
            if st[0]=="S" and nx[0]=="F":
                rfill[steps[i-1]]+=reads[nx][:6]; rfill[st]+=reads[nx][6:]
            else: rfill[st]=reads[nx]+rfill[st]
        if nS[0]==2:
            p.wait(vm=X[0]+B[0]); p.I("s_barrier")
            p.add(xr[0][0:2]); p.add(reads[steps[0]][:2]); p.add(xr[0][2:]); p.add(reads[steps[0]][2:])
            if w0_late:
                L,W[0]=self.dma_w(0); fill[("S",0,0)]+=L
            if self.o.get("tb_late"): fill[self.o["tb_late"]]+=self.touch_w_rows(128,12,a=30,b=31,s0=S_T2,s1=S_T3)
            L,B[2]=self.dma_b(2); fill[("S",0,0)]+=L
            L,B[3]=self.dma_b(3); fill[("S",1,0)]+=L
            L,W[1]=self.dma_w(1); fill[("S",1,1)]+=L[:6]; w1b=L[6:]
            head[("S",0,1)]+=[Wait(vm=X[1]+B[1]), mk("s_barrier")]
            rfill[("S",0,1)]=xr[1][0:2]+rfill[("S",0,1)]+xr[1][2:]
            L,X[2]=self.dma_x(2); fill[("S",0,1)]+=[Wait(lgkm=xr[0])]+L
            L,X[3]=self.dma_x(3); fill[("S",1,1)]+=[Wait(lgkm=xr[1])]+L
            head[("S",1,0)]+=[Wait(vm=W[0]), mk("s_barrier")]
            fill[("F",0,0)]+=w1b
            L,W[2]=self.dma_w(2); fill[("F",0,1)]+=L[:6]; fill[("F",0,2)]+=L[6:]
            xissued=4; bissued=4
        else:
            assert nS[0]==1 and 0 in W
            p.wait(vm=X[0]+B[0]+W[0]); p.I("s_barrier")
            p.add(xr[0][0:2]); p.add(reads[steps[0]][:2]); p.add(xr[0][2:]); p.add(reads[steps[0]][2:])
            late_tw=self.o.get("tw_late")
            L,X[1]=self.dma_x(1); fill[("S",0,0)]+=L
            L,B[1]=self.dma_b(1); fill[("S",0,0)]+=L
            L,W[1]=self.dma_w(1); fill[("S",0,1)]+=L[:6]; fill[("F",0,0)]+=L[6:]
            nxt=2
            L,X[2]=self.dma_x(2); fill[("F",0,0)]+=[Wait(lgkm=xr[0])]+L
            L,B[2]=self.dma_b(2); fill[("F",0,1)]+=L
            L,W[2]=self.dma_w(2); fill[("F",0,1)]+=L[:6]; fill[("F",0,2)]+=L[6:]
            if late_tw: fill[late_tw]+=self.touch_w_rows(192,10,a=30,b=31,s0=S_T2,s1=S_T3)
            xissued=3; bissued=3
        xread={0,1} if nS[0]==2 else {0}
        for g in range(1,8):
            chs=groups[g]; last=("F",g-1,3)
            need=[c for c in chs if c not in xread]
            if need:
                rfill[("F",g-1,1)]+=[Wait(vm=sum([X[c] for c in need],[]))]+sum([xr[c] for c in need],[])
                xread|=set(need)
            head[last]+=[Wait(vm=sum([B[c] for c in chs],[])+W[g], lgkm=reads[last]+sum([xr[c] for c in need],[])), mk("s_barrier")]
            slots_steps=[last]+[("S",c,d) for c in chs for d in range(2)]+[("F",g,0),("F",g,1)]
            k=0
            nxtchs=groups[g+1] if g+1<8 else []
            for c in nxtchs:
                if c>=xissued:
                    L,X[c]=self.dma_x(c); fill[slots_steps[min(k,len(slots_steps)-1)]]+=L; k+=1; xissued=c+1
            for c in nxtchs+(groups[g+2] if g+2<8 and len(nxtchs)<2 and False else []):
                if c>=bissued:
                    L,B[c]=self.dma_b(c); fill[slots_steps[min(k,len(slots_steps)-1)]]+=L; k+=1; bissued=c+1
            if g+2<8:
                L,W[g+2]=self.dma_w(g+2)
                if chs: fill[("F",g,0)]+=L
                else: fill[last]+=L[:6]; fill[("F",g,0)]+=L[6:]
        for k,v in getattr(self,"extra_head",{}).items(): head[k]=list(v)+head[k]
        if getattr(self,"end_barrier",False):
            last=("F",7,3); head[last]+=[Wait(lgkm=reads[last]), mk("s_barrier")]
        self.steps=steps
        gap0={}; mfs={}; ng=0
        for st in steps:
            k,ch,s_=st
            mfs[st]=self.mf_s(ch,s_,setof[st]) if k=="S" else self.mf_f(ch,s_,setof[st])
            gap0[st]=ng; ng+=len(mfs[st])
        slots=[[] for _ in range(ng)]; free=[24.0]*ng
        cost=lambda it: sum(cost(x) for x in it) if isinstance(it,list) else (0 if isinstance(it,Wait) and False else self.cost2(it))
        def put(g,it): slots[g].append(it); free[g]-=cost(it)
        for st in steps:
            if gap0[st]>0: free[gap0[st]-1]-=sum(cost(x) for x in head[st])+4
        for st in steps:
            n=len(mfs[st]); rf=rfill[st]
            per=max(3 if st[0]=="F" else 2, -(-len(rf)//n))
            for t,it in enumerate(rf): put(gap0[st]+min(t//per,n-1),it)
        def atoms(items):
            out=[]
            for it in items:
                glue = out and (not isinstance(it,(Wait,list))) and (it.kind=="label" or it.op.startswith("s_cselect") or it.op.startswith("s_cbranch") or it.op.startswith("s_addc"))
                if glue: out[-1]=(out[-1] if isinstance(out[-1],list) else [out[-1]])+[it]
                else: out.append(it)
            return out
        def spread(items,g0,g1):
            at=atoms(items)
            C=sum(cost(x) for x in at)
            F=[max(free[g],0.0) for g in range(g0,g1)]
            tot=sum(F)
            if C>tot:
                ex_=(C-tot)/(g1-g0); F=[f+ex_ for f in F]; tot=C
            scale=C/tot if tot>0 else 1
            acc=0; g=g0; cap=F[0]*scale if scale<1 and self.o.get("even",0) else F[0]; last=g0
            cum=0
            for it in at:
                c=cost(it)
                while g<g1-1 and cum+c/2>cap:
                    g+=1; cap+=F[g-g0]*(scale if self.o.get("even",0) else 1)
                put(g,it); cum+=c; last=g
            return last
        endgap=lambda st: gap0[st]+len(mfs[st])
        lastg=0
        for st in steps:
            if fill[st]:
                g0=max(gap0[st],lastg); lastg=spread(fill[st],g0,max(endgap(st),g0+1))
        lastg=0
        for (items,a,b) in self.tsegs:
            g0=max(gap0[a],lastg); lastg=spread(items,g0,max(endgap(b),g0+1))
        lastg=0
        for (items,a,b) in self.segs:
            g0=max(gap0[a],lastg); g1=max(endgap(b),g0+1)
            lastg=spread(items,g0,g1)
        for st in steps:
            k,ch,s=st
            p.add(head[st])
            r=reads[st]
            for m,ins in enumerate(mfs[st]):
                if k=="S":
                    if m==0: p.wait(lgkm=r[0:2]+[xr[ch][2*s]])
                    if m==2: p.wait(lgkm=r[2:4]+[xr[ch][2*s+1]])
                else:
                    if m==0: p.wait(lgkm=r[0:6]+[xr[ch][s]])
                    if m==3: p.wait(lgkm=r[6:14])
                p.add(ins)
                p.add(slots[gap0[st]+m])

    def cost2(self,it):
        if isinstance(it,Wait): return 4
        if it.kind=="label": return 0
        if it.op in TRANS: return 8
        if it.kind=="vmem": return self.o.get("vmcost",16)
        return 4

    LOG2E=1.4426950408889634
    def fconst(self, sreg, val):
        import struct
        return f"s_mov_b32 s{sreg}, 0x{struct.unpack('<I',struct.pack('<f',val))[0]:08x}"

    def small_loads(self):
        p=self.p; l=f"v{V_L}"
        srd(p,R_T,P_GW,1024)
        p.I(f"v_lshlrev_b32 v{V_AO}, 4, {l}")
        p.I(f"s_lshl_b32 s{S_T0}, s{S_C}, 7\ns_lshl_b32 s{S_T1}, s{S_J}, 3\ns_add_u32 s{S_T0}, s{S_T0}, s{S_T1}\ns_lshl_b32 s{S_T1}, s{S_W}, 1\ns_add_u32 s{S_GT}, s{S_T0}, s{S_T1}")
        p.I(f"s_lshl_b32 s{S_T0}, s{S_GT}, 10")
        X0,X1,GW=232,236,240
        self.gl=[p.I(f"buffer_load_dwordx4 {vr(X0,4)}, v{V_AO}, {sr(R_X)}, s{S_T0} offen"),
                 p.I(f"buffer_load_dwordx4 {vr(X1,4)}, v{V_AO}, {sr(R_X)}, s{S_T0} offen offset:1024"),
                 p.I(f"buffer_load_dwordx4 {vr(GW,4)}, v{V_AO}, {sr(R_T)}, 0 offen")]
        p.I(f"v_and_b32 v{V_T}, 31, {l}\ns_lshl_b32 s{S_T1}, s{S_J}, 6\nv_lshlrev_b32 v{V_T}, 1, v{V_T}\nv_add_u32 v{V_T}, s{S_T1}, v{V_T}")
        self.kl=[]
        for i,ptr in enumerate((P_LRE,P_LIM,P_LDT)):
            srd(p,R_T2,ptr,1024)
            self.kl.append(p.I(f"buffer_load_ushort v{244+i}, v{V_T}, {sr(R_T2)}, 0 offen"))

    def gate_items(self):
        l=f"v{V_L}"; L=[]; A=lambda x: L.append(mk(x))
        X0,X1,GW=232,236,240
        A0,A1=248,249; u=250
        L.append(Wait(vm=self.gl))
        for i in range(4):
            A(f"v_lshlrev_b32 v{u+2}, 16, v{GW+i}"); A(f"v_and_b32 v{u+3}, 0xffff0000, v{GW+i}")
            for X,Ac in ((X0,A0),(X1,A1)):
                A(f"v_lshlrev_b32 v{u}, 16, v{X+i}"); A(f"v_and_b32 v{u+1}, 0xffff0000, v{X+i}"); A(f"v_mul_f32 v{u}, v{u}, v{u+2}"); A(f"v_mul_f32 v{u+1}, v{u+1}, v{u+3}")
                A(f"v_cvt_pk_bf16_f32 v{X+i}, v{u}, v{u+1}"); A(f"v_lshlrev_b32 v{u}, 16, v{X+i}"); A(f"v_and_b32 v{u+1}, 0xffff0000, v{X+i}")
                if i==0: A(f"v_add_f32 v{Ac}, v{u}, v{u+1}")
                else: A(f"v_add_f32 v{Ac}, v{Ac}, v{u}"); A(f"v_add_f32 v{Ac}, v{Ac}, v{u+1}")
        for sh in (8,4,2,1):
            for Ac in (A0,A1): A(f"v_add_f32_dpp v{Ac}, v{Ac}, v{Ac} row_ror:{sh} row_mask:0xf bank_mask:0xf")
        for Ac,sb in ((A0,0),(A1,4)):
            for q in range(4): A(f"v_readlane_b32 s{SGT[sb+q]}, v{Ac}, {16*q}")
        for Ac,sb in ((A0,0),(A1,4)):
            A(f"v_mov_b32 v{Ac}, s{SGT[sb]}"); A(f"v_add_f32 v{Ac}, s{SGT[sb+1]}, v{Ac}"); A(f"v_add_f32 v{Ac}, s{SGT[sb+2]}, v{Ac}"); A(f"v_add_f32 v{Ac}, s{SGT[sb+3]}, v{Ac}")
        A(f"v_cmp_eq_u32 vcc, 1, {l}"); A(f"v_cndmask_b32 v{A0}, v{A0}, v{A1}, vcc")
        A(f"v_cvt_pk_bf16_f32 v{A0}, v{A0}, v{A0}"); A(f"v_lshlrev_b32 v{A0}, 16, v{A0}")
        A(self.fconst(SGT[0],-self.LOG2E))
        A(f"v_mul_f32 v{A0}, s{SGT[0]}, v{A0}"); A(f"v_exp_f32 v{A0}, v{A0}"); A(f"v_add_f32 v{A0}, 1.0, v{A0}"); A(f"v_rcp_f32 v{A0}, v{A0}")
        A(f"v_cvt_pk_bf16_f32 v{A0}, v{A0}, v{A0}"); A(f"v_lshlrev_b32 v{A0}, 16, v{A0}")
        A(f"v_lshlrev_b32 v{u}, 3, {l}"); A(f"s_lshl_b32 s{SGT[0]}, s{S_C}, 7"); A(f"s_lshr_b32 s{SGT[1]}, s{S_J}, 1"); A(f"s_lshl_b32 s{SGT[1]}, s{SGT[1]}, 4"); A(f"s_add_u32 s{SGT[0]}, s{SGT[0]}, s{SGT[1]}")
        A(f"s_lshl_b32 s{SGT[1]}, s{S_W}, 2"); A(f"s_add_u32 s{SGT[0]}, s{SGT[0]}, s{SGT[1]}"); A(f"s_and_b32 s{SGT[1]}, s{S_J}, 1"); A(f"s_add_u32 s{SGT[0]}, s{SGT[0]}, s{SGT[1]}")
        A(f"s_lshl_b32 s{SGT[0]}, s{SGT[0]}, 2"); A(f"s_add_u32 s{SGT[0]}, s{SGT[0]}, {WS_G}"); A(f"v_add_u32 v{u}, s{SGT[0]}, v{u}")
        A(f"v_mov_b32 v{u+1}, {OOB}"); A(f"v_cmp_gt_u32 vcc, 2, {l}"); A(f"v_cndmask_b32 v{u}, v{u+1}, v{u}, vcc")
        A(f"buffer_store_dword v{A0}, v{u}, {sr(R_WS)}, 0 offen sc1"); self.g_store=L[-1]
        A(f"s_lshl_b32 s{SGT[0]}, s{S_C}, 7"); A(f"s_add_u32 s{SGT[0]}, s{SGT[0]}, {WS_CNT}"); A(f"s_or_b32 s{SGT[1]}, s{S_J}, s{S_W}"); A(f"s_cmp_eq_u32 s{SGT[1]}, 0"); A(f"s_cselect_b32 s{SGT[0]}, s{SGT[0]}, {OOB}")
        A(f"v_mov_b32 v{u}, {OOB}"); A(f"v_mov_b32 v{u+1}, s{SGT[0]}"); A(f"v_cmp_eq_u32 vcc, 0, {l}"); A(f"v_cndmask_b32 v{u}, v{u}, v{u+1}, vcc"); A(f"v_mov_b32 v{u+2}, 0"); A(f"v_mov_b32 v{u+3}, 0")
        A(f"buffer_store_dwordx2 {vr(u+2,2)}, v{u}, {sr(R_WS)}, 0 offen sc1")
        self.c_store=L[-1]
        A(f"s_lshl_b32 s{SGT[0]}, s{S_C}, 12"); A(f"s_lshl_b32 s{SGT[1]}, s{S_J}, 8"); A(f"s_add_u32 s{SGT[0]}, s{SGT[0]}, s{SGT[1]}"); A(f"s_add_u32 s{SGT[0]}, s{SGT[0]}, {WS_E}")
        A(f"s_cmp_eq_u32 s{S_W}, 0"); A(f"s_cselect_b32 s{SGT[0]}, s{SGT[0]}, {OOB}")
        A(f"v_lshlrev_b32 v{u}, 3, {l}"); A(f"v_add_u32 v{u}, s{SGT[0]}, v{u}"); A(f"v_mov_b32 v{u+1}, {OOB}"); A(f"v_cmp_gt_u32 vcc, 32, {l}"); A(f"v_cndmask_b32 v{u}, v{u+1}, v{u}, vcc")
        A(f"v_mov_b32 v{u+2}, -1"); A(f"v_mov_b32 v{u+3}, -1")
        A(f"buffer_store_dwordx2 {vr(u+2,2)}, v{u}, {sr(R_WS)}, 0 offen sc1"); self.e_init=L[-1]
        return L

    def const_items(self):
        l=f"v{V_L}"; L=[]; A=lambda x: L.append(mk(x))
        LR,LI,DT=244,245,246
        AE,AN,SG,M,AG=232,233,234,235,236
        R=238
        C,S=238,239
        L.append(Wait(vm=self.kl))
        A(f"v_lshlrev_b32 v{LR}, 16, v{LR}"); A(f"v_lshlrev_b32 v{LI}, 16, v{LI}"); A(f"v_lshlrev_b32 v{DT}, 16, v{DT}")
        A(self.fconst(SGT[0],self.LOG2E)); A(self.fconst(SGT[1],0.15915494309189535)); A(self.fconst(SGT[2],16.0)); A(self.fconst(SGT[3],128.0))
        A(f"v_mul_f32 v{DT}, s{SGT[0]}, v{DT}"); A(f"v_exp_f32 v{DT}, v{DT}"); A(f"v_lshrrev_b32 v{SG}, 5, {l}"); A(f"v_cvt_pk_bf16_f32 v{DT}, v{DT}, v{DT}"); A(f"v_lshlrev_b32 v{DT}, 16, v{DT}")
        A(f"v_mul_f32 v{AE}, v{DT}, v{LR}"); A(f"v_mul_f32 v{AN}, v{DT}, v{LI}"); A(f"v_mul_f32 v{AE}, s{SGT[0]}, v{AE}"); A(f"v_mul_f32 v{AN}, s{SGT[1]}, v{AN}")
        A(f"s_lshl_b32 s{SGT[4]}, s{S_W}, 1"); A(f"v_add_u32 v{SG}, s{SGT[4]}, v{SG}"); A(f"v_lshlrev_b32 v{SG}, 4, v{SG}"); A(f"v_cvt_f32_u32 v{SG}, v{SG}")
        def cexp(k, mul, keep=None):
            if mul is None: A(f"v_mov_b32 v{M}, v{AE}"); A(f"v_mov_b32 v{AG}, v{AN}")
            else: A(f"v_mul_f32 v{M}, {mul}, v{AE}"); A(f"v_mul_f32 v{AG}, {mul}, v{AN}")
            A(f"v_exp_f32 v{M}, v{M}"); A(f"v_fract_f32 v{AG}, v{AG}"); A(f"v_cos_f32 v{C}, v{AG}"); A(f"v_sin_f32 v{S}, v{AG}"); A("s_nop 0")
            A(f"v_mul_f32 v{C}, v{M}, v{C}"); A(f"v_mul_f32 v{S}, v{M}, v{S}")
            A(f"v_accvgpr_write_b32 a{A_K+k}, v{C}"); A(f"v_accvgpr_write_b32 a{A_K+k+1}, v{S}")
        A(self.fconst(SGT[5],8.0))
        cexp(2,f"s{SGT[2]}"); cexp(4,f"s{SGT[3]}"); cexp(6,f"v{SG}"); cexp(12,f"s{SGT[5]}"); cexp(0,None)
        NR,DEN,u2=235,236,240
        A(f"v_add_f32 v{NR}, -1.0, v{C}"); A(f"v_mul_f32 v{DEN}, v{LR}, v{LR}"); A(f"v_fmac_f32 v{DEN}, v{LI}, v{LI}"); A(f"v_rcp_f32 v{DEN}, v{DEN}")
        A(f"v_mul_f32 v{u2}, v{NR}, v{LR}"); A(f"v_fmac_f32 v{u2}, v{S}, v{LI}"); A(f"v_mul_f32 v{u2+1}, v{S}, v{LR}"); A(f"v_fma_f32 v{u2+1}, -v{NR}, v{LI}, v{u2+1}")
        A(f"v_add_f32 v{DEN}, v{DEN}, v{DEN}"); A(f"v_mul_f32 v{u2}, v{u2}, v{DEN}"); A(f"v_mul_f32 v{u2+1}, v{u2+1}, v{DEN}")
        A(f"v_accvgpr_write_b32 a{A_K+8}, v{u2}"); A(f"v_accvgpr_write_b32 a{A_K+9}, v{u2+1}")
        return L

    def touch(self, items_addr, R, soff, vreg):
        return items_addr+[mk(f"buffer_load_dword a{A_JUNK}, v{vreg}, {sr(R)}, {soff} offen")]
    def touch_w(self):
        l=f"v{V_L}"; a,b=V_T,V_T+1; L=[]; A=lambda x: L.append(mk(x))
        A(f"v_lshrrev_b32 v{a}, 2, {l}"); A(f"v_mul_u32_u24 v{a}, 3584, v{a}"); A(f"v_and_b32 v{b}, 3, {l}"); A(f"v_cmp_eq_u32 vcc, 3, v{b}"); A(f"v_lshlrev_b32 v{b}, 7, v{b}"); A(f"v_add_u32 v{a}, v{a}, v{b}")
        A(f"v_mov_b32 v{b}, {OOB}"); A(f"v_cndmask_b32 v{a}, v{a}, v{b}, vcc")
        A(f"s_lshl_b32 s{S_T0}, s{S_C}, 1"); A(f"s_and_b32 s{S_T1}, s{S_W}, 1"); A(f"s_add_u32 s{S_T0}, s{S_T0}, s{S_T1}"); A(f"s_mul_i32 s{S_T0}, s{S_T0}, {16*3584}")
        A(f"s_mul_i32 s{S_T1}, s{S_J}, 224"); A(f"s_and_b32 s{S_T1}, s{S_T1}, 0xffffff80"); A(f"s_add_u32 s{S_T0}, s{S_T0}, s{S_T1}")
        if self.o.get("map",1)==2:
            A(f"s_and_b32 s{S_T0}, s{S_C}, 7"); A(f"s_lshl_b32 s{S_T0}, s{S_T0}, 1"); A(f"s_and_b32 s{S_T2}, s{S_W}, 1"); A(f"s_add_u32 s{S_T0}, s{S_T0}, s{S_T2}"); A(f"s_mul_i32 s{S_T0}, s{S_T0}, {32*3584}"); A(f"s_add_u32 s{S_T0}, s{S_T0}, s{S_T1}")
            A(f"buffer_load_dword a{A_JUNK}, v{a}, {sr(R_W)}, s{S_T0} offen")
            if self.o.get("tw2",1):
                A(f"s_add_u32 s{S_T0}, s{S_T0}, {16*3584}")
                A(f"buffer_load_dword a{A_JUNK}, v{a}, {sr(R_W)}, s{S_T0} offen")
            return L
        A(f"buffer_load_dword a{A_JUNK}, v{a}, {sr(R_W)}, s{S_T0} offen")
        if not self.o.get("touch_b",1): return L
        A(f"v_and_b32 v{a}, 7, {l}"); A(f"v_lshlrev_b32 v{a}, 7, v{a}")
        A(f"s_lshl_b32 s{S_T0}, s{S_J}, 4"); A(f"s_add_u32 s{S_T0}, s{S_T0}, s{S_C}"); A(f"s_lshl_b32 s{S_T0}, s{S_T0}, 1"); A(f"s_and_b32 s{S_T1}, s{S_W}, 1"); A(f"s_add_u32 s{S_T0}, s{S_T0}, s{S_T1}"); A(f"s_lshl_b32 s{S_T0}, s{S_T0}, 10")
        A(f"buffer_load_dword a{A_JUNK}, v{a}, {sr(R_B)}, s{S_T0} offen")
        return L
    def touch_w_rows(self, r0, nrows_per_wave, a=V_T, b=V_T+1, s0=S_T0, s1=S_T1):
        l=f"v{V_L}"; L=[]; A=lambda x: L.append(mk(x))
        A(f"v_lshrrev_b32 v{a}, 2, {l}"); A(f"v_and_b32 v{b}, 3, {l}"); A(f"v_cmp_eq_u32 vcc, 3, v{b}"); A(f"v_lshlrev_b32 v{b}, 7, v{b}")
        A(f"v_cmp_le_u32 s[{S_M0}:{S_M0+1}], {nrows_per_wave}, v{a}"); A(f"v_mul_u32_u24 v{a}, 3584, v{a}"); A(f"v_add_u32 v{a}, v{a}, v{b}")
        A(f"s_or_b64 vcc, vcc, s[{S_M0}:{S_M0+1}]"); A(f"v_mov_b32 v{b}, {OOB}"); A(f"v_cndmask_b32 v{a}, v{a}, v{b}, vcc")
        A(f"s_lshl_b32 s{s0}, s{S_C}, 1"); A(f"s_and_b32 s{s1}, s{S_W}, 1"); A(f"s_add_u32 s{s0}, s{s0}, s{s1}"); A(f"s_mul_i32 s{s0}, s{s0}, {nrows_per_wave*3584}")
        A(f"s_mul_i32 s{s1}, s{S_J}, 224"); A(f"s_and_b32 s{s1}, s{s1}, 0xffffff80"); A(f"s_add_u32 s{s0}, s{s0}, s{s1}"); A(f"s_add_u32 s{s0}, s{s0}, {r0*3584}")
        A(f"buffer_load_dword a{A_JUNK}, v{a}, {sr(R_W)}, s{s0} offen")
        return L
    def touch_b(self):
        l=f"v{V_L}"; a=V_T; L=[]; A=lambda x: L.append(mk(x))
        A(f"v_and_b32 v{a}, 7, {l}"); A(f"v_lshlrev_b32 v{a}, 7, v{a}")
        A(f"s_lshl_b32 s{S_T0}, s{S_J}, 4"); A(f"s_add_u32 s{S_T0}, s{S_T0}, s{S_C}"); A(f"s_lshl_b32 s{S_T0}, s{S_T0}, 1"); A(f"s_and_b32 s{S_T1}, s{S_W}, 1"); A(f"s_add_u32 s{S_T0}, s{S_T0}, s{S_T1}"); A(f"s_lshl_b32 s{S_T0}, s{S_T0}, 10")
        A(f"buffer_load_dword a{A_JUNK}, v{a}, {sr(R_B)}, s{S_T0} offen")
        return L
    def touch_mall(self, what):
        l=f"v{V_L}"; a,b=V_T,V_T+1; L=[]; A=lambda x: L.append(mk(x))
        A(f"s_lshl_b32 s{S_T2}, s2, 2"); A(f"s_add_u32 s{S_T2}, s{S_T2}, s{S_W}")
        def lanes(n):
            A(f"v_lshlrev_b32 v{a}, 7, {l}"); A(f"v_mov_b32 v{b}, {OOB}"); A(f"v_cmp_gt_u32 vcc, {n}, {l}"); A(f"v_cndmask_b32 v{a}, v{b}, v{a}, vcc")
        if "x" in what:
            lanes(16); A(f"s_lshl_b32 s{S_T0}, s{S_T2}, 11")
            A(f"buffer_load_dword a{A_JUNK}, v{a}, {sr(R_X)}, s{S_T0} offen")
        if "d" in what:
            lanes(14); A(f"s_mul_i32 s{S_T0}, s{S_T2}, {14*128}")
            for k,v in enumerate((f"s{P_WD}",f"s{P_WD+1}",1792*1024,"0x20000")): A(f"s_mov_b32 s{R_T+k}, {v}")
            A(f"buffer_load_dword a{A_JUNK}, v{a}, {sr(R_T)}, s{S_T0} offen")
            lanes(8); A(f"s_cmp_lt_u32 s{S_T2}, 512")
            A(f"s_cselect_b32 s{R_T2}, s{P_CRE}, s{P_CIM}"); A(f"s_cselect_b32 s{R_T2+1}, s{P_CRE+1}, s{P_CIM+1}"); A(f"s_mov_b32 s{R_T2+2}, {512*1024}"); A(f"s_mov_b32 s{R_T2+3}, 0x20000")
            A(f"s_and_b32 s{S_T0}, s{S_T2}, 511"); A(f"s_lshl_b32 s{S_T0}, s{S_T0}, 10")
            A(f"buffer_load_dword a{A_JUNK}, v{a}, {sr(R_T2)}, s{S_T0} offen")
        return L
    def touch_x(self):
        l=f"v{V_L}"; a,b=V_T,V_T+1; L=[]; A=lambda x: L.append(mk(x))
        A(f"v_and_b32 v{a}, 31, {l}"); A(f"v_lshlrev_b32 v{a}, 10, v{a}"); A(f"v_lshrrev_b32 v{b}, 5, {l}"); A(f"v_lshlrev_b32 v{b}, 7, v{b}"); A(f"v_add_u32 v{a}, v{a}, v{b}")
        A(f"s_lshr_b32 s{S_T0}, s{S_J}, 3"); A(f"s_mul_i32 s{S_T0}, s{S_T0}, 384"); A(f"s_add_u32 s{S_T0}, s{S_T0}, 256"); A(f"s_add_u32 s{S_T0}, s{S_T0}, s{S_XROW}")
        A(f"buffer_load_dword a{A_JUNK}, v{a}, {sr(R_X)}, s{S_T0} offen")
        A(f"v_and_b32 v{a}, 31, {l}"); A(f"v_lshlrev_b32 v{a}, 10, v{a}"); A(f"v_mov_b32 v{b}, {OOB}"); A(f"v_cmp_gt_u32 vcc, 32, {l}"); A(f"v_cndmask_b32 v{a}, v{b}, v{a}, vcc")
        A(f"buffer_load_dword a{A_JUNK}, v{a}, {sr(R_X)}, s{S_T0} offen offset:256")
        return L
    def touch_setup_w(self):
        l=f"v{V_L}"; L=[]; A=lambda x: L.append(mk(x))
        A(f"v_lshlrev_b32 v{V_TCH}, 7, {l}"); A(f"v_mov_b32 v{V_T}, {OOB}"); A(f"v_cmp_gt_u32 vcc, 16, {l}"); A(f"v_cndmask_b32 v{V_TCH}, v{V_T}, v{V_TCH}, vcc")
        A(f"s_lshr_b32 s{S_TW}, s2, 3"); A(f"s_lshl_b32 s{S_TW}, s{S_TW}, 2"); A(f"s_add_u32 s{S_TW}, s{S_TW}, s{S_W}"); A(f"s_mul_i32 s{S_TW}, s{S_TW}, {112*128}")
        for k,v in enumerate((f"s{P_WD}",f"s{P_WD+1}",1792*1024,"0x20000")): A(f"s_mov_b32 s{R_T+k}, {v}")
        return L
    def touch_setup_c(self):
        L=[]; A=lambda x: L.append(mk(x))
        A(f"s_lshr_b32 s{S_TW}, s2, 3"); A(f"s_lshl_b32 s{S_TW}, s{S_TW}, 2"); A(f"s_add_u32 s{S_TW}, s{S_TW}, s{S_W}")
        A(f"s_cmp_lt_u32 s{S_TW}, 64")
        A(f"s_cselect_b32 s{R_T2}, s{P_CRE}, s{P_CIM}"); A(f"s_cselect_b32 s{R_T2+1}, s{P_CRE+1}, s{P_CIM+1}"); A(f"s_mov_b32 s{R_T2+2}, {512*1024}"); A(f"s_mov_b32 s{R_T2+3}, 0x20000")
        A(f"s_and_b32 s{S_TW}, s{S_TW}, 63"); A(f"s_lshl_b32 s{S_TW}, s{S_TW}, 13")
        return L
    def touch_one(self, R):
        return [mk(f"buffer_load_dword a{A_JUNK}, v{V_TCH}, {sr(R)}, s{S_TW} offen"), mk(f"s_add_u32 s{S_TW}, s{S_TW}, 2048")]
    def touch_a(self):
        l=f"v{V_L}"; a,b=V_T,V_T+1; L=[]; A=lambda x: L.append(mk(x))
        A(f"v_lshlrev_b32 v{a}, 7, {l}"); A(f"v_mov_b32 v{b}, {OOB}"); A(f"v_cmp_gt_u32 vcc, 44, {l}"); A(f"v_cndmask_b32 v{a}, v{b}, v{a}, vcc")
        A(f"s_mul_i32 s{S_T0}, s{S_CB}, {44*128}"); A(f"s_add_u32 s{S_T1}, s{S_T0}, s{S_A0+1}"); A(f"s_add_u32 s{S_T0}, s{S_T0}, s{S_A0}")
        A(f"buffer_load_dword v{V_JUNK}, v{a}, {sr(R_WS)}, s{S_T0} offen sc1")
        A(f"buffer_load_dword v{V_JUNK}, v{a}, {sr(R_WS)}, s{S_T1} offen sc1")
        return L

    def code_prefetch(self, first=False):
        p=self.p
        if first:
            n=self.o.get("cp_first",1)
            p.I(f"s_getpc_b64 s[{R_T2}:{R_T2+1}]\nL_pc:")
            p.I(f"s_bfe_u32 s3, s2, 0x30003\nv_lshlrev_b32 v{V_T}, 4, v0\ns_lshl_b32 s3, s3, 12")
            p.I(f"s_mov_b32 s{R_T2+2}, L_codeend-L_pc\ns_mov_b32 s{R_T2+3}, 0x20000")
            p.I(f"buffer_load_dwordx4 a[252:255], v{V_T}, {sr(R_T2)}, s3 offen")
            if n==2:
                p.I(f"buffer_load_dwordx4 a[248:251], v{V_T}, {sr(R_T2)}, 0 offen")
            return
        if self.o.get("cp_first",0): return
        p.I(f"s_getpc_b64 s[{R_T2}:{R_T2+1}]\nL_pc:")
        p.I(f"s_mov_b32 s{R_T2+2}, L_codeend-L_pc\ns_mov_b32 s{R_T2+3}, 0x20000")
        p.I(f"s_bfe_u32 s{S_T0}, s2, 0x30003\ns_lshl_b32 s{S_T0}, s{S_T0}, 12\nv_lshlrev_b32 v{V_T}, 4, v0")
        p.I(f"buffer_load_dwordx4 a[252:255], v{V_T}, {sr(R_T2)}, s{S_T0} offen")

    def flag_op(self, op, idx_sgpr_expr_items, valsrc, R=R_DBG):
        L=[mk(x) for x in idx_sgpr_expr_items]
        L+=[mk(f"s_cmp_eq_u32 s{S_W}, 0"), mk(f"s_cselect_b32 s{S_T0}, s{S_T0}, {OOB}"),
            mk(f"v_mov_b32 v{V_U+6}, {OOB}"), mk(f"v_mov_b32 v{V_U+7}, s{S_T0}"), mk(f"v_cmp_eq_u32 vcc, 0, v{V_L}"),
            mk(f"v_cndmask_b32 v{V_U+6}, v{V_U+6}, v{V_U+7}, vcc"), mk(f"v_mov_b32 v{V_U+7}, {valsrc}"),
            mk(f"buffer_atomic_{op} v{V_U+7}, v{V_U+6}, {sr(R)}, 0 offen sc1")]
        return L

    @staticmethod
    def cfma(dst, c, x, add):
        return [mk(f"v_pk_fma_f32 {vr(dst,2)}, {vr(c,2)}, {vr(x,2)}, {vr(add,2)} op_sel:[0,0,0] op_sel_hi:[0,1,1]"),
                mk(f"v_pk_fma_f32 {vr(dst,2)}, {vr(c,2)}, {vr(x,2)}, {vr(dst,2)} op_sel:[1,1,0] op_sel_hi:[1,0,1] neg_lo:[1,0,0]")]
    @staticmethod
    def scan_step(nre, nim, lam, hre, him, ure, uim):
        return [mk(f"v_pk_fma_f32 {vr(nre,2)}, {vr(lam,2)}, {vr(hre,2)}, {vr(ure,2)} op_sel:[0,0,0] op_sel_hi:[0,1,1]"),
                mk(f"v_pk_fma_f32 {vr(nim,2)}, {vr(lam,2)}, {vr(him,2)}, {vr(uim,2)} op_sel:[0,0,0] op_sel_hi:[0,1,1]"),
                mk(f"v_pk_fma_f32 {vr(nre,2)}, {vr(lam,2)}, {vr(him,2)}, {vr(nre,2)} op_sel:[1,0,0] op_sel_hi:[1,1,1] neg_lo:[1,0,0] neg_hi:[1,0,0]"),
                mk(f"v_pk_fma_f32 {vr(nim,2)}, {vr(lam,2)}, {vr(hre,2)}, {vr(nim,2)} op_sel:[1,0,0] op_sel_hi:[1,1,1]")]

    @staticmethod
    def cfma_s(dst, c, x, add):
        return [mk(f"v_fma_f32 v{dst}, v{c}, v{x}, v{add}"), mk(f"v_fma_f32 v{dst+1}, v{c}, v{x+1}, v{add+1}"),
                mk(f"v_fma_f32 v{dst}, -v{c+1}, v{x+1}, v{dst}"), mk(f"v_fma_f32 v{dst+1}, v{c+1}, v{x}, v{dst+1}")]
    @staticmethod
    def scan_step_s(nre, nim, lam, hre, him, ure, uim):
        L=[]
        for e in range(2): L+=[mk(f"v_fma_f32 v{nre+e}, v{lam}, v{hre+e}, v{ure+e}"), mk(f"v_fma_f32 v{nim+e}, v{lam}, v{him+e}, v{uim+e}")]
        for e in range(2): L+=[mk(f"v_fma_f32 v{nre+e}, -v{lam+1}, v{him+e}, v{nre+e}"), mk(f"v_fma_f32 v{nim+e}, v{lam+1}, v{hre+e}, v{nim+e}")]
        return L
    def pass1(self):
        lam=V_U; l8=26
        L=[mk(f"v_accvgpr_read_b32 v{lam}, a{A_K}"), mk(f"v_accvgpr_read_b32 v{lam+1}, a{A_K+1}"),
           mk(f"v_accvgpr_read_b32 v{l8}, a{A_K+12}"), mk(f"v_accvgpr_read_b32 v{l8+1}, a{A_K+13}")]
        L+=[mk(f"v_lshrrev_b32 v{V_U+2}, 5, v{V_L}"), mk(f"s_lshl_b32 s{S_T0}, s{S_W}, 1"), mk(f"v_add_u32 v{V_U+2}, s{S_T0}, v{V_U+2}"), mk(f"v_lshlrev_b32 v{V_U+2}, 8, v{V_U+2}"),
            mk(f"v_and_b32 v{V_U+3}, 31, v{V_L}"), mk(f"v_lshlrev_b32 v{V_U+3}, 3, v{V_U+3}"), mk(f"v_add_u32 v{V_U+3}, {L_EX}, v{V_U+3}"), mk(f"v_add_u32 v{V_U+2}, v{V_U+2}, v{V_U+3}")]
        e=[(232,234),(236,238)]
        cr,ci=V_SRE,V_SIM
        for i in range(1,8):
            nr,ni=e[i&1]
            L+=self.scan_step_s(nr,ni,lam,cr,ci,V_SRE+2*i,V_SIM+2*i)
            cr,ci=nr,ni
        L+=[mk(f"v_fma_f32 v28, v{l8}, v{cr}, v{cr+1}"), mk(f"v_fma_f32 v29, v{l8}, v{ci}, v{ci+1}"),
            mk(f"v_fma_f32 v28, -v{l8+1}, v{ci}, v28"), mk(f"v_fma_f32 v29, v{l8+1}, v{cr}, v29"),
            mk(f"v_accvgpr_write_b32 a{A_K+14}, v{cr}"), mk(f"v_accvgpr_write_b32 a{A_K+15}, v{ci}")]
        w=mk(f"ds_write_b64 v{V_U+2}, v[28:29]"); L.append(w)
        return L,w

    def exchange(self):
        ER=V_U+3
        l16=V_U
        L=[mk(f"v_accvgpr_read_b32 v{l16}, a{A_K+2}"), mk(f"v_accvgpr_read_b32 v{l16+1}, a{A_K+3}")]
        P,N=26,28; S2=V_U+4
        rd=[mk(f"ds_read_b64 {vr(P,2)}, v{ER}")]+[mk(f"ds_read_b64 {vr(232+2*(k-1),2)}, v{ER} offset:{256*k}") for k in range(1,8)]
        L+=rd
        L+=[mk(f"v_mov_b32 v{S2}, 0"), mk(f"v_mov_b32 v{S2+1}, 0"), mk(f"s_lshl_b32 s{S_GT}, s{S_W}, 1"), mk(f"s_add_u32 s{S_PO}, s{S_GT}, 1"), Wait(lgkm=rd[:2])]
        for k in range(1,8):
            L+=[mk(f"s_cmp_eq_u32 s{S_GT}, {k}"), mk(f"s_cselect_b32 s{S_M0}, -1, 0"), mk(f"s_cmp_eq_u32 s{S_PO}, {k}"), mk(f"s_cselect_b32 s{S_M0+1}, -1, 0"), Wait(lgkm=rd[k]),
                mk(f"v_cndmask_b32 v{S2}, v{S2}, v{P}, s[{S_M0}:{S_M0+1}]"), mk(f"v_cndmask_b32 v{S2+1}, v{S2+1}, v{P+1}, s[{S_M0}:{S_M0+1}]")]
            L+=self.cfma_s(N,l16,P,232+2*(k-1))
            P,N=N,P
        L+=[mk(f"v_accvgpr_write_b32 a{A_KS+10}, v{S2}"), mk(f"v_accvgpr_write_b32 a{A_KS+11}, v{S2+1}"),
            mk(f"v_accvgpr_mov_b32 a{A_KS+2}, a{A_K+14}"), mk(f"v_accvgpr_mov_b32 a{A_KS+3}, a{A_K+15}")]
        Er,Ei=30,31
        L+=[mk(f"s_lshl_b32 s{S_T0}, s{S_C}, 12"), mk(f"s_lshl_b32 s{S_T1}, s{S_J}, 8"), mk(f"s_add_u32 s{S_T0}, s{S_T0}, s{S_T1}"), mk(f"s_add_u32 s{S_T0}, s{S_T0}, {WS_E}"),
            mk(f"s_cmp_eq_u32 s{S_W}, 0"), mk(f"s_cselect_b32 s{S_T0}, s{S_T0}, {OOB}"),
            mk(f"v_lshlrev_b32 v{Er}, 3, v{V_L}"), mk(f"v_add_u32 v{Er}, s{S_T0}, v{Er}"), mk(f"v_mov_b32 v{Ei}, {OOB}"), mk(f"v_cmp_gt_u32 vcc, 32, v{V_L}"),
            mk(f"v_cndmask_b32 v{Er}, v{Ei}, v{Er}, vcc")]
        st=mk(f"buffer_store_dwordx2 {vr(P,2)}, v{Er}, {sr(R_WS)}, 0 offen sc1"); L.append(st)
        return L,st

    def poll_issue(self, vdst, off_items, R=R_DBG, w0only=False, off2=None):
        L=[mk(x) for x in off_items]
        if w0only:
            L+=[mk(f"s_cmp_eq_u32 s{S_W}, 0"), mk(f"s_cselect_b32 s{S_T0}, s{S_T0}, {OOB}")]
            if off2: L+=[mk(f"s_cselect_b32 s{S_T1}, s{S_T1}, {OOB}")]
        L+=[mk(f"v_mov_b32 v{vdst+1}, {OOB}"), mk(f"v_mov_b32 v{V_U+7}, s{S_T0}"), mk(f"v_cmp_eq_u32 vcc, 0, v{V_L}"), mk(f"v_cndmask_b32 v{vdst+1}, v{vdst+1}, v{V_U+7}, vcc")]
        if off2:
            L+=[mk(f"v_mov_b32 v{V_U+7}, s{S_T1}"), mk(f"v_cmp_eq_u32 vcc, 1, v{V_L}"), mk(f"v_cndmask_b32 v{vdst+1}, v{vdst+1}, v{V_U+7}, vcc")]
        t=mk(f"buffer_load_dword v{vdst}, v{vdst+1}, {sr(R)}, 0 offen sc1"); L.append(t)
        return L,t
    def poll_check(self, name, vdst, tok, cond_items, R=R_DBG, w0only=False, two=False, sleep=1):
        sid={"g":20,"e":24,"a":28,"s":24}[name]
        rl=[f"v_readlane_b32 s{S_T0}, v{vdst}, 0"]+([f"v_readlane_b32 s{S_T1}, v{vdst}, 1"] if two else [])
        L=self.stamp(sid)+([mk(f"s_mov_b32 s{S_CNT}, 0")] if self.o.get("stamps") else [])+[Wait(vm=tok)]+self.stamp(sid+1)
        if w0only: L+=[mk(f"s_cmp_lg_u32 s{S_W}, 0"), mk(f"s_cbranch_scc1 L_back_{name}")]
        L+=[mk(x) for x in rl]+[mk(x) for x in cond_items]
        L+=[mk(f"s_cbranch_scc0 L_slow_{name}"), mk(f"L_back_{name}:")]+self.stamp(sid+2)+self.note(sid+3,S_CNT)
        S=[f"L_slow_{name}:", f"s_mov_b32 s{S_CNT}, 0", f"L_loop_{name}:"]+([f"s_sleep {sleep}"] if sleep else [])+[
           f"buffer_load_dword v{vdst}, v{vdst+1}, {sr(R)}, 0 offen sc1", "s_waitcnt vmcnt(0)"]+rl+["s_nop 1",
           f"s_add_u32 s{S_CNT}, s{S_CNT}, 1", f"s_cmp_gt_u32 s{S_CNT}, 100000", f"s_cbranch_scc1 L_back_{name}"]
        S+=cond_items+[f"s_cbranch_scc1 L_back_{name}", f"s_branch L_loop_{name}"]
        self.slow+=S
        return L

    def gpoll_issue(self, vdst):
        L=[mk(f"v_lshlrev_b32 v{vdst+1}, 4, v{V_L}"), mk(f"v_mov_b32 v{V_U+7}, {OOB}"), mk(f"s_cmp_eq_u32 s{S_W}, 0"), mk(f"s_cselect_b32 s{S_T0}, 16, 0"),
           mk(f"v_cmp_gt_u32 vcc, s{S_T0}, v{V_L}"), mk(f"v_cndmask_b32 v{vdst+1}, v{V_U+7}, v{vdst+1}, vcc")]
        t=mk(f"buffer_load_dword v{vdst}, v{vdst+1}, {sr(R_DBG)}, 0 offen sc1"); L.append(t)
        return L,t
    def gpoll_check(self, vdst, tok):
        cond=[f"v_cmp_eq_u32 vcc, 16, v{vdst}", f"s_lshl_b32 s{S_T0}, 2, s{S_C}", f"s_sub_u32 s{S_T0}, s{S_T0}, 1", f"s_lshl_b32 s{S_T1}, 1, s{S_C3}", f"s_or_b32 s{S_T0}, s{S_T0}, s{S_T1}",
              f"s_and_b32 s{S_T1}, vcc_lo, s{S_T0}", f"s_cmp_eq_u32 s{S_T1}, s{S_T0}"]
        L=self.stamp(20)+[Wait(vm=tok)]+self.stamp(21)+[mk(f"s_cmp_lg_u32 s{S_W}, 0"), mk("s_cbranch_scc1 L_back_g")]+[mk(x) for x in cond]
        L+=[mk("s_cbranch_scc0 L_slow_g"), mk("L_back_g:")]+self.stamp(22)
        self.slow+=["L_slow_g:", f"s_mov_b32 s{S_CNT}, 0", "L_loop_g:", "s_sleep 1", f"buffer_load_dword v{vdst}, v{vdst+1}, {sr(R_DBG)}, 0 offen sc1", "s_waitcnt vmcnt(0)",
                    f"s_add_u32 s{S_CNT}, s{S_CNT}, 1", f"s_cmp_gt_u32 s{S_CNT}, 100000", "s_cbranch_scc1 L_back_g", cond[0], "s_nop 4"]+cond[1:]+["s_cbranch_scc1 L_back_g", "s_branch L_loop_g"]
        return L

    def g_loads(self):
        L=[]
        T=V_T
        L+=[mk(f"v_bfe_u32 v{T}, v{V_L}, 2, 1"), mk(f"v_lshlrev_b32 v{T}, 4, v{T}"), mk(f"v_bfe_u32 v{T+1}, v{V_L}, 3, 2"), mk(f"v_lshlrev_b32 v{T+1}, 2, v{T+1}"),
            mk(f"v_add_u32 v{T}, v{T}, v{T+1}"), mk(f"v_and_b32 v{T+1}, 3, v{V_L}"), mk(f"v_add_u32 v{T}, v{T}, v{T+1}"), mk(f"v_lshlrev_b32 v{T}, 2, v{T}"),
            mk(f"s_lshl_b32 s{S_T0}, s{S_C}, 2"), mk(f"s_add_u32 s{S_T0}, s{S_T0}, s{S_W}"), mk(f"s_lshl_b32 s{S_T0}, s{S_T0}, 7"), mk(f"s_add_u32 s{S_T0}, s{S_T0}, {WS_G}")]
        t0=mk(f"buffer_load_dword v14, v{T}, {sr(R_WS)}, s{S_T0} offen sc1"); L.append(t0)
        L+=[mk(f"v_lshrrev_b32 v{T+1}, 5, v{V_L}"), mk(f"v_lshlrev_b32 v{T+1}, 6, v{T+1}")]
        toks=[t0]
        for i,r in enumerate((2,6,10,18)):
            t=mk(f"buffer_load_dwordx4 {vr(r,4)}, v{T+1}, {sr(R_WS)}, s{S_T0} offen offset:{16*i} sc1"); L.append(t); toks.append(t)
        return L,toks
    GREG=[2,3,4,5,6,7,8,9,10,11,12,13,18,19,20,21]

    EREG=[36,38,40,42,44,46,52,54,56,58,60,62,68,70,72]
    def e_loads(self):
        T=V_T
        L=[mk(f"s_add_u32 s{R_T2}, s{P_WS}, {WS_E}"), mk(f"s_addc_u32 s{R_T2+1}, s{P_WS+1}, 0"), mk(f"s_mov_b32 s{R_T2+2}, 65536"), mk(f"s_mov_b32 s{R_T2+3}, 0x20000"),
           mk(f"v_and_b32 v{T+2}, 31, v{V_L}"), mk(f"v_lshlrev_b32 v{T+2}, 3, v{T+2}"), mk(f"s_lshl_b32 s{S_T1}, s{S_J}, 8"), mk(f"s_lshl_b32 s{S_T0}, s{S_C}, 12"),
           mk(f"s_add_u32 s{S_T0}, s{S_T0}, s{S_T1}"), mk(f"s_sub_u32 s{S_T0}, s{S_T0}, 4096"), mk(f"v_add_u32 v{T+2}, s{S_T0}, v{T+2}")]
        toks=[]
        for m in range(15):
            a=T+2+(m&1); b=T+2+((m+1)&1)
            t=mk(f"buffer_load_dwordx2 {ar(2*m,2)}, v{a}, {sr(R_T2)}, 0 offen sc1"); L.append(t); toks.append(t)
            if m<14: L.append(mk(f"v_subrev_u32 v{b}, 4096, v{a}"))
        self.e_reload=[mk(x.text) for x in L]
        return L,toks

    def ffn_epilogue(self, gtok):
        pre=[]; st=[]
        KC=V_WF; IR=V_WF+2; T=V_WF+4
        k0=-2.0*0.7978845608028654*self.LOG2E
        pre+=[Wait(vm=gtok), mk(f"v_sub_f32 v{IR}, 1.0, v14"), mk(self.fconst(S_T0,k0*0.044715)), mk(f"v_cvt_pk_bf16_f32 v{IR}, v{IR}, v{IR}"), mk(f"v_mov_b32 v{KC}, s{S_T0}"),
             mk(f"v_lshlrev_b32 v{IR}, 16, v{IR}"), mk(self.fconst(S_T0,k0)), mk(f"v_rcp_f32 v{IR}, v{IR}"), mk(f"v_mov_b32 v{KC+1}, s{S_T0}"),
             mk(self.fconst(S_T0,1e30)), mk(f"v_min_f32 v{IR}, s{S_T0}, v{IR}")]
        pre+=[mk(f"s_lshl_b32 s{S_AO}, s{S_C}, 2"), mk(f"s_add_u32 s{S_AO}, s{S_AO}, s{S_W}"), mk(f"s_mul_i32 s{S_AO}, s{S_AO}, 176"), mk(f"s_mul_i32 s{S_T0}, s{S_J}, 11"),
            mk(f"s_add_u32 s{S_AO}, s{S_AO}, s{S_T0}"), mk(f"s_lshl_b32 s{S_AO}, s{S_AO}, 10"), mk(f"v_lshlrev_b32 v{V_AO}, 4, v{V_L}")]
        tiles=[]
        for i in range(7):
            L=[]
            a=V_ACC+16*i
            o=T+16*(i&1)
            Z,Pd=o,o+8
            pr=[(a,a+4),(a+2,a+6),(a+8,a+12),(a+10,a+14)]
            for e,(g,u) in enumerate(pr): L.append(mk(f"v_pk_mul_f32 {vr(Z+2*e,2)}, {vr(g,2)}, {vr(g,2)}"))
            for e,(g,u) in enumerate(pr): L.append(mk(f"v_pk_fma_f32 {vr(Z+2*e,2)}, {vr(Z+2*e,2)}, {vr(KC,2)}, {vr(KC,2)} op_sel:[0,0,1] op_sel_hi:[1,0,1]"))
            for e,(g,u) in enumerate(pr): L.append(mk(f"v_pk_mul_f32 {vr(Z+2*e,2)}, {vr(g,2)}, {vr(Z+2*e,2)}"))
            for e,(g,u) in enumerate(pr):
                L.append(mk(f"v_exp_f32 v{Z+2*e}, v{Z+2*e}")); L.append(mk(f"v_exp_f32 v{Z+2*e+1}, v{Z+2*e+1}")); L.append(mk(f"v_pk_mul_f32 {vr(Pd+2*e,2)}, {vr(g,2)}, {vr(u,2)}"))
            for e in range(4): L.append(mk(f"v_pk_fma_f32 {vr(Z+2*e,2)}, {vr(Z+2*e,2)}, {vr(IR,2)}, {vr(IR,2)} op_sel:[0,0,0] op_sel_hi:[1,0,0]"))
            for e in range(8): L.append(mk(f"v_rcp_f32 v{Z+e}, v{Z+e}"))
            for e in range(4): L.append(mk(f"v_pk_mul_f32 {vr(Pd+2*e,2)}, {vr(Pd+2*e,2)}, {vr(Z+2*e,2)}"))
            for e in range(4): L.append(mk(f"v_cvt_pk_bf16_f32 v{a+e}, v{Pd+2*e}, v{Pd+2*e+1}"))
            tiles.append(L)
        S=[]
        for i in range(7):
            t=mk(f"buffer_store_dwordx4 {vr(V_ACC+16*i,4)}, v{V_AO}, {sr(R_WS)}, s{S_AO} offen offset:{1024*(i&3)} sc1"); st.append(t)
            S.append(([mk(f"s_add_u32 s{S_AO}, s{S_AO}, 4096")] if i==4 else [])+[t])
        return pre,tiles,S,st

    def ssm_epilogue(self, etok, gtok, tbase_items):
        L=[]; st=[]
        LAM,Q,S2=176,178,180
        H,N=182,184
        rd=lambda v,a: mk(f"v_accvgpr_read_b32 v{v}, a{a}")
        L+=[rd(Q,A_KS+4), rd(Q+1,A_KS+5), rd(LAM,A_KS), rd(LAM+1,A_KS+1), rd(S2,A_KS+8), rd(S2+1,A_KS+9), Wait(vm=etok)]
        L+=[rd(H,28), rd(H+1,29)]
        cur=H
        EB=[204,206]
        for m in range(13,-1,-1):
            e=EB[m&1]
            L+=[rd(e,2*m), rd(e+1,2*m+1)]
            L+=self.cfma(N,Q,cur,e); cur=N; H,N=N,H
        Hin=cur
        L+=[mk(f"v_cmp_u_f32 vcc, v{Hin}, v{Hin}"), mk("s_nop 3"), mk("s_cmp_eq_u64 vcc, 0"), mk("s_cbranch_scc0 L_slow_e"), mk("L_back_e:")]
        S=["L_slow_e:", f"s_mov_b32 s{S_CNT}, 0", "L_loop_e:"]
        S+=[x.text for x in self.e_reload]
        S+=["s_waitcnt vmcnt(0)", f"v_accvgpr_read_b32 v{Hin}, a28", f"v_accvgpr_read_b32 v{Hin+1}, a29"]
        cur2=Hin; oth=H if Hin==N else N
        seq=[]; a_,b_=(Hin,oth)
        regs=[]; c=Hin
        for m in range(13,-1,-1):
            e=EB[m&1]; d=oth if c==Hin else Hin
            S+=[f"v_accvgpr_read_b32 v{e}, a{2*m}", f"v_accvgpr_read_b32 v{e+1}, a{2*m+1}", "s_nop 0"]+[x.text for x in self.cfma(d,Q,c,e)]
            c=d
        assert c==Hin
        S+=[f"v_cmp_u_f32 vcc, v{Hin}, v{Hin}", f"s_add_u32 s{S_CNT}, s{S_CNT}, 1", "s_nop 3", f"s_cmp_gt_u32 s{S_CNT}, 20000", "s_cbranch_scc1 L_back_e", "s_cmp_eq_u64 vcc, 0", "s_cbranch_scc1 L_back_e", "s_branch L_loop_e"]
        self.slow+=S
        W,X=186,188
        L+=[rd(Q,A_KS+6), rd(Q+1,A_KS+7), rd(W,A_KS+10), rd(W+1,A_KS+11)]
        L+=self.cfma(X,Q,Hin,W)
        L+=[rd(Q,A_KS+12), rd(Q+1,A_KS+13), rd(W,A_KS+2), rd(W+1,A_KS+3)]
        L+=self.cfma(190,Q,X,W)
        HR,HI,NR,NI=192,194,196,198
        L+=[mk(f"v_mov_b32 v{HR}, v{X}"), mk(f"v_mov_b32 v{HR+1}, v190"), mk(f"v_mov_b32 v{HI}, v{X+1}"), mk(f"v_mov_b32 v{HI+1}, v191"), Wait(vm=gtok)]
        PK=214
        OR,OI=200,202
        for i in range(8):
            g=self.GREG[2*i]
            L+=self.scan_step(NR,NI,LAM,HR,HI,V_SRE+2*i,V_SIM+2*i)
            HR,HI,NR,NI=NR,NI,HR,HI
            L+=[mk(f"v_pk_mul_f32 {vr(OR,2)}, {vr(S2,2)}, {vr(HR,2)} op_sel:[0,0] op_sel_hi:[0,1]"), mk(f"v_pk_mul_f32 {vr(OI,2)}, {vr(S2,2)}, {vr(HI,2)} op_sel:[0,0] op_sel_hi:[0,1]"),
                mk(f"v_pk_fma_f32 {vr(OR,2)}, {vr(S2,2)}, {vr(HI,2)}, {vr(OR,2)} op_sel:[1,0,0] op_sel_hi:[1,1,1] neg_lo:[1,0,0] neg_hi:[1,0,0]"),
                mk(f"v_pk_fma_f32 {vr(OI,2)}, {vr(S2,2)}, {vr(HR,2)}, {vr(OI,2)} op_sel:[1,0,0] op_sel_hi:[1,1,1]"),
                mk(f"v_pk_mul_f32 {vr(OR,2)}, {vr(g,2)}, {vr(OR,2)}"), mk(f"v_pk_mul_f32 {vr(OI,2)}, {vr(g,2)}, {vr(OI,2)} neg_lo:[1,0] neg_hi:[1,0]"),
                mk(f"v_cvt_pk_bf16_f32 v{PK+i}, v{OR}, v{OR+1}"), mk(f"v_cvt_pk_bf16_f32 v{PK+8+i}, v{OI}, v{OI+1}")]
        TW,TW2,TR0,TR1=204,205,206,207
        L+=[rd(TW,A_PAT+12), rd(TW2,A_PAT+13), rd(TR0,A_PAT+14), rd(TR1,A_PAT+15)]
        wr=[]
        for m in range(2):
            wr.append(mk(f"ds_write_b128 v{TW}, {vr(PK+8*m,4)} offset:{2048*m}")); wr.append(mk(f"ds_write_b128 v{TW2}, {vr(PK+8*m+4,4)} offset:{2048*m}"))
        L+=wr
        L+=[Wait(lgkm=wr)]
        OUT=V_SRE
        rd=[]
        for b in range(4):
            m,mu=b>>1,b&1
            rd.append(mk(f"ds_read_b64_tr_b16 {vr(OUT+4*b,2)}, v{TR0} offset:{2048*m+1024*mu}")); rd.append(mk(f"ds_read_b64_tr_b16 {vr(OUT+4*b+2,2)}, v{TR1} offset:{2048*m+1024*mu}"))
        L+=rd
        L+=[mk(f"s_add_u32 s{S_AO}, s{S_AO}, 3072")]
        for b in range(4):
            t=mk(f"buffer_store_dwordx4 {vr(OUT+4*b,4)}, v{V_AO}, {sr(R_WS)}, s{S_AO} offen offset:{1024*b} sc1")
            L+=[Wait(lgkm=rd[2*b:2*b+2]), t]; st.append(t)
        self.t_reads=rd
        return L,st

    def copy_consts(self):
        return [mk(f"v_accvgpr_mov_b32 a{A_KS+i}, a{A_K+i}") for i in (0,1,4,5,6,7,8,9,12,13)]

    def blk_areg(self,b):
        if not self.o.get("tail"): return 64+8*b
        return 192+8*b if b<8 else (64+8*(b-8) if b<16 else 128+8*(b-16))
    def p3_patterns_pro(self):
        l=f"v{V_L}"; a,b,c,d=32,33,34,35
        L=[]; A=lambda x: L.append(mk(x))
        W=lambda k,v: A(f"v_accvgpr_write_b32 a{A_PAT+k}, v{v}")
        A(f"s_mul_i32 s{S_RG}, s{S_W}, {REGION}")
        base=S_RG
        if self.o.get("tail"):
            A(f"s_lshl_b32 s{S_T3}, s{S_W}, 14"); A(f"s_add_u32 s{S_T3}, s{S_T3}, {L_B}"); base=S_T3
        A(f"v_lshrrev_b32 v{a}, 3, {l}"); A(f"v_lshlrev_b32 v{a}, 10, v{a}"); A(f"v_bfe_u32 v{b}, {l}, 4, 1"); A(f"v_lshlrev_b32 v{b}, 2, v{b}"); A(f"v_and_b32 v{c}, 7, {l}")
        A(f"v_xor_b32 v{b}, v{b}, v{c}"); A(f"v_lshl_add_u32 v{d}, v{b}, 4, v{a}"); W(0,d); A(f"v_add_u32 v{d}, 7168, v{d}"); W(1,d)
        A(f"v_lshrrev_b32 v{b}, 4, {l}"); A(f"v_xor_b32 v{b}, v{b}, v{c}"); A(f"v_xor_b32 v{c}, 4, v{b}"); A(f"v_lshlrev_b32 v{b}, 4, v{b}"); A(f"v_lshlrev_b32 v{c}, 4, v{c}")
        for q in range(4):
            A(f"v_add_u32 v{d}, v{a}, v{b if q%2==0 else c}")
            if q: A(f"v_add_u32 v{d}, {7168*q}, v{d}")
            W(2+q,d)
        A(f"v_lshrrev_b32 v{a}, 5, {l}"); A(f"v_lshlrev_b32 v{a}, 2, v{a}"); A(f"v_bfe_u32 v{b}, {l}, 2, 2"); A(f"v_add_u32 v{a}, v{a}, v{b}"); A(f"v_lshlrev_b32 v{a}, 7, v{a}")
        A(f"v_bfe_u32 v{b}, {l}, 4, 1"); A(f"v_lshl_add_u32 v{a}, v{b}, 5, v{a}"); A(f"v_and_b32 v{b}, 3, {l}"); A(f"v_lshl_add_u32 v{a}, v{b}, 3, v{a}")
        A(f"v_add_u32 v{a}, s{base}, v{a}"); A(f"v_bfe_u32 v{b}, {l}, 3, 1"); A(f"v_lshlrev_b32 v{b}, 6, v{b}"); A(f"s_and_b32 s{S_T2}, s{S_W}, 1"); A(f"s_lshl_b32 s{S_T2}, s{S_T2}, 6"); A(f"v_xor_b32 v{b}, s{S_T2}, v{b}")
        A(f"v_add_u32 v{d}, v{a}, v{b}"); W(6,d); A(f"v_xor_b32 v{b}, 64, v{b}"); A(f"v_add_u32 v{d}, v{a}, v{b}"); W(7,d)
        A(f"v_and_b32 v{a}, 31, {l}"); A(f"v_lshlrev_b32 v{a}, 7, v{a}"); A(f"v_add_u32 v{a}, s{S_RG}, v{a}"); A(f"v_bfe_u32 v{b}, {l}, 1, 3"); A(f"v_lshrrev_b32 v{c}, 5, {l}"); A(f"v_xor_b32 v{b}, v{b}, v{c}")
        for s in range(4):
            A(f"v_xor_b32 v{c}, {2*s}, v{b}"); A(f"v_lshl_add_u32 v{d}, v{c}, 4, v{a}"); W(8+s,d)
        A(f"s_add_u32 s{S_T2}, s{S_RG}, 36864")
        A(f"v_and_b32 v{a}, 31, {l}"); A(f"v_lshlrev_b32 v{a}, 6, v{a}"); A(f"v_add_u32 v{a}, s{S_T2}, v{a}"); A(f"v_bfe_u32 v{b}, {l}, 1, 2"); A(f"v_lshrrev_b32 v{c}, 5, {l}"); A(f"v_lshlrev_b32 v{c}, 1, v{c}")
        A(f"v_xor_b32 v{c}, v{c}, v{b}"); A(f"v_lshl_add_u32 v{d}, v{c}, 4, v{a}"); W(12,d); A(f"v_xor_b32 v{c}, 1, v{c}"); A(f"v_lshl_add_u32 v{d}, v{c}, 4, v{a}"); W(13,d)
        A(f"v_lshrrev_b32 v{a}, 5, {l}"); A(f"v_lshlrev_b32 v{a}, 3, v{a}"); A(f"v_bfe_u32 v{b}, {l}, 2, 2"); A(f"v_add_u32 v{a}, v{a}, v{b}"); A(f"v_lshlrev_b32 v{a}, 6, v{a}")
        A(f"v_and_b32 v{b}, 1, {l}"); A(f"v_lshlrev_b32 v{b}, 1, v{b}"); A(f"v_bfe_u32 v{c}, {l}, 4, 1"); A(f"v_add_u32 v{b}, v{b}, v{c}"); A(f"v_bfe_u32 v{c}, {l}, 3, 1"); A(f"v_xor_b32 v{b}, v{b}, v{c}")
        A(f"v_bfe_u32 v{c}, {l}, 1, 1"); A(f"v_lshl_add_u32 v{a}, v{c}, 3, v{a}"); A(f"v_add_u32 v{a}, s{S_T2}, v{a}")
        A(f"v_lshl_add_u32 v{d}, v{b}, 4, v{a}"); W(14,d); A(f"v_xor_b32 v{b}, 2, v{b}"); A(f"v_lshl_add_u32 v{d}, v{b}, 4, v{a}"); A(f"v_add_u32 v{d}, 256, v{d}"); W(15,d)
        A(f"s_mul_i32 s{S_FO}, s{S_W}, {448*1024}"); A(f"s_lshl_b32 s{S_T2}, s{S_CB}, 7"); A(f"s_add_u32 s{S_FO}, s{S_FO}, s{S_T2}")
        A(f"s_lshl_b32 s{S_CO}, s{S_CB}, 16"); A(f"s_lshl_b32 s{S_T2}, s{S_W}, 8"); A(f"s_add_u32 s{S_CO}, s{S_CO}, s{S_T2}")
        A(f"s_and_b32 s{S_T2}, s{S_W}, 1"); A(f"s_lshl_b32 s{S_T2}, s{S_T2}, 15"); A(f"s_xor_b32 s{S_CO1}, s{S_T2}, 0x8000"); A(f"s_add_u32 s{S_CO1}, s{S_CO1}, s{S_CO}"); A(f"s_add_u32 s{S_CO}, s{S_CO}, s{S_T2}")
        return L
    def p3_patterns1(self):
        L=[mk(f"v_accvgpr_read_b32 v{V_FD+i}, a{A_PAT+i}") for i in range(2)]+[mk(f"v_accvgpr_read_b32 v{V_FR+i}, a{A_PAT+6+i}") for i in range(2)]
        if self.o.get("tail"): L+=[mk(f"s_lshl_b32 s{S_TB}, s{S_W}, 14"), mk(f"s_add_u32 s{S_TB}, s{S_TB}, {L_B}")]
        for k,v in enumerate((f"s{P_WD}",f"s{P_WD+1}",1792*1024,"0x20000")): L.append(mk(f"s_mov_b32 s{R_T+k}, {v}"))
        return L
    def p3_patterns2(self):
        L=[mk(f"v_accvgpr_read_b32 v{V_CD+i}, a{A_PAT+2+i}") for i in range(4)]+[mk(f"v_accvgpr_read_b32 v{V_CR[i]}, a{A_PAT+8+i}") for i in range(4)]
        for reg,ptr,size in ((R_B,P_CRE,512*1024),(R_W,P_CIM,512*1024)):
            L+=[mk(f"s_mov_b32 s{reg}, s{ptr}"), mk(f"s_mov_b32 s{reg+1}, s{ptr+1}"), mk(f"s_mov_b32 s{reg+2}, {size}"), mk(f"s_mov_b32 s{reg+3}, 0x20000")]
        return L
    def p3_rebase_after(self, rd2):
        return [Wait(lgkm=sum(rd2.values(),[]))]+self.p3_rebase()
    def p3_rebase(self):
        return [mk(f"s_sub_u32 s{S_T0}, s{S_RG}, s{S_TB}"), mk(f"v_add_u32 v{V_FR}, s{S_T0}, v{V_FR}"), mk(f"v_add_u32 v{V_FR+1}, s{S_T0}, v{V_FR+1}")]
    def p3_dma_f(self, b, slot, tail=False):
        L=[mk(f"s_add_u32 m0, s{S_TB if tail else S_RG}, {slot*2048}"), mk(f"s_add_u32 s{S_PO}, s{S_FO}, {b*16*1024}")]
        t=[mk(f"buffer_load_dwordx4 v{V_FD+i}, {sr(R_T)}, s{S_PO} offen offset:{1024*i} lds") for i in range(2)]
        if b in self.o.get("skip_f",()): t=[mk("s_nop 0"),mk("s_nop 0")]
        return L+t,t
    def p3_dma_c(self, k):
        mat,ph,ct=k>>2,(k>>1)&1,k&1
        L=[mk(f"s_add_u32 m0, s{S_RG}, {k*4096}"), mk(f"s_add_u32 s{S_PO}, s{S_CO1 if ct else S_CO}, {ph*128}")]
        t=[mk(f"buffer_load_dwordx4 v{V_CD+q}, {sr(R_W if mat else R_B)}, s{S_PO} offen offset:{1024*q} lds") for q in range(4)]
        if k in self.o.get("skip_c",()): t=[mk("s_nop 0") for q in range(4)]
        return L+t,t
    def p3_rd_f(self, slot, dst, agpr):
        R=ar if agpr else vr
        return [mk(f"ds_read_b64_tr_b16 {R(dst+4*ct+2*q,2)}, v{V_FR+ct} offset:{slot*2048+1024*q}") for ct in range(2) for q in range(2)]
    def p3_rd_c(self, mat, ph, s, dst):
        return [mk(f"ds_read_b128 {vr(dst+4*ct,4)}, v{V_CR[s]} offset:{(4*mat+2*ph+ct)*4096}") for ct in range(2)]

    @staticmethod
    def cost(it):
        if isinstance(it,Wait): return 2
        if it.kind=="label": return 0
        if it.op in TRANS: return 8
        if it.kind=="vmem": return 16
        if it.op.startswith("v_pk_"): return 4
        return 4
    def merge_time(self, stream, ev, t=0):
        out=[]; i=0
        for it in stream:
            sccuse = (not isinstance(it,Wait)) and (it.kind=="label" or it.op.startswith("s_cselect") or it.op.startswith("s_cbranch_scc") or it.op.startswith("s_addc"))
            while (not sccuse) and i<len(ev) and ev[i][0]<=t:
                for x in ev[i][1]:
                    out.append(x); t+=self.cost(x)
                i+=1
            out.append(it); t+=self.cost(it)
        return out,ev[i:],t

    def phase3(self, tok):
        p=self.p
        ACC=32; RING=96; D=self.o.get('ring',12); BJ=96+8*D
        if self.o.get("tail"):
            order=[("f",b) for b in range(24)]+[("c",0,0,s) for s in range(4)]+[("c",0,1,s) for s in range(4)]+[("f",b) for b in range(24,28)]+[("c",1,0,s) for s in range(4)]+[("c",1,1,s) for s in range(4)]
        else: order=[("f",b) for b in range(24)]+[("c",0,1,s) for s in range(4)]+[("c",1,0,s) for s in range(4)]+[("c",1,1,s) for s in range(4)]+[("f",b) for b in range(24,28)]+[("c",0,0,s) for s in range(4)]
        pf={}
        first_use={-2:0,-1:4,0:8,1:12,2:16,3:20}
        rest=self.p3_rest; base=4-len(rest)
        for k,G in enumerate(rest):
            st0=self.o.get("pf0",0)+2*k
            a,b=split(G,2); pf[st0]=pf.get(st0,[])+a; pf[st0+1]=pf.get(st0+1,[])+b
            assert st0+1 < first_use[base+k]
        def krel(st):
            if st[0]=="f": return 11*(st[1]//7)+st[1]%7
            _,mat,ph,s=st
            return 11*(2*ph+(s>>1))+7+2*mat+(s&1)
        gstate={"k":None,"n":0}
        PA,PB=8,18
        def aload(i):
            st=order[i]; r=RING+8*(i%D); k=krel(st)
            if not self.o.get("ga_global",0):
                L=[mk(f"s_add_u32 s{S_T2}, s{S_A0}, {k*1024}"), mk(f"s_add_u32 s{S_T3}, s{S_A0+1}, {k*1024}")]
                t=[mk(f"buffer_load_dwordx4 {vr(r+4*e,4)}, v{V_AO}, {sr(R_WS)}, s{S_T2+e} offen sc1") for e in range(2)]
                return [L[0],t[0],L[1],t[1]],t
            L=[]
            if gstate["k"] is None or not (0<=k-gstate["k"]<=3):
                gstate["k"]=k
                L+=[mk(f"s_add_u32 s{PA}, s6, {k*1024}"), mk(f"s_addc_u32 s{PA+1}, s7, 0"), mk(f"s_add_u32 s{PB}, s30, {k*1024}"), mk(f"s_addc_u32 s{PB+1}, s31, 0")]
            off=(k-gstate["k"])*1024
            t=[mk(f"global_load_dwordx4 {vr(r+4*e,4)}, v{V_AO}, s[{(PA,PB)[e]}:{(PA,PB)[e]+1}] offset:{off} sc1") for e in range(2)]
            return L+t,t
        at={}
        for i in range(D):
            L,at[i]=aload(i); p.add(L)
        for G in self.p3_wait: p.add(G)
        fl=self.final_loads()
        xt=self.xterm_items()
        brd={}
        def bread(i):
            st=order[i]; dst=BJ+8*(i%3)
            if st[0]=="f":
                b=st[1]
                if b<24: return None
                slot=b-8
                return [Wait(vm=tok[("f",b)])]+self.p3_rd_f(slot,dst,False)
            _,mat,ph,s=st
            w=[Wait(vm=tok[("c",4*mat+2*ph+ct)]) for ct in range(2)]
            return w+self.p3_rd_c(mat,ph,s,dst)
        n=len(order)
        x0=self.o.get("xt0",13); xn=8
        xparts=split(xt,xn)
        for i in range(n):
            st=order[i]
            fill=[]
            if i+2<n:
                r=bread(i+2)
                if r: brd[i+2]=[x for x in r if not isinstance(x,Wait)]; fill+=r
            fill+=pf.get(i,[])
            if 2<=i<6: fill+=split(fl,4)[i-2]
            if x0<=i<x0+xn: fill+=xparts[i-x0]
            r=RING+8*(i%D)
            if st[0]=="f" and st[1]<24: B=lambda ct,b=st[1]: ar(self.blk_areg(b)+4*ct,4)
            else: B=lambda ct,i=i: vr(BJ+8*(i%3)+4*ct,4)
            mf=[]
            for tau in range(2):
                for ct in range(2):
                    a=ACC+16*(2*tau+ct)
                    mf.append(mk(f"v_mfma_f32_32x32x16_bf16 {vr(a,16)}, {vr(r+4*tau,4)}, {B(ct)}, {'0' if i==0 else vr(a,16)}"))
            if i==24-D-1: p.add(self.p3_poll2[1])
            if i==max(24-D-1-self.o.get("poll2_lead",6),0): fill+=self.p3_poll2[0]
            p.wait(vm=at[i][0])
            if self.o.get("p3st") and i%8==0: p.add(self.stamp(1 if i==0 else 2+i//8))
            if i in brd: p.wait(lgkm=brd[i])
            k=len(fill); f3=[fill[(k*q)//3:(k*(q+1))//3] for q in range(3)]
            p.add(mf[0]); p.add(f3[0]); p.add(mf[1]); p.add(f3[1])
            p.wait(vm=at[i][1])
            p.add(mf[2]); p.add(f3[2]); p.add(mf[3])
            if i+D<n:
                L,at[i+D]=aload(i+D); p.add(L)

    def a_base(self):
        L=[]; A=lambda x: L.append(mk(x))
        A(f"s_lshl_b32 s{S_A0}, s{S_C3}, 2"); A(f"s_lshl_b32 s{S_T0}, s{S_RH}, 1"); A(f"s_add_u32 s{S_A0}, s{S_A0}, s{S_T0}"); A(f"s_mul_i32 s{S_A0}, s{S_A0}, 176")
        A(f"s_mul_i32 s{S_T0}, s{S_W}, 44"); A(f"s_add_u32 s{S_A0}, s{S_A0}, s{S_T0}"); A(f"s_lshl_b32 s{S_A0}, s{S_A0}, 10")
        A(f"s_lshr_b32 s{S_T0}, s{S_W}, 1"); A(f"s_mul_i32 s{S_T0}, s{S_T0}, {176*1024}"); A(f"s_xor_b32 s{S_T1}, s{S_T0}, {176*1024}")
        A(f"s_add_u32 s{S_A0+1}, s{S_A0}, s{S_T1}"); A(f"s_add_u32 s{S_A0}, s{S_A0}, s{S_T0}")
        if self.o.get("ga_global",0):
            A(f"s_add_u32 s6, s{P_WS}, s{S_A0}"); A(f"s_addc_u32 s7, s{P_WS+1}, 0"); A(f"s_add_u32 s30, s{P_WS}, s{S_A0+1}"); A(f"s_addc_u32 s31, s{P_WS+1}, 0")
        return L

    @staticmethod
    def reg_of_row(rho): return 2*rho if rho<8 else 2*(rho-8)+1
    def final_loads(self):
        L=[]; A=lambda x: L.append(mk(x)) or L[-1]
        XV,GV,DV=2,216,18
        a=V_T
        A(f"s_lshl_b32 s{S_R0}, s{S_C3}, 7"); A(f"s_lshl_b32 s{S_T0}, s{S_RH}, 6"); A(f"s_add_u32 s{S_R0}, s{S_R0}, s{S_T0}"); A(f"s_lshr_b32 s{S_T0}, s{S_W}, 1"); A(f"s_lshl_b32 s{S_T0}, s{S_T0}, 5"); A(f"s_add_u32 s{S_R0}, s{S_R0}, s{S_T0}")
        A(f"s_lshl_b32 s{S_D0}, s{S_CB}, 6"); A(f"s_and_b32 s{S_T0}, s{S_W}, 1"); A(f"s_lshl_b32 s{S_T0}, s{S_T0}, 5"); A(f"s_add_u32 s{S_D0}, s{S_D0}, s{S_T0}")
        A(f"v_lshrrev_b32 v{a}, 5, v{V_L}"); A(f"v_lshlrev_b32 v{a+1}, 6, v{a}"); A(f"s_lshl_b32 s{S_T0}, s{S_R0}, 2"); A(f"s_add_u32 s{S_T0}, s{S_T0}, {WS_G}")
        toks=[]
        for i in range(4): toks.append(A(f"buffer_load_dwordx4 {vr(GV+4*i,4)}, v{a+1}, {sr(R_WS)}, s{S_T0} offen offset:{16*i} sc1"))
        for i,(v) in enumerate((P_DSK,P_DSK+1)): A(f"s_mov_b32 s{R_T2+i}, s{v}")
        A(f"s_mov_b32 s{R_T2+2}, 1024"); A(f"s_mov_b32 s{R_T2+3}, 0x20000")
        A(f"v_and_b32 v{a+2}, 31, v{V_L}"); A(f"v_add_u32 v{a+2}, s{S_D0}, v{a+2}")
        A(f"v_lshlrev_b32 v{V_OO}, 2, v{a+2}"); A(f"v_lshlrev_b32 v{a+2}, 1, v{a+2}")
        toks.append(A(f"buffer_load_ushort v{DV}, v{a+2}, {sr(R_T2)}, 0 offen"))
        A(f"v_lshlrev_b32 v{a}, 14, v{a}"); A(f"v_add_u32 v{a+2}, v{a+2}, v{a}"); A(f"s_lshl_b32 s{S_T0}, s{S_R0}, 10")
        for rho in range(16):
            if rho and rho%4==0: A(f"s_add_u32 s{S_T0}, s{S_T0}, 4096")
            toks.append(A(f"buffer_load_ushort v{XV+self.reg_of_row(rho)}, v{a+2}, {sr(R_X)}, s{S_T0} offen offset:{1024*(rho%4)}"))
        A(f"v_lshl_add_u32 v{V_OO}, v{a}, 1, v{V_OO}")
        self.fin_toks=toks
        return L

    def xterm_items(self):
        XV,GV,DV=2,216,18
        L=[Wait(vm=self.fin_toks), mk(f"v_lshlrev_b32 v{DV}, 16, v{DV}")]
        for r in range(16): L.append(mk(f"v_lshlrev_b32 v{XV+r}, 16, v{XV+r}"))
        for r in range(16): L.append(mk(f"v_mul_f32 v{XV+r}, v{XV+r}, v{DV}"))
        for r in range(0,16,2): L.append(mk(f"v_cvt_pk_bf16_f32 v{XV+r}, v{XV+r}, v{XV+r+1}"))
        for r in range(0,16,2): L+=[mk(f"v_and_b32 v{XV+r+1}, 0xffff0000, v{XV+r}"), mk(f"v_lshlrev_b32 v{XV+r}, 16, v{XV+r}")]
        for r in range(16): L.append(mk(f"v_mul_f32 v{XV+r}, v{XV+r}, v{GV+r}"))
        a=V_T
        L+=[mk(f"v_lshlrev_b32 v{a}, 4, v{V_L}")]
        for k in range(1,4):
            L+=[mk(f"s_xor_b32 s{S_T0}, s{S_W}, {k}"), mk(f"s_mul_i32 s{S_T0}, s{S_T0}, {REGION}"), mk(f"v_add_u32 v{a+k}, s{S_T0}, v{a}")]
        L+=[mk(f"v_add_u32 v{a}, s{S_RG}, v{a}")]
        for k,v in enumerate((f"s{P_OUT}",f"s{P_OUT+1}",2048*2048,"0x20000")): L.append(mk(f"s_mov_b32 s{R_T2+k}, {v}"))
        L+=[mk(f"s_lshl_b32 s{S_R0}, s{S_R0}, 11")]
        return L

    def final(self):
        p=self.p
        ACC=32; XV=2
        a=V_T
        wr=[]
        for k in range(1,4):
            for q in range(4): wr.append(p.I(f"ds_write_b128 v{a}, {vr(ACC+16*k+4*q,4)} offset:{(k-1)*4096+q*1024}"))
        for r in range(0,16,2): p.I(f"v_pk_add_f32 {vr(ACC+r,2)}, {vr(ACC+r,2)}, {vr(XV+r,2)}")
        p.wait(lgkm_all=True); p.I("s_barrier")
        rd=[]
        for k in range(1,4):
            for q in range(4): rd.append(p.I(f"ds_read_b128 {vr(96+16*(k-1)+4*q,4)}, v{a+k} offset:{(k-1)*4096+q*1024}"))
        for k in range(3):
            for q in range(4):
                p.wait(lgkm=rd[4*k+q])
                for r in (4*q,4*q+2): p.I(f"v_pk_add_f32 {vr(ACC+r,2)}, {vr(ACC+r,2)}, {vr(96+16*k+r,2)}")
        fl=self.o.get("out_flags","sc1")
        for rho in range(16):
            if rho and rho%2==0: p.I(f"s_add_u32 s{S_R0}, s{S_R0}, 4096")
            p.I(f"buffer_store_dword v{ACC+self.reg_of_row(rho)}, v{V_OO}, {sr(R_T2)}, s{S_R0} offen offset:{2048*(rho%2)} {fl}")

    def stamp(self, idx):
        if not self.o.get("stamps"): return []
        only=self.o.get("only")
        if only is not None and idx not in only: return []
        L=[mk("s_memrealtime s[100:101]"), mk("s_waitcnt lgkmcnt(0)"), mk(f"v_writelane_b32 v{V_ST}, s100, {idx}")]
        if self.o.get("cyc"): L+=[mk("s_memtime s[100:101]"), mk("s_waitcnt lgkmcnt(0)"), mk(f"v_writelane_b32 v{V_ST}, s100, {idx+16}")]
        return L
    def note(self, idx, sreg):
        if not self.o.get("stamps"): return []
        return [mk("s_nop 0"), mk(f"v_writelane_b32 v{V_ST}, s{sreg}, {idx}")]
    def dump_stamps(self):
        if not self.o.get("stamps"): return
        p=self.p
        p.I(f"s_lshl_b32 s{S_T0}, s2, 2\ns_add_u32 s{S_T0}, s{S_T0}, s{S_W}\ns_lshl_b32 s{S_T0}, s{S_T0}, 8\ns_add_u32 s{S_T0}, s{S_T0}, {WS_DBG}")
        p.I(f"v_lshlrev_b32 v{V_T}, 2, v{V_L}")
        p.I(f"buffer_store_dword v{V_ST}, v{V_T}, {sr(R_WS)}, s{S_T0} offen")
        p.wait(vm_all=True)

    def dump_regs(self, regs, slot_base, agpr=False):
        p=self.p
        n=len(regs)
        p.I(f"s_lshl_b32 s{S_T0}, s2, 2\ns_add_u32 s{S_T0}, s{S_T0}, s{S_W}\ns_mul_i32 s{S_T0}, s{S_T0}, {n*256}\ns_add_u32 s{S_T0}, s{S_T0}, {slot_base}")
        p.I(f"v_lshlrev_b32 v{V_T}, 2, v{V_L}")
        for i,r in enumerate(regs):
            p.I(f"buffer_store_dword {r}, v{V_T}, {sr(R_WS)}, s{S_T0} offen")
            p.I(f"s_add_u32 s{S_T0}, s{S_T0}, 256")
        p.wait(vm_all=True)

    def finish(self):
        p=self.p
        p.I("s_endpgm")
        for x in self.slow: p.I(x)
        p.I("L_exit:\ns_endpgm\nL_codeend:")

    def text(self):
        items,npad,errs=finalize(self.p)
        for e in errs[:20]: print("ERR",e,file=sys.stderr)
        hdr=open("gated_mix__ssm_conv_s5__glu_gated_geglu__prompt.s.ref").read().split("; Override launch")[0]
        out=hdr+"; @launch grid=(256,1,1) block=(256,1,1) lds=163840\n"
        out+='.amdgcn_target "amdgcn-amd-amdhsa--gfx950"\n.text\n'
        out+=f".globl {KNAME}\n.p2align 8\n.type {KNAME},@function\n{KNAME}:\n"
        out+=emit(items)
        out+=f'''.section .rodata,"a"
.p2align 6
.amdhsa_kernel {KNAME}
  .amdhsa_next_free_vgpr 512
  .amdhsa_next_free_sgpr 102
  .amdhsa_accum_offset 256
  .amdhsa_group_segment_fixed_size 0
  .amdhsa_kernarg_size 136
  .amdhsa_user_sgpr_count 2
  .amdhsa_user_sgpr_kernarg_segment_ptr 1
  .amdhsa_system_sgpr_workgroup_id_x 1
.end_amdhsa_kernel
'''
        self.stats=dict(n=len(items),npad=npad,errs=len(errs))
        return out

def cutpt(L,k):
    while k<len(L) and (not isinstance(L[k],Wait)) and (L[k].kind=="label" or L[k].op.startswith("s_cselect") or L[k].op.startswith("s_cbranch") or L[k].op.startswith("s_addc")): k+=1
    return k
def split(L,n):
    k=len(L); c=[0]+[cutpt(L,(k*i)//n) for i in range(1,n)]+[k]; return [L[c[i]:c[i+1]] for i in range(n)]

def build_full(opts=None, stop=None):
    g=Gen(opts=opts); p=g.p; o=g.o
    if o.get("stamps"): p.I(f"v_mov_b32 v{V_ST}, 0")
    p.add(g.stamp(0))
    g.prologue_a()
    ex={}; head={}
    segs=[]; tsegs=[]
    def seg(items,a,b,tag=None):
        items=list(items)
        if tag and tag in o.get("abl",()):
            items=[x for x in items if isinstance(x,Wait) or (not isinstance(x,list) and x.kind in("vmem","ds"))]
        segs.append((items,a,b))
    def addh(key,items): head[key]=head.get(key,[])+list(items)
    F=lambda c,s_: ("F",c,s_)
    S=lambda c,d: ("S",c,d)
    def late():
        G=g.gate_items(); K=g.const_items()
        tp=o.get("touch_p3",1)
        if tp:
            wk=o.get("tw",[(1,1),(1,3),(2,1),(2,2),(3,1),(3,2),(4,1)]); ck=o.get("tc",[(5,0),(5,1),(5,2),(5,3)])
            for (a_,b_) in wk: tsegs.append((g.touch_one(R_T),F(a_,b_),F(a_,b_)))
            tsegs.append((g.touch_setup_c(),F(*ck[0]),F(*ck[0])))
            for (a_,b_) in ck: tsegs.append((g.touch_one(R_T2),F(a_,b_),F(a_,b_)))
        nS=o.get("nS",[2,2,2,2,0,0,0,0])
        z=max(k for k in range(8) if nS[k])-3
        sA=S(2,0) if nS[0]==2 else S(1,0); sB=S(4,0) if nS[0]==2 else S(2,0)
        n3=cutpt(G,len(G)//3); n4=cutpt(G,2*len(G)//3)
        seg(G[:n3],F(0,0),F(0,3),'gate')
        seg(G[n3:n4],sA,F(1,0),'gate')
        seg(G[n4:],F(1,1),F(1,2),'gate')
        addh(F(2,3),[Wait(vm=[g.g_store,g.c_store,g.e_init])])
        half=cutpt(K,len(K)//2)
        seg(K[:half],sB,F(2,1),'const')
        seg(g.flag_op("add",[f"s_lshl_b32 s{S_T0}, s{S_C}, 4"],"1"),F(2,3),F(2,3))
        seg(K[half:],F(2,3),S(7,1),'const')
        Lp,tp_=g.gpoll_issue(23)
        L1,w1=g.pass1()
        seg(L1[:22],F(3+z,0),F(3+z,0),'p1')
        seg(L1[22:48],F(3+z,0),F(3+z,1),'p1')
        seg(L1[48:],F(3+z,1),F(3+z,2),'p1')
        addh(F(3+z,3),[Wait(lgkm=w1)])
        L2,est=g.exchange()
        seg(Lp,F(3+z,3),F(3+z,3))
        c2=cutpt(L2,40); seg(L2[:c2],F(3+z,3),F(4+z,0),'ex')
        seg(L2[c2:],F(4+z,1),F(4+z,2),'ex')
        addh(F(4+z,3),g.gpoll_check(23,tp_))
        Lg,gt=g.g_loads(); g.gt=gt
        seg(g.copy_consts(),F(4+z,3),F(4+z,3))
        seg(Lg,F(5,1) if z==0 else F(4+z,3),F(5,1) if z==0 else F(5+z,0))
        if not o.get("tail"):
            seg(g.p3_patterns1()+g.p3_patterns2(),F(5,3) if z==0 else F(6,1),F(6,2),'pat')
        else:
            seg(g.p3_patterns1(),F(5,1),F(5,1),'pat')
            r1=[]; t1={}
            for b in range(8):
                L,t1[b]=g.p3_dma_f(b,b,tail=True); r1+=L
            r1w=o.get("r1w",((5,1),(5,3))); rdw=o.get("rdw",((6,1),(6,2))); r2w=o.get("r2w",((6,3),(7,1)))
            seg(r1,F(*r1w[0]),F(*r1w[1]))
            seg(g.p3_patterns2(),F(6,0),F(6,0),'pat')
            rd1=sum([g.p3_rd_f(b,g.blk_areg(b),True) for b in range(8)],[])
            seg([Wait(vm=t1[3])]+rd1[:16]+[Wait(vm=t1[7])]+rd1[16:],F(*rdw[0]),F(*rdw[1]))
            r2=[Wait(lgkm=rd1)]; g.t2={}
            for b in range(8,16):
                L,g.t2[b]=g.p3_dma_f(b,b-8,tail=True); r2+=L
            seg(r2,F(*r2w[0]),F(*r2w[1]))
        Le2,et=g.e_loads(); g.et=et
        seg(Le2,F(7,1) if (not o.get('tail') and z==0) else F(7,2),F(7,3))
    g.late=late
    g.late2=lambda: None
    g.segs=segs; g.tsegs=tsegs
    g.ex=ex; g.extra_head=head; g.end_barrier=True
    if o.get("stamps"):
        def st():
            for key,idx in ((("S",0,0),2),(("F",0,0),3),(("S",2,0),4),(("S",4,0),5),(("S",6,0),6),(("F",4,0),7),(("F",7,3),8)):
                head[key]=(g.stamp(idx) if not o.get("p3st") else [])+head.get(key,[])
            if o.get("fine2"):
                k=40
                for key in [S(0,0),S(0,1),S(1,0),S(1,1),F(0,0),F(0,1),F(0,2),F(0,3),S(2,0),S(2,1),S(3,0),S(3,1),F(1,0),F(1,1),F(1,2),F(1,3),S(4,0)]:
                    head[key]=g.stamp(k)+head.get(key,[]); k+=1
            if o.get("fine"):
                k=40
                for ch in range(3,8):
                    for st_ in range(4):
                        head[("F",ch,st_)]=g.stamp(k)+head.get(("F",ch,st_),[]); k+=1
        g.late3=st
    g.phase1(ex)
    p.add(g.stamp(9))
    if o.get("p1only"):
        p.wait(vm_all=True,lgkm_all=True); p.add(g.stamp(15)); g.dump_stamps(); g.finish(); return g
    tok={}
    pre,tiles,Sf,sf=g.ffn_epilogue(g.gt[:1])
    Ls,ss=g.ssm_epilogue(g.et,g.gt[1:],[mk(f"s_add_u32 s{S_T0}, s{S_RG}, 36864")])
    def pub(dw): return g.flag_op("add",[f"s_lshl_b32 s{S_T0}, s{S_C}, 7", f"s_add_u32 s{S_T0}, s{S_T0}, {WS_CNT+4*dw}", f"s_lshr_b32 s{S_K0}, s{S_J}, 2", f"s_lshl_b32 s{S_K0}, s{S_K0}, 3", f"s_lshl_b32 s{S_K0}, 1, s{S_K0}"],f"s{S_K0}",R=R_WS)
    p.I("s_nop 7")
    if o.get("tail"):
        rd2=[]
        for b in range(8,16):
            if b in (8,12): p.wait(vm=g.t2[b+3])
            r=g.p3_rd_f(b-8,g.blk_areg(b),True); rd2+=r; p.add(r)
        g.rd2=rd2
    nA=o.get("nA",0)
    rA=[]
    for b in range(nA):
        L,tok[("f",b)]=g.p3_dma_f(b,b); rA.append(L)
    stream=list(pre)
    for i in range(7):
        stream+=tiles[i]+Sf[i]
        if i==0 and o.get("tail"): stream+=[Wait(lgkm=g.rd2)]+g.p3_rebase()+[mk("s_barrier")]
    evA=[]
    dt=o.get("dtA",75)
    for i,L in enumerate(rA):
        t=o.get("tA0",60)+2*dt*i
        evA+=[(t,L[:3]),(t+dt,L[3:])]
    merged,rest_,t_=g.merge_time(stream,evA)
    p.add(merged)
    g.evA_rest=(rest_,t_)
    if o.get("cyc"): p.add(g.stamp(1))
    cut=[k for k,x in enumerate(Ls) if not isinstance(x,Wait) and x.text.startswith(f"v_accvgpr_read_b32 v204, a{A_PAT+12}")][0]
    if o.get("two",0):
        p.add(Ls[:cut]); p.wait(vm=sf); p.I("s_barrier"); p.add(pub(0)); p.add(Ls[cut:])
        for _,x in g.evA_rest[0]: p.add(x)
    else:
        m2,rest2,_=g.merge_time(Ls,g.evA_rest[0],t=g.evA_rest[1])
        if rest2:
            k=min(i for i,x in enumerate(m2) if x in ss)
            while isinstance(m2[k-1],Wait): k-=1
            m2=m2[:k]+[y for _,x in rest2 for y in x]+m2[k:]
        p.add(m2)
    bytecheck=[f"s_lshl_b32 s{S_T1}, s{S_W}, 3", f"s_lshr_b32 s{S_T0}, s{S_T0}, s{S_T1}", f"s_and_b32 s{S_T0}, s{S_T0}, 0xff", f"s_cmp_eq_u32 s{S_T0}, 4"]
    if o.get("tail"):
        p.add(g.stamp(10))
        p.wait(lgkm=g.t_reads)
        for b in range(16,24):
            L,tok[("f",b)]=g.p3_dma_f(b,b-8); p.add(L)
        p.wait(vm=sf+ss); p.add(g.stamp(11)); p.I("s_barrier")
        p.add(pub(1))
        if not o.get("two",0): p.add(pub(0))
        Lq,tq=g.poll_issue(30,[f"s_lshl_b32 s{S_T0}, s{S_C3}, 7", f"s_add_u32 s{S_T0}, s{S_T0}, {WS_CNT}"],R=R_WS)
        pf_first=o.get("poll_first",0)
        if pf_first==1: p.add(Lq); p.add(g.a_base())
        for b in range(24,28):
            L,tok[("f",b)]=g.p3_dma_f(b,b-8); p.add(L)
        if pf_first==2: p.add(Lq); p.add(g.a_base())
        for k in range(4):
            L,tok[("c",k)]=g.p3_dma_c(k); p.add(L)
        if pf_first==0: p.add(Lq); p.add(g.a_base())
        GX=[Wait(vm=tok[("f",19)])]; rdx=[]
        for b in range(16,24):
            if b==20: GX.append(Wait(vm=tok[("f",23)]))
            r=g.p3_rd_f(b-8,g.blk_areg(b),True); rdx+=r; GX+=r
        GX.append(Wait(lgkm=rdx))
        for k in range(4,8):
            L,tok[("c",k)]=g.p3_dma_c(k); GX+=L
        if o.get("gx_before",1): p.add(GX); Gs=[]
        else: Gs=[GX]
        p.add(g.poll_check("a",30,tq,bytecheck,R=R_WS,sleep=0))
        n_before_check=0; n_after=len(Gs)
    else:
        p.add(g.stamp(10))
        p.wait(lgkm=g.t_reads)
        nb0=max(o.get("nb0",9),nA)
        for b in range(nA,nb0):
            L,tok[("f",b)]=g.p3_dma_f(b,b); p.add(L)
        p.wait(vm=sf+ss); p.add(g.stamp(11)); p.I("s_barrier")
        p.add(pub(1))
        if not o.get("two",0): p.add(pub(0))
        if o.get("fine"): p.add(g.stamp(60))
        Lq,tq=g.poll_issue(30,[f"s_lshl_b32 s{S_T0}, s{S_C3}, 7", f"s_add_u32 s{S_T0}, s{S_T0}, {WS_CNT}"],R=R_WS)
        early=o.get("early_poll",0)
        nb1=max(o.get("nb1",14),nb0)
        for b in range(nb0,nb1):
            L,tok[("f",b)]=g.p3_dma_f(b,b); p.add(L)
        if early: p.add(Lq); p.add(g.a_base())
        for b in range(nb1,20):
            L,tok[("f",b)]=g.p3_dma_f(b,b); p.add(L)
        def group(gi):
            bs=range(4*gi,4*gi+4); L=[Wait(vm=tok[("f",4*gi+3)])]; rd=[]
            for b in bs:
                r=g.p3_rd_f(b if b<20 else b-20,g.blk_areg(b),True); rd+=r; L+=r
            L.append(Wait(lgkm=rd))
            if gi==0:
                for b in range(20,24):
                    l,tok[("f",b)]=g.p3_dma_f(b,b-20); L+=l
            elif gi in (1,2,3):
                for k in (2*gi,2*gi+1):
                    l,tok[("c",k)]=g.p3_dma_c(k); L+=l
            elif gi==5:
                for k in (0,1):
                    l,tok[("c",k)]=g.p3_dma_c(k); L+=l
            return L
        G0=group(0); G1=group(1); G2=group(2); G3=group(3)
        G4=[Wait(vm=tok[("f",19)])]; rd4=[]
        for b in range(16,20):
            r=g.p3_rd_f(b,g.blk_areg(b),True); rd4+=r; G4+=r
        G4.append(Wait(lgkm=rd4))
        for b in range(24,28):
            l,tok[("f",b)]=g.p3_dma_f(b,b-8); G4+=l
        G5=group(5)
        Gs=[G0,G1,G2,G3,G4,G5]
        n_before_check=o.get("gc",2); n_after=o.get("ga",5)
        if not early: p.add(Lq); p.add(g.a_base())
        for x in Gs[:n_before_check]: p.add(x)
        if o.get("fine"): p.add(g.stamp(61))
        bytecheck_=[f"s_lshl_b32 s{S_T1}, s{S_W}, 3", f"s_lshr_b32 s{S_T0}, s{S_T0}, s{S_T1}", f"s_and_b32 s{S_T0}, s{S_T0}, 0xff", f"s_cmp_eq_u32 s{S_T0}, 4"]
        p.add(g.poll_check("a",30,tq,bytecheck,R=R_WS,sleep=0))
    g.p3_wait=Gs[n_before_check:n_after]
    g.p3_rest=Gs[n_after:]
    Lq2,tq2=g.poll_issue(28,[f"s_lshl_b32 s{S_T0}, s{S_C3}, 7", f"s_add_u32 s{S_T0}, s{S_T0}, {WS_CNT+4}"],R=R_WS)
    g.p3_poll2=(Lq2, g.poll_check("s",28,tq2,bytecheck,R=R_WS,sleep=0))
    p.add(g.stamp(12))
    g.phase3(tok)
    p.add(g.stamp(13))
    g.final()
    p.add(g.stamp(14))
    if o.get("stamps"): p.wait(vm_all=True)
    p.add(g.stamp(15))
    g.dump_stamps()
    g.finish()
    return g

if __name__=="__main__":
    opts=eval(sys.argv[2]) if len(sys.argv)>2 else {}
    g=build_full(opts=opts); t=g.text(); open(sys.argv[1] if len(sys.argv)>1 else "full.s","w").write(t); print(g.stats)
```
